```python
import torch

def _softmax(x, axis=-1):
    return torch.softmax(x, dim=axis)
def _gelu(x):
    return torch.nn.functional.gelu(x, approximate="tanh")
def _silu(x):
    return torch.nn.functional.silu(x)
def _sigmoid(x):
    return torch.sigmoid(x)
def _layernorm(x, axis=-1, eps=1e-5):
    m = x.mean(dim=axis, keepdim=True)
    v = x.var(dim=axis, keepdim=True, unbiased=False)
    return (x - m) / torch.sqrt(v + eps)
def _scatter_add(tgt, idx, src, axis=0):
    return tgt.clone().index_add_(axis, idx, src)
def _segment_sum(src, seg, n):
    out = torch.zeros((n,) + src.shape[1:], dtype=src.dtype)
    return out.index_add_(0, seg, src)
def _pad(x, pw):
    flat = tuple(v for pair in reversed(pw) for v in pair)
    return torch.nn.functional.pad(x, flat)

kernel_name = 'standalone__molecular_angular_gemnet__graph'

def setup_inputs():

    _w = (lambda a: (lambda t: t.to(torch.bfloat16) if t.is_floating_point() else t)(torch.as_tensor(a)))
    N, deg, De, L = 10000, 32, 16, 1
    E = N * deg
    T = E * deg
    NR = 8
    dist = torch.rand(E).to(float)
    angle = (torch.rand(T) * torch.pi).to(float)
    centers = torch.linspace(0.0, 1.0, NR).to(float)
    ang_freq = torch.arange(1, L + 1).to(float)
    return {
        "m": _w((lambda *s: torch.randn(*s, dtype=torch.bfloat16) * 0.05)(E, De)),
        "idx_in": _w((lambda lo, hi, *s: torch.randint(lo, hi, s))(0, E, T).to(torch.int64)),
        "idx_out": _w((lambda lo, hi, *s: torch.randint(lo, hi, s))(0, E, T).to(torch.int64)),
        "dist": _w(dist),
        "angle": _w(angle),
        "centers": _w(centers),
        "ang_freq": _w(ang_freq),
        "w_rbf": _w((lambda *s: torch.randn(*s, dtype=torch.bfloat16) * 0.2)(NR, De)),
        "w_sbf": _w((lambda *s: torch.randn(*s, dtype=torch.bfloat16) * 0.2)(NR * L, De)),
        "w_down": _w((lambda *s: torch.randn(*s, dtype=torch.bfloat16) * 0.2)(De, De)),
        "w_up": _w((lambda *s: torch.randn(*s, dtype=torch.bfloat16) * 0.2)(De, De)),
    }

def reference(m, idx_in, idx_out, dist, angle, centers, ang_freq, w_rbf, w_sbf, w_down, w_up):
    E, De = m.shape[0], m.shape[1]
    NR = centers.shape[0]
    L = ang_freq.shape[0]
    rbf = torch.exp(-10.0 * (dist[:, None] - centers[None, :]) ** 2)
    cbf = torch.cos(ang_freq[None, :] * angle[:, None])
    rbf_t = rbf[idx_out]
    sbf = torch.reshape(rbf_t[:, :, None] * cbf[:, None, :], (-1, NR * L))
    x = (m[idx_in] @ w_down) * (sbf @ w_sbf)
    agg = _segment_sum(x, idx_out, E)
    return m + (agg @ w_up) * (rbf @ w_rbf)
```

```python
import struct, sys, os
import numpy as np

E = 320000; T = 10240000
TILE = 20480; NT = 500; NBIN = 1024
TILE_BYTES = 129024
DESC_OFF = NT * TILE_BYTES
DESC_ROW = 512 * 4
ROWS_PER_B = 1250

out = []
def A(s=""):
    out.append(s)
def f2u(x):
    return struct.unpack("<I", struct.pack("<f", x))[0]

def srd(base_s, ptr_lo, nbytes, off=0):
    if off:
        A(f"  s_add_u32 s{base_s}, s{ptr_lo}, {off}")
        A(f"  s_addc_u32 s{base_s+1}, s{ptr_lo+1}, 0")
    else:
        A(f"  s_mov_b32 s{base_s}, s{ptr_lo}")
        A(f"  s_mov_b32 s{base_s+1}, s{ptr_lo+1}")
    A(f"  s_mov_b32 s{base_s+2}, {nbytes}")
    A(f"  s_mov_b32 s{base_s+3}, 0x20000")

STAMP = False
stamp_idx = [0]
def stamp():
    if not STAMP: return
    i = stamp_idx[0]; stamp_idx[0] += 1
    A(f"  s_memtime s[{60+2*i}:{61+2*i}]")
    A(f"  s_waitcnt lgkmcnt(0)")
def rstamp(reg):
    if not STAMP: return
    A(f"  s_memrealtime s[{reg}:{reg+1}]")
    A(f"  s_waitcnt lgkmcnt(0)")
def stamp_flush(wgsel):
    if not STAMP: return
    n = stamp_idx[0]
    A(f"  s_cmp_lg_u32 s2, {wgsel}")
    A(f"  s_cbranch_scc1 L_nostamp")
    A(f"  s_cmp_lg_u32 s35, 0")
    A(f"  s_cbranch_scc1 L_nostamp")
    A(f"  s_load_dwordx2 s[44:45], s[0:1], 96")
    A(f"  s_waitcnt lgkmcnt(0)")
    srd(48, 44, 256)
    A(f"  v_mov_b32 v4, 0")
    for i in range(n):
        A(f"  s_sub_u32 s46, s{60+2*i}, s60")
        A(f"  v_mov_b32 v5, s46")
        A(f"  buffer_store_dword v5, v4, s[48:51], 0 offen offset:{4*i}")
    A(f"  s_sub_u32 s46, s94, s92")
    A(f"  v_mov_b32 v5, s46")
    A(f"  buffer_store_dword v5, v4, s[48:51], 0 offen offset:{4*n}")
    A(f"L_nostamp:")
K1_HIST = TILE_BYTES
K1_WT = K1_HIST + 4096
K1_LDS = K1_WT + 64

c_full = 0.15915494309189535
c_hi_u = f2u(c_full) & 0xFFFFFF00
c_hi = struct.unpack("<f", struct.pack("<I", c_hi_u))[0]
c_lo_u = f2u(c_full - c_hi)

def k1_loads(O, I, An, stau, nt=" nt"):
    A(f"  s_mul_i32 s40, s{stau}, 81920")
    A(f"  s_mul_i32 s42, s{stau}, 40960")
    for c in range(5):
        A(f"  buffer_load_dwordx4 v[{O+4*c}:{O+4*c+3}], v1, s[8:11], s40 offen{nt}")
        A(f"  buffer_load_dwordx4 v[{I+4*c}:{I+4*c+3}], v1, s[12:15], s40 offen{nt}")
        A(f"  buffer_load_dwordx2 v[{An+2*c}:{An+2*c+1}], v2, s[16:19], s42 offen{nt}")
        if c < 4:
            A(f"  s_add_u32 s40, s40, 16384")
            A(f"  s_add_u32 s42, s42, 8192")

def k1_fields(O, I, An, c):
    for r in range(4):
        o = O + 4*c + r; i = I + 4*c + r
        A(f"  v_mul_hi_u32_u24 v12, s28, v{o}")
        A(f"  v_mul_hi_u32_u24 v13, s30, v{i}")
        A(f"  v_mad_i32_i24 v14, v12, s29, v{o}")
        A(f"  v_lshlrev_b32 v12, 2, v12")
        A(f"  v_lshl_or_b32 v{o}, v13, 10, v12")
        A(f"  v_lshl_or_b32 v{i}, v{i}, 5, s32")
        A(f"  v_lshlrev_b32 v15, 20, v14")
        A(f"  v_lshlrev_b32 v14, 1, v14")
        A(f"  v_and_or_b32 v{i}, v15, s37, v{i}")
        A(f"  v_and_or_b32 v{i}, v14, 30, v{i}")
        rk = 4 + (c % 2) * 4 + r
        A(f"  ds_add_rtn_u32 v{rk}, v{o}, v3 offset:{K1_HOFF}")
    for h in range(2):
        a = An + 2*c + h
        A(f"  v_lshlrev_b32 v12, 16, v{a}")
        A(f"  v_and_b32 v13, s38, v{a}")
        A(f"  v_mul_f32 v12, s31, v12")
        A(f"  v_mul_f32 v13, s31, v13")
        A(f"  v_cvt_pk_bf16_f32 v14, v12, v13")
        A(f"  v_lshlrev_b32 v12, 16, v14")
        A(f"  v_and_b32 v13, s38, v14")
        A(f"  v_mul_f32 v14, s33, v12")
        A(f"  v_mul_f32 v15, s33, v13")
        A(f"  v_fract_f32 v14, v14")
        A(f"  v_fract_f32 v15, v15")
        A(f"  v_fma_f32 v14, v12, s34, v14")
        A(f"  v_fma_f32 v15, v13, s34, v15")
        A(f"  v_cos_f32 v14, v14")
        A(f"  v_cos_f32 v15, v15")
        A(f"  s_nop 0")
        A(f"  v_cvt_pk_bf16_f32 v{a}, v14, v15")

K1_HIST = 0
K1_WT = 4096
K1_STG = 4096 + 128
K1_LDS = K1_STG + TILE_BYTES
K1_HOFF = K1_HIST

def k1_pack(O, c):
    for r in range(4):
        o = O + 4*c + r; rk = 4 + (c % 2) * 4 + r
        A(f"  v_lshl_or_b32 v{o}, v{rk}, 12, v{o}")

def k1_tile(O, I, An, stau, vm_base, tag, after_first=None):
    for c in range(5):
        if vm_base is not None:
            if c == 0 and after_first is not None:
                A(f"  s_waitcnt vmcnt({15 - 3})")
                stamp()
                after_first()
            else:
                A(f"  s_waitcnt vmcnt({vm_base + 15 - 3*(c+1)})")
        k1_fields(O, I, An, c)
        if c > 0:
            A(f"  s_waitcnt lgkmcnt(4)")
            k1_pack(O, c-1)
    A(f"  s_waitcnt lgkmcnt(0)")
    k1_pack(O, 4)
    stamp()
    A(f"  s_barrier")
    stamp()
    A(f"  ds_read_b32 v4, v16 offset:{K1_HIST}")
    A(f"  s_waitcnt lgkmcnt(0)")
    A(f"  v_add_u32 v5, 1, v4")
    A(f"  v_and_b32 v5, -2, v5")
    A(f"  v_mov_b32 v6, v5")
    A(f"  s_nop 1")
    for sh in (1, 2, 4, 8):
        A(f"  v_add_u32_dpp v6, v6, v6 row_shr:{sh} row_mask:0xf bank_mask:0xf bound_ctrl:0")
        A(f"  s_nop 1")
    A(f"  v_add_u32_dpp v6, v6, v6 row_bcast:15 row_mask:0xa bank_mask:0xf")
    A(f"  s_nop 1")
    A(f"  v_add_u32_dpp v6, v6, v6 row_bcast:31 row_mask:0xc bank_mask:0xf")
    A(f"  s_nop 1")
    A(f"  v_readlane_b32 s43, v6, 63")
    A(f"  s_lshl_b32 s44, s35, 2")
    A(f"  v_mov_b32 v7, s44")
    A(f"  s_nop 0")
    A(f"  v_mov_b32 v8, s43")
    A(f"  ds_write_b32 v7, v8 offset:{K1_WT}")
    A(f"  s_waitcnt lgkmcnt(0)")
    A(f"  s_barrier")
    A(f"  ds_read_b32 v7, v17 offset:{K1_WT}")
    A(f"  s_waitcnt lgkmcnt(0)")
    A(f"  s_nop 1")
    for sh in (1, 2, 4, 8):
        A(f"  v_add_u32_dpp v7, v7, v7 row_shr:{sh} row_mask:0xf bank_mask:0xf bound_ctrl:0")
        A(f"  s_nop 1")
    A(f"  s_sub_u32 s44, s35, 1")
    A(f"  s_max_i32 s44, s44, 0")
    A(f"  v_readlane_b32 s43, v7, s44")
    A(f"  s_cmp_eq_u32 s35, 0")
    A(f"  s_cselect_b32 s43, 0, s43")
    A(f"  v_sub_u32 v6, v6, v5")
    A(f"  s_nop 1")
    A(f"  v_add_u32 v6, s43, v6")
    A(f"  ds_write_b32 v16, v6 offset:{K1_HIST}")
    A(f"  v_add_u32 v7, v6, v5")
    A(f"  v_lshrrev_b32 v8, 1, v6")
    A(f"  v_lshrrev_b32 v7, 1, v7")
    A(f"  v_lshl_or_b32 v7, v7, 16, v8")
    A(f"  s_lshl_b32 s44, s{stau}, 2")
    A(f"  buffer_store_dword v7, v18, s[24:27], s44 offen")
    A(f"  v_and_b32 v8, 1, v4")
    A(f"  v_cmp_eq_u32 vcc, 1, v8")
    A(f"  v_add_u32 v8, v6, v4")
    A(f"  v_mul_u32_u24 v8, 6, v8")
    A(f"  v_mov_b32 v9, 0")
    A(f"  s_and_saveexec_b64 s[46:47], vcc")
    A(f"  ds_write_b32 v8, v9 offset:{K1_STG - 2}")
    A(f"  s_mov_b64 exec, s[46:47]")
    A(f"  s_waitcnt lgkmcnt(0)")
    A(f"  s_barrier")
    stamp()
    def rd(c):
        for r in range(4):
            o = O + 4*c + r; rk = 4 + (c % 2) * 4 + r
            A(f"  v_and_b32 v{rk}, s39, v{o}")
            A(f"  ds_read_b32 v{rk}, v{rk} offset:{K1_HIST}")
    rd(0)
    for c in range(5):
        if c < 4:
            rd(c+1)
        A(f"  s_waitcnt lgkmcnt({4 if c < 4 else 0})")
        for r in range(4):
            k = 4*c + r; o = O + k; i = I + k; rk = 4 + (c % 2) * 4 + r
            a = An + k // 2
            A(f"  v_lshrrev_b32 v12, 12, v{o}")
            A(f"  v_add_u32 v12, v12, v{rk}")
            A(f"  v_and_b32 v13, 1, v12")
            A(f"  v_mul_u32_u24 v12, 6, v12")
            A(f"  v_mad_i32_i24 v12, v13, -2, v12")
            A(f"  v_mad_i32_i24 v13, v13, -2, v12")
            A(f"  ds_write_b32 v12, v{i} offset:{K1_STG}")
            A(f"  ds_write_b16{'_d16_hi' if k % 2 else ''} v13, v{a} offset:{K1_STG + 8}")
    A(f"  s_waitcnt lgkmcnt(0)")
    A(f"  s_barrier")
    stamp()
    A(f"  v_mov_b32 v9, 0")
    A(f"  ds_write_b32 v16, v9 offset:{K1_HIST}")
    R = O
    assert I == O + 20
    for it in range(7):
        base = "v1" if it < 3 else "v19"
        off = K1_STG + it*16384 - (0 if it < 3 else 49152)
        A(f"  ds_read_b128 v[{R+4*it}:{R+4*it+3}], {base} offset:{off}")
    A(f"  s_cmp_lt_u32 s35, 14")
    A(f"  s_cbranch_scc0 L_k1_skip7_{tag}")
    A(f"  v_add_u32 v12, 65536, v19")
    A(f"  ds_read_b128 v[{R+28}:{R+31}], v12 offset:{K1_STG + 7*16384 - 49152 - 65536}")
    A(f"L_k1_skip7_{tag}:")
    A(f"  s_mul_i32 s44, s{stau}, {TILE_BYTES}")
    A(f"  s_waitcnt lgkmcnt(0)")
    A(f"  s_barrier")
    for it in range(7):
        A(f"  buffer_store_dwordx4 v[{R+4*it}:{R+4*it+3}], v1, s[20:23], s44 offen{K1_ST}")
        A(f"  s_add_u32 s44, s44, 16384")
    A(f"  s_cmp_lt_u32 s35, 14")
    A(f"  s_cbranch_scc0 L_k1_skip7s_{tag}")
    A(f"  buffer_store_dwordx4 v[{R+28}:{R+31}], v1, s[20:23], s44 offen{K1_ST}")
    A(f"L_k1_skip7s_{tag}:")
    stamp()

K1_ST = os.environ.get("K1_ST", "")

def gen_k1():
    A(".p2align 8")
    A(".globl k1_kernel")
    A(".type k1_kernel,@function")
    A("k1_kernel:")
    A("  s_cmp_ge_u32 s2, 256")
    A("  s_cbranch_scc1 L_k1_end")
    stamp()
    rstamp(92)
    A("  s_load_dwordx4 s[4:7], s[0:1], 8")
    A("  s_load_dwordx2 s[44:45], s[0:1], 32")
    A("  s_load_dwordx2 s[46:47], s[0:1], 48")
    A("  s_load_dwordx2 s[48:49], s[0:1], 104")
    A("  s_and_b32 s3, s2, 7")
    A("  s_lshl_b32 s3, s3, 5")
    A("  s_lshr_b32 s36, s2, 3")
    A("  s_add_u32 s3, s3, s36")
    A("  s_add_u32 s36, s3, 256")
    A("  v_lshlrev_b32 v1, 4, v0")
    A("  v_lshlrev_b32 v2, 3, v0")
    A("  v_mov_b32 v3, 1")
    A("  v_lshlrev_b32 v16, 2, v0")
    A("  v_and_b32 v17, 15, v0")
    A("  v_lshlrev_b32 v17, 2, v17")
    A("  v_lshlrev_b32 v18, 11, v0")
    A("  v_add_u32 v19, 49152, v1")
    A("  v_lshrrev_b32 v4, 6, v0")
    A("  s_nop 0")
    A("  v_readfirstlane_b32 s35, v4")
    A("  s_mov_b32 s28, 3435974")
    A("  s_mov_b32 s29, -1250")
    A("  s_mov_b32 s30, 53248")
    A("  s_mov_b32 s32, 0x80000000")
    A(f"  s_mov_b32 s33, {c_hi_u:#x}")
    A(f"  s_mov_b32 s34, {c_lo_u:#x}")
    A("  s_mov_b32 s37, 0x7f000000")
    A("  s_mov_b32 s38, 0xffff0000")
    A("  s_mov_b32 s39, 0xfff")
    A("  v_mov_b32 v9, 0")
    A(f"  ds_write_b32 v16, v9 offset:{K1_HIST}")
    A("  s_waitcnt lgkmcnt(0)")
    srd(12, 4, T*4)
    srd(8, 6, T*4)
    srd(16, 44, T*2)
    srd(20, 48, NT*TILE_BYTES)
    srd(24, 48, NBIN*DESC_ROW, DESC_OFF)
    A("  s_load_dword s31, s[46:47], 0")
    k1_loads(20, 40, 60, 3)
    A("  s_waitcnt lgkmcnt(0)")
    A("  s_lshl_b32 s31, s31, 16")
    A("  s_barrier")
    k1_tile(20, 40, 60, 3, 15, "a", after_first=lambda: k1_loads(70, 90, 110, 36))
    A("  s_cmp_ge_u32 s36, 500")
    A("  s_cbranch_scc1 L_k1_end")
    A("  s_waitcnt vmcnt(8)")
    stamp()
    k1_tile(70, 90, 110, 36, None, "b")
    A("  s_waitcnt vmcnt(0)")
    stamp()
    rstamp(94)
    stamp_flush(int(WGSEL))
    A("L_k1_end:")
    A("  s_endpgm")

def desc_block(name, vg, sg=96):
    A(f".amdhsa_kernel {name}")
    A(f"  .amdhsa_next_free_vgpr {vg}")
    A(f"  .amdhsa_next_free_sgpr {sg}")
    A(f"  .amdhsa_accum_offset {vg}")
    A("  .amdhsa_group_segment_fixed_size 0")
    A("  .amdhsa_kernarg_size 112")
    A("  .amdhsa_user_sgpr_count 2")
    A("  .amdhsa_user_sgpr_kernarg_segment_ptr 1")
    A("  .amdhsa_system_sgpr_workgroup_id_x 1")
    A("  .amdhsa_float_denorm_mode_32 3")
    A(".end_amdhsa_kernel")

import os
WGSEL = os.environ.get("WGSEL", "0")
if __name__ == "__main__":
    STAMP = os.environ.get("STAMP", "0") == "1"
    which = sys.argv[1] if len(sys.argv) > 1 else "k1"
    A(f"; @launch kernel=k1_kernel grid=(256,1,1) block=(1024,1,1) lds={K1_LDS}")
    A('.amdgcn_target "amdgcn-amd-amdhsa--gfx950"')
    A(".text")
    gen_k1()
    A('.section .rodata,"a"')
    A(".p2align 6")
    desc_block("k1_kernel", 128)
    open(sys.argv[2] if len(sys.argv) > 2 else "k.s", "w").write("\n".join(out) + "\n")
```

```python
from gen import *
import gen

CAP = 128
CB = 0; WB = 40960; SEL = 122880; CNT = 135168; FLG = 136192; K2_LDS = 136448
DUMMY_X = 79 * 512
DUMMY_W = 0x00FFFFE0
OOB = 0x7FFFFF00
NGW = 12; GPW = 7

LOG2E = 1.4426950408889634

def k2_prologue():
    A(".p2align 8")
    A(".globl k2_kernel")
    A(".type k2_kernel,@function")
    A("k2_kernel:")
    A("  s_cmp_ge_u32 s2, 256")
    A("  s_cbranch_scc1 L_k2_end")
    stamp(); rstamp(92)
    A("  s_load_dwordx2 s[4:5], s[0:1], 0")
    A("  s_load_dwordx2 s[6:7], s[0:1], 104")
    A("  s_and_b32 s3, s2, 7")
    A("  s_lshl_b32 s3, s3, 5")
    A("  s_lshr_b32 s36, s2, 3")
    A("  s_add_u32 s3, s3, s36")
    A("  v_lshrrev_b32 v4, 6, v0")
    A("  v_and_b32 v1, 63, v0")
    A("  v_readfirstlane_b32 s35, v4")
    A("  v_mov_b32 v8, 0")
    A("  v_mov_b32 v9, 0")
    A("  v_mov_b32 v10, 0")
    A("  v_mov_b32 v11, 0")
    A("  v_lshlrev_b32 v5, 4, v0")
    A(f"  v_add_u32 v5, {SEL}, v5")
    A(f"  v_cmp_gt_u32 vcc, {(K2_LDS - SEL)//16}, v0")
    A("  s_and_saveexec_b64 s[40:41], vcc")
    A("  ds_write_b128 v5, v[8:11]")
    A("  s_mov_b64 exec, s[40:41]")
    A(f"  v_mov_b32 v6, {DUMMY_W:#x}")
    A("  v_lshlrev_b32 v5, 2, v0")
    A(f"  v_add_u32 v5, {DUMMY_X + WB}, v5")
    A("  v_cmp_gt_u32 vcc, 32, v0")
    A("  s_and_saveexec_b64 s[40:41], vcc")
    A("  ds_write_b32 v5, v6")
    A("  v_lshlrev_b32 v5, 1, v0")
    A(f"  ds_write_b16 v5, v8 offset:{DUMMY_X//2 + CB}")
    A("  s_mov_b64 exec, s[40:41]")
    A("  s_waitcnt lgkmcnt(0)")
    srd(8, 4, E*32)
    srd(12, 6, NT*TILE_BYTES)
    srd(16, 6, NBIN*DESC_ROW, DESC_OFF)
    A("  s_barrier")
    A("  s_cmp_ge_u32 s35, 12")
    A("  s_cbranch_scc1 L_k2_iwave")

R0 = 16
def RR(i, k): return R0 + 4*i + k

def ins_A(w, slot):
    st = slot % 2
    for r in range(2):
        A(f"  v_cmp_gt_i32 s[{44+4*st+2*r}:{45+4*st+2*r}], 0, v{w[r]}")
        A(f"  v_lshrrev_b32 v{84+2*st+r}, 22, v{w[r]}")
        A(f"  v_and_or_b32 v{84+2*st+r}, v{84+2*st+r}, s52, v92")
    for r in range(2):
        A(f"  s_mov_b64 exec, s[{44+4*st+2*r}:{45+4*st+2*r}]")
        A(f"  ds_add_rtn_u32 v{88+2*st+r}, v{84+2*st+r}, v93")
    A(f"  s_mov_b64 exec, -1")

def ins_B(w, cw, slot):
    st = slot % 2
    for r in range(2):
        ca = 84+2*st+r; rk = 88+2*st+r
        A(f"  s_mov_b64 exec, s[{44+4*st+2*r}:{45+4*st+2*r}]")
        A(f"  v_cmp_lt_u32 vcc, {CAP-1}, v{rk}")
        A(f"  v_min_u32 v{rk}, {CAP-1}, v{rk}")
        A(f"  v_lshl_add_u32 v{ca}, v{ca}, 7, s53")
        A(f"  s_or_b64 s[54:55], s[54:55], vcc")
        A(f"  v_lshl_add_u32 v{ca}, v{rk}, 2, v{ca}")
        A(f"  ds_write_b32 v{ca}, v{w[r]} offset:{WB}")
        A(f"  v_lshrrev_b32 v{rk}, 1, v{ca}")
        A(f"  ds_write_b16{'_d16_hi' if r else ''} v{rk}, v{cw}")
    A(f"  s_mov_b64 exec, -1")

def iw_issue_raw():
    for i in range(16):
        A(f"  ds_bpermute_b32 v{RR(i,0)}, v94, v80 offset:{16*i}")
    A(f"  s_mul_i32 s57, s56, {TILE_BYTES}")
    A(f"  s_waitcnt lgkmcnt(0)")
    for i in range(16):
        d = RR(i,0)
        A(f"  v_and_b32 v82, 0xffff, v{d}")
        A(f"  v_lshrrev_b32 v83, 16, v{d}")
        A(f"  v_add_u32 v82, v82, v95")
        A(f"  v_cmp_lt_u32 vcc, v82, v83")
        A(f"  v_mad_u32_u24 v82, v82, 12, v96")
        A(f"  v_cndmask_b32 v82, v97, v82, vcc")
        out.insert(len(out)-1, "  s_nop 0")
        A(f"  buffer_load_dwordx3 v[{d}:{d+2}], v82, s[12:15], s57 offen{RAW_NT}")
        if i < 15:
            A(f"  s_add_u32 s57, s57, {4*TILE_BYTES}")

def iw_desc_load(dst, c_sreg):
    A(f"  s_lshr_b32 s58, s{c_sreg}, 1")
    A(f"  s_lshl_b32 s58, s58, 8")
    A(f"  s_add_u32 s58, s58, s3")
    A(f"  s_lshl_b32 s58, s58, 9")
    A(f"  s_and_b32 s59, s{c_sreg}, 1")
    A(f"  s_mul_i32 s59, s59, 250")
    A(f"  s_add_u32 s59, s59, s60")
    A(f"  s_add_u32 s58, s58, s59")
    A(f"  s_lshl_b32 s58, s58, 2")
    A(f"  buffer_load_dword v{dst}, v98, s[16:19], s58 offen")

def iw_set_T0(c_sreg):
    A(f"  s_and_b32 s56, s{c_sreg}, 1")
    A(f"  s_mul_i32 s56, s56, 250")
    A(f"  s_add_u32 s56, s56, s60")

RAW_NT = ""

def gen_iwave():
    A("L_k2_iwave:")
    A("  s_sub_u32 s60, s35, 12")
    A("  s_lshl_b32 s60, s60, 6")
    A("  s_mov_b32 s52, 0x1fc")
    A("  s_mov_b64 s[54:55], 0")
    A(f"  v_mov_b32 v92, {CNT}")
    A("  v_mov_b32 v93, 1")
    A("  v_lshrrev_b32 v94, 4, v1")
    A(f"  v_mov_b32 v96, {TILE_BYTES}")
    A("  v_mul_lo_u32 v96, v96, v94")
    A("  v_lshlrev_b32 v94, 2, v94")
    A("  v_and_b32 v95, 15, v1")
    A(f"  v_mov_b32 v97, {OOB:#x}")
    A("  v_add_u32 v98, s60, v1")
    A("  v_cmp_gt_u32 vcc, 250, v98")
    A("  v_lshlrev_b32 v98, 2, v1")
    A("  s_nop 0")
    A("  v_cndmask_b32 v98, v97, v98, vcc")
    A("  s_mov_b32 s61, 0")
    A("  s_mov_b32 s62, 1")
    iw_desc_load(80, 61)
    iw_desc_load(81, 62)
    A("  s_waitcnt vmcnt(1)")
    iw_set_T0(61)
    iw_issue_raw()
    A("L_iw_loop:")
    A("  s_and_b32 s63, s61, 1")
    A("  s_mul_i32 s53, s63, 40960")
    A("  s_lshl_b32 s63, s63, 9")
    A(f"  s_add_u32 s63, s63, {CNT}")
    A("  v_mov_b32 v92, s63")
    A("  s_lshl_b32 s63, s63, 7")
    A("  s_sub_u32 s53, s53, s63")
    A("  s_waitcnt vmcnt(0)")
    for i in range(16):
        ins_A((RR(i,0), RR(i,1)), i)
        if i > 0:
            A("  s_waitcnt lgkmcnt(2)")
            ins_B((RR(i-1,0), RR(i-1,1)), RR(i-1,2), i-1)
    A("  s_waitcnt lgkmcnt(0)")
    ins_B((RR(15,0), RR(15,1)), RR(15,2), 15)
    A("  v_and_b32 v82, 0xffff, v80")
    A("  v_lshrrev_b32 v83, 16, v80")
    A("  v_add_u32 v82, 16, v82")
    A("  v_cmp_lt_u32 s[64:65], v82, v83")
    iw_set_T0(61)
    A("L_iw_long:")
    A("  s_cmp_eq_u64 s[64:65], 0")
    A("  s_cbranch_scc1 L_iw_long_done")
    A("  s_ff1_i32_b64 s66, s[64:65]")
    A("  s_bitset0_b64 s[64:65], s66")
    A("  v_readlane_b32 s67, v80, s66")
    A("  s_add_u32 s68, s56, s66")
    A(f"  s_mul_i32 s68, s68, {TILE_BYTES}")
    A("  s_lshr_b32 s69, s67, 16")
    A("  s_and_b32 s67, s67, 0xffff")
    A("  s_add_u32 s67, s67, 16")
    A("L_iw_long_win:")
    A("  v_add_u32 v82, s67, v1")
    A("  v_cmp_gt_u32 vcc, s69, v82")
    A("  v_mul_u32_u24 v82, 12, v82")
    A("  s_nop 0")
    A("  v_cndmask_b32 v82, v97, v82, vcc")
    A(f"  buffer_load_dwordx3 v[{RR(0,0)}:{RR(0,2)}], v82, s[12:15], s68 offen")
    A("  s_waitcnt vmcnt(0)")
    ins_A((RR(0,0), RR(0,1)), 0)
    A("  s_waitcnt lgkmcnt(0)")
    ins_B((RR(0,0), RR(0,1)), RR(0,2), 0)
    A("  s_add_u32 s67, s67, 64")
    A("  s_cmp_lt_u32 s67, s69")
    A("  s_cbranch_scc1 L_iw_long_win")
    A("  s_branch L_iw_long")
    A("L_iw_long_done:")
    A("  s_cmp_eq_u64 s[54:55], 0")
    A("  s_cbranch_scc1 L_iw_noovf")
    A(f"  v_mov_b32 v82, {FLG}")
    A("  ds_write_b32 v82, v93")
    A("L_iw_noovf:")
    A("  s_add_u32 s61, s61, 1")
    A("  s_cmp_ge_u32 s61, 8")
    A("  s_cbranch_scc1 L_iw_last")
    A("  v_mov_b32 v80, v81")
    iw_set_T0(61)
    iw_issue_raw()
    A("  s_add_u32 s62, s61, 1")
    A("  s_cmp_ge_u32 s62, 8")
    A("  s_cbranch_scc1 L_iw_nodesc")
    iw_desc_load(81, 62)
    A("L_iw_nodesc:")
    A("  s_waitcnt lgkmcnt(0)")
    A("  s_barrier")
    A("  s_branch L_iw_loop")
    A("L_iw_last:")
    A("  s_waitcnt lgkmcnt(0)")
    A("  s_barrier")
    A("  s_endpgm")

XR = lambda u: 64 + 4*u
WR = lambda u: 80 + u
CR = lambda u: 84 + u
B2 = lambda p: 88 + 4*p
ACC = lambda j: 100 + 4*j
DA, DB, A2 = 48, 52, 56
B1A, B1B = 40, 44
vLane4, vHalf16, vSelW, vSelR, vZero, vList, vG, vA, vA2, vS, vT, vDum, vL4full = 2, 3, 4, 5, 6, 7, 8, 9, 10, 11, 12, 13, 14
sM1 = 44
sT = 45; sD = 46; sLeft = 47
sNB = 48
sC = 56
sCh = 63
sBase0 = 64

def vr(b, n=4): return f"v[{b}:{b+n-1}]"

def g_body(j, u):
    A(f"L_g_{j}_{u}:")
    A(f"  s_waitcnt lgkmcnt(0)")
    A(f"  v_and_or_b32 v{vG}, v{WR((u+3)%4)}, s{sM1}, v{vHalf16}")
    A(f"  buffer_load_dwordx4 {vr(XR((u+3)%4))}, v{vG}, s[8:11], 0 offen")
    A(f"  s_waitcnt vmcnt(3)")
    A(f"  v_mfma_f32_16x16x32_bf16 {vr(DA)}, {vr(XR(u))}, {vr(B1A)}, 0")
    A(f"  v_mfma_f32_16x16x32_bf16 {vr(DB)}, {vr(XR(u))}, {vr(B1B)}, 0")
    A(f"  v_readlane_b32 s{sD}, v{vList}, s{sT}")
    A(f"  s_add_u32 s{sT}, s{sT}, 1")
    A(f"  v_and_or_b32 v{vS}, v{WR((u+1)%4)}, 30, v{vSelW}")
    A(f"  ds_write_b16 v{vS}, v{CR((u+1)%4)}")
    A(f"  v_add_u32 v{vA}, s{sD}, v{vLane4}")
    A(f"  ds_read_b64_tr_b16 {vr(B2((u+1)%2),2)}, v{vSelR}")
    A(f"  ds_read_b64_tr_b16 {vr(B2((u+1)%2)+2,2)}, v{vSelR} offset:128")
    A(f"  ds_write_b16 v{vS}, v{vZero}")
    A(f"  ds_read_b32 v{WR(u)}, v{vA} offset:{WB}")
    A(f"  v_lshrrev_b32 v{vA2}, 1, v{vA}")
    A(f"  ds_read_u16 v{CR(u)}, v{vA2}")
    A(f"  v_cvt_pk_bf16_f32 v{A2}, v{DA}, v{DA+1}")
    A(f"  v_cvt_pk_bf16_f32 v{A2+1}, v{DA+2}, v{DA+3}")
    A(f"  v_cvt_pk_bf16_f32 v{A2+2}, v{DB}, v{DB+1}")
    A(f"  v_cvt_pk_bf16_f32 v{A2+3}, v{DB+2}, v{DB+3}")
    A(f"  s_sub_u32 s{sLeft}, s{sLeft}, 1")
    A(f"  s_cmp_eq_u32 s{sLeft}, 0")
    A(f"  v_mfma_f32_16x16x32_bf16 {vr(ACC(j))}, {vr(A2)}, {vr(B2(u%2))}, {vr(ACC(j))}")
    A(f"  s_cbranch_scc1 L_gn_{j+1}_{(u+1)%4}")
    if u == 3:
        A(f"  s_branch L_g_{j}_0")

def g_next(j, u):
    A(f"L_gn_{j}_{u}:")
    if j == GPW:
        A(f"  s_branch L_g_end")
        return
    A(f"  s_mov_b32 s{sLeft}, s{sNB+j}")
    A(f"  s_cmp_eq_u32 s{sLeft}, 0")
    A(f"  s_cbranch_scc1 L_gn_{j+1}_{u}")
    A(f"  s_branch L_g_{j}_{u}")

def g_setup():
    A(f"  s_and_b32 s65, s{sCh}, 1")
    A(f"  s_lshl_b32 s66, s65, 9")
    A(f"  s_mul_i32 s67, s35, {GPW*4}")
    A(f"  s_add_u32 s66, s66, s67")
    A(f"  s_add_u32 s66, s66, {CNT}")
    A(f"  v_add_u32 v{vA}, s66, v{vL4full}")
    A(f"  ds_read_b32 v{vA2}, v{vA}")
    A(f"  s_mul_i32 s{sBase0}, s65, 40960")
    A(f"  s_mul_i32 s67, s35, {GPW*512}")
    A(f"  s_add_u32 s{sBase0}, s{sBase0}, s67")
    for u in range(4):
        A(f"  v_mov_b32 v{WR(u)}, v{vDum}")
        A(f"  v_mov_b32 v{CR(u)}, 0")
        A(f"  v_mov_b32 v{B2(0)+u}, 0")
    A(f"  s_waitcnt lgkmcnt(0)")
    A(f"  s_mov_b64 exec, 0x7f")
    A(f"  ds_write_b32 v{vA}, v{vZero}")
    A(f"  s_mov_b64 exec, -1")
    A(f"  v_min_u32 v{vA2}, {CAP}, v{vA2}")
    A(f"  s_nop 0")
    for j in range(GPW):
        A(f"  v_readlane_b32 s{sC+j}, v{vA2}, {j}")
    A(f"  s_nop 0")
    for j in range(GPW):
        A(f"  s_add_u32 s{sNB+j}, s{sC+j}, 31")
        A(f"  s_lshr_b32 s{sNB+j}, s{sNB+j}, 5")
        A(f"  s_lshl_b32 s66, s{sNB+j}, 5")
        A(f"  s_sub_u32 s66, s66, s{sC+j}")
        A(f"  s_cmp_eq_u32 s66, 0")
        A(f"  s_cbranch_scc1 L_gs_nopad{j}")
        A(f"  s_lshl_b32 s67, s{sC+j}, 2")
        A(f"  s_add_u32 s67, s67, s{sBase0}")
        A(f"  s_add_u32 s67, s67, {j*512}")
        A(f"  v_add_u32 v{vA}, s67, v{vL4full}")
        A(f"  s_bfm_b64 exec, s66, 0")
        A(f"  ds_write_b32 v{vA}, v{vDum} offset:{WB}")
        A(f"  v_lshrrev_b32 v{vA}, 1, v{vA}")
        A(f"  ds_write_b16 v{vA}, v{vZero}")
        A(f"  s_mov_b64 exec, -1")
        A(f"L_gs_nopad{j}:")
    A(f"  v_lshlrev_b32 v{vList}, 5, v{vL4full}")
    A(f"  v_add_u32 v{vList}, s{sBase0}, v{vList}")
    A(f"  s_mov_b32 s66, 0")
    for j in range(1, GPW):
        A(f"  s_add_u32 s66, s66, s{sNB+j-1}")
        A(f"  s_sub_u32 s67, s66, 1")
        A(f"  v_sub_u32 v{vA}, s67, v{vT}")
        A(f"  s_lshl_b32 s68, s{sNB+j-1}, 7")
        A(f"  s_sub_u32 s68, 512, s68")
        A(f"  v_ashrrev_i32 v{vA}, 31, v{vA}")
        A(f"  v_and_b32 v{vA}, s68, v{vA}")
        A(f"  v_add_u32 v{vList}, v{vList}, v{vA}")
    A(f"  s_add_u32 s66, s66, s{sNB+GPW-1}")
    A(f"  v_cmp_gt_u32 vcc, s66, v{vT}")
    A(f"  v_mov_b32 v{vA}, {DUMMY_X}")
    A(f"  s_nop 0")
    A(f"  v_cndmask_b32 v{vList}, v{vA}, v{vList}, vcc")
    A(f"  s_mov_b32 s{sT}, 0")
    A(f"  s_add_u32 s{sLeft}, s{sNB}, 4")
    A(f"  s_waitcnt lgkmcnt(0)")

def gen_gwave():
    A(f"  v_and_b32 v{vLane4}, 31, v1")
    A(f"  v_lshlrev_b32 v{vLane4}, 2, v{vLane4}")
    A(f"  v_lshrrev_b32 v{vHalf16}, 5, v1")
    A(f"  v_lshlrev_b32 v{vHalf16}, 4, v{vHalf16}")
    A(f"  v_mov_b32 v{vZero}, 0")
    A(f"  v_mov_b32 v{vT}, v1")
    A(f"  v_lshlrev_b32 v{vL4full}, 2, v1")
    A(f"  v_mov_b32 v{vDum}, {DUMMY_W:#x}")
    A(f"  s_mov_b32 s{sM1}, {DUMMY_W:#x}")
    A(f"  s_lshl_b32 s40, s35, 10")
    A(f"  s_add_u32 s40, s40, {SEL}")
    A(f"  v_and_b32 v16, 31, v1")
    A(f"  v_bfe_u32 v17, v16, 2, 2")
    A(f"  v_lshlrev_b32 v17, 3, v17")
    A(f"  v_lshrrev_b32 v18, 4, v16")
    A(f"  v_lshl_add_u32 v17, v18, 2, v17")
    A(f"  v_and_b32 v18, 3, v16")
    A(f"  v_add_u32 v17, v17, v18")
    A(f"  v_lshl_add_u32 v{vSelW}, v17, 5, s40")
    A(f"  v_lshrrev_b32 v17, 4, v1")
    A(f"  v_and_b32 v18, 15, v1")
    A(f"  v_lshlrev_b32 v19, 8, v17")
    A(f"  v_lshl_add_u32 v19, v18, 3, v19")
    A(f"  v_add_u32 v{vSelR}, s40, v19")
    A(f"  s_load_dwordx2 s[38:39], s[0:1], 72")
    A(f"  s_waitcnt lgkmcnt(0)")
    srd(28, 38, 512)
    A(f"  v_lshrrev_b32 v19, 1, v17")
    A(f"  v_lshlrev_b32 v19, 8, v19")
    A(f"  v_lshl_add_u32 v19, v18, 1, v19")
    for jj in range(8):
        A(f"  buffer_load_ushort v{20+jj}, v19, s[28:31], 0 offen offset:{32*jj}")
    for u in range(4):
        for k in range(4):
            A(f"  v_mov_b32 v{XR(u)+k}, 0")
    for j in range(GPW):
        for k in range(4):
            A(f"  v_mov_b32 v{ACC(j)+k}, 0")
    A(f"  s_waitcnt vmcnt(0)")
    for k in range(4):
        A(f"  v_lshl_or_b32 v{20+k}, v{21+2*k}, 16, v{20+2*k}")
    A(f"  v_and_b32 v17, 1, v17")
    A(f"  v_cmp_eq_u32 vcc, 0, v17")
    A(f"  s_nop 1")
    for k in range(4):
        A(f"  v_cndmask_b32 v{B1A+k}, v{vZero}, v{20+k}, vcc")
        A(f"  v_cndmask_b32 v{B1B+k}, v{20+k}, v{vZero}, vcc")
    A(f"  s_mov_b32 s{sCh}, 0")
    A("L_g_top:")
    A("  s_barrier")
    stamp()
    g_setup()
    for j in range(GPW):
        for u in range(4):
            g_body(j, u)
    for j in range(1, GPW+1):
        for u in range(4):
            g_next(j, u)
    A("L_g_end:")
    A(f"  s_add_u32 s{sCh}, s{sCh}, 1")
    A(f"  s_cmp_lt_u32 s{sCh}, 8")
    A("  s_cbranch_scc1 L_g_top")
    stamp()

def gen_epilogue():
    A("  s_load_dwordx2 s[36:37], s[0:1], 24")
    A("  s_load_dwordx2 s[38:39], s[0:1], 40")
    A("  s_load_dwordx4 s[40:43], s[0:1], 56")
    A("  s_load_dwordx4 s[44:47], s[0:1], 80")
    A("  s_waitcnt lgkmcnt(0)")
    srd(12, 36, E*2)
    srd(16, 46, E*32)
    srd(20, 38, 16)
    srd(24, 40, 256)
    srd(28, 42, 256)
    srd(48, 44, 512)
    A("  v_and_b32 v16, 15, v1")
    A("  v_lshrrev_b32 v17, 4, v1")
    A("  v_lshlrev_b32 v18, 6, v17")
    A("  v_lshl_add_u32 v18, v16, 1, v18")
    A("  buffer_load_ushort v20, v18, s[28:31], 0 offen")
    A("  buffer_load_ushort v21, v18, s[28:31], 0 offen offset:32")
    A("  buffer_load_ushort v22, v18, s[24:27], 0 offen")
    A("  buffer_load_ushort v23, v18, s[24:27], 0 offen offset:32")
    A("  v_lshlrev_b32 v19, 7, v17")
    A("  v_lshl_add_u32 v19, v16, 1, v19")
    for k in range(4):
        A(f"  buffer_load_ushort v{24+k}, v19, s[48:51], 0 offen offset:{32*k}")
    A("  v_lshlrev_b32 v19, 2, v17")
    A("  buffer_load_ushort v28, v19, s[20:23], 0 offen")
    A("  buffer_load_ushort v29, v19, s[20:23], 0 offen offset:2")
    A(f"  s_mul_i32 s52, s35, {GPW*16}")
    A("  v_add_u32 v30, s52, v16")
    A("  s_mul_i32 s53, s3, 1250")
    for j in range(GPW):
        A(f"  v_add_u32 v31, s53, v30")
        if j:
            A(f"  v_add_u32 v31, {16*j}, v31")
        A(f"  v_lshlrev_b32 v32, 1, v31")
        A(f"  buffer_load_ushort v{64+j}, v32, s[12:15], 0 offen")
        A(f"  v_lshlrev_b32 v32, 5, v31")
        A(f"  v_lshl_add_u32 v32, v17, 3, v32")
        A(f"  buffer_load_dwordx2 v[{72+2*j}:{73+2*j}], v32, s[8:11], 0 offen")
    A("  s_waitcnt vmcnt(14)")
    A("  v_lshl_or_b32 v32, v21, 16, v20")
    A("  v_lshl_or_b32 v36, v23, 16, v22")
    A("  v_lshl_or_b32 v40, v25, 16, v24")
    A("  v_lshl_or_b32 v41, v27, 16, v26")
    A("  v_mov_b32 v42, v40")
    A("  v_mov_b32 v43, v41")
    for r in (33, 34, 35, 37, 38, 39, 45, 46, 47):
        A(f"  v_mov_b32 v{r}, 0")
    A("  v_lshlrev_b32 v28, 16, v28")
    A("  v_lshlrev_b32 v29, 16, v29")
    A("  s_mov_b32 s54, 0xffff0000")
    A(f"  s_mov_b32 s55, {f2u(-10.0):#x}")
    A(f"  s_mov_b32 s56, {f2u(LOG2E):#x}")
    A(f"  v_mov_b32 v31, {OOB:#x}")
    A("  s_waitcnt vmcnt(0)")
    for j in range(GPW):
        acc = ACC(j)
        A(f"  v_lshlrev_b32 v48, 16, v{64+j}")
        A(f"  v_sub_f32 v49, v48, v28")
        A(f"  v_sub_f32 v50, v48, v29")
        A(f"  v_cvt_pk_bf16_f32 v51, v49, v50")
        A(f"  v_lshlrev_b32 v49, 16, v51")
        A(f"  v_and_b32 v50, s54, v51")
        A(f"  v_mul_f32 v49, v49, v49")
        A(f"  v_mul_f32 v50, v50, v50")
        A(f"  v_cvt_pk_bf16_f32 v51, v49, v50")
        A(f"  v_lshlrev_b32 v49, 16, v51")
        A(f"  v_and_b32 v50, s54, v51")
        A(f"  v_mul_f32 v49, s55, v49")
        A(f"  v_mul_f32 v50, s55, v50")
        A(f"  v_cvt_pk_bf16_f32 v51, v49, v50")
        A(f"  v_lshlrev_b32 v49, 16, v51")
        A(f"  v_and_b32 v50, s54, v51")
        A(f"  v_mul_f32 v49, s56, v49")
        A(f"  v_mul_f32 v50, s56, v50")
        A(f"  v_exp_f32 v49, v49")
        A(f"  v_exp_f32 v50, v50")
        A(f"  s_nop 0")
        A(f"  v_cvt_pk_bf16_f32 v44, v49, v50")
        A(f"  s_nop 1")
        A(f"  v_mfma_f32_16x16x32_bf16 v[48:51], v[32:35], v[44:47], 0")
        A(f"  v_mfma_f32_16x16x32_bf16 v[52:55], v[36:39], v[44:47], 0")
        A(f"  s_nop 7")
        for k in range(4):
            A(f"  v_mul_f32 v{56+k}, v{acc+k}, v{48+k}")
        A(f"  v_cvt_pk_bf16_f32 v60, v56, v57")
        A(f"  v_cvt_pk_bf16_f32 v61, v58, v59")
        A(f"  v_lshlrev_b32 v48, 16, v60")
        A(f"  v_and_b32 v49, s54, v60")
        A(f"  v_lshlrev_b32 v50, 16, v61")
        A(f"  v_and_b32 v51, s54, v61")
        for k in range(4):
            A(f"  v_sub_f32 v{56+k}, v{56+k}, v{48+k}")
        A(f"  v_cvt_pk_bf16_f32 v62, v56, v57")
        A(f"  v_cvt_pk_bf16_f32 v63, v58, v59")
        A(f"  v_cvt_pk_bf16_f32 v48, v52, v53")
        A(f"  v_cvt_pk_bf16_f32 v49, v54, v55")
        A(f"  v_mfma_f32_16x16x32_bf16 v[56:59], v[40:43], v[60:63], 0")
        A(f"  v_lshlrev_b32 v52, 16, v48")
        A(f"  v_and_b32 v53, s54, v48")
        A(f"  v_lshlrev_b32 v54, 16, v49")
        A(f"  v_and_b32 v55, s54, v49")
        A(f"  v_lshlrev_b32 v48, 16, v{72+2*j}")
        A(f"  v_and_b32 v49, s54, v{72+2*j}")
        A(f"  v_lshlrev_b32 v50, 16, v{73+2*j}")
        A(f"  v_and_b32 v51, s54, v{73+2*j}")
        A(f"  v_add_u32 v60, {16*j}, v30")
        A(f"  s_movk_i32 s57, 1250")
        A(f"  v_cmp_gt_u32 vcc, s57, v60")
        A(f"  v_add_u32 v60, s53, v60")
        A(f"  v_lshlrev_b32 v60, 5, v60")
        A(f"  v_lshl_add_u32 v60, v17, 3, v60")
        A(f"  v_cndmask_b32 v60, v31, v60, vcc")
        A(f"  s_nop 1")
        for k in range(4):
            A(f"  v_fma_f32 v{48+k}, v{56+k}, v{52+k}, v{48+k}")
        A(f"  v_cvt_pk_bf16_f32 v62, v48, v49")
        A(f"  v_cvt_pk_bf16_f32 v63, v50, v51")
        A(f"  buffer_store_dwordx2 v[62:63], v60, s[16:19], 0 offen")
        A(f"  s_nop 1")

def gen_k2():
    k2_prologue()
    gen_gwave()
    gen_epilogue()
    A("  s_waitcnt vmcnt(0)")
    stamp(); rstamp(94)
    gen.stamp_flush(int(gen.WGSEL))
    A("L_k2_end:")
    A("  s_endpgm")
    gen_iwave()

if __name__ == "__main__":
    import os
    st = os.environ.get("STAMP", "0")
    A(f"; @launch kernel=k1_kernel grid=(256,1,1) block=(1024,1,1) lds={gen.K1_LDS}")
    A(f"; @launch kernel=k2_kernel grid=(256,1,1) block=(1024,1,1) lds={K2_LDS}")
    A('.amdgcn_target "amdgcn-amd-amdhsa--gfx950"')
    A(".text")
    gen.STAMP = False
    gen_k1()
    gen.STAMP = (st == "1")
    gen.stamp_idx[0] = 0
    gen_k2()
    A('.section .rodata,"a"')
    A(".p2align 6")
    desc_block("k1_kernel", 128)
    A(".p2align 6")
    desc_block("k2_kernel", 128)
    lines = [l for l in out if l is not None]
    open(sys.argv[1], "w").write("\n".join(lines) + "\n")
```

```python
from gen import *
import gen, os

CAP = 128
BS = 516
PB = 80 * BS
CB = 0; WB = PB
SEL = 123904
CNT = SEL + 12288
FLG = CNT + 1024
K2_LDS = FLG + 256
assert SEL >= 3*PB and SEL % 1024 == 0 and CNT % 512 == 0
DUMMY_X = 79 * BS
DUMMY_W = 0x00FFFFE0
OOB = 0x7FFFFF00
NGW = 12; GPW = 7

LOG2E = 1.4426950408889634

def k2_prologue():
    A(".p2align 8")
    A(".globl k2_kernel")
    A(".type k2_kernel,@function")
    A("k2_kernel:")
    A("  s_cmp_ge_u32 s2, 256")
    A("  s_cbranch_scc1 L_k2_end")
    if gen.STAMP:
        A("  s_memtime s[90:91]")
        A("  s_memrealtime s[92:93]")
        A("  s_waitcnt lgkmcnt(0)")
        A("  v_mov_b32 v15, 0")
    A("  s_load_dwordx2 s[4:5], s[0:1], 0")
    A("  s_load_dwordx2 s[6:7], s[0:1], 104")
    A("  s_and_b32 s3, s2, 7")
    A("  s_lshl_b32 s3, s3, 5")
    A("  s_lshr_b32 s36, s2, 3")
    A("  s_add_u32 s3, s3, s36")
    A("  v_lshrrev_b32 v4, 6, v0")
    A("  v_and_b32 v1, 63, v0")
    A("  v_readfirstlane_b32 s35, v4")
    A("  v_mov_b32 v8, 0")
    A("  v_mov_b32 v9, 0")
    A("  v_mov_b32 v10, 0")
    A("  v_mov_b32 v11, 0")
    A("  v_lshlrev_b32 v5, 4, v0")
    A(f"  v_add_u32 v5, {SEL}, v5")
    A(f"  v_cmp_gt_u32 vcc, {(K2_LDS - SEL)//16}, v0")
    A("  s_and_saveexec_b64 s[40:41], vcc")
    A("  ds_write_b128 v5, v[8:11]")
    A("  s_mov_b64 exec, s[40:41]")
    A(f"  v_mov_b32 v6, {DUMMY_W:#x}")
    A("  v_lshlrev_b32 v5, 2, v0")
    A(f"  v_add_u32 v5, {DUMMY_X + WB}, v5")
    A("  v_cmp_gt_u32 vcc, 32, v0")
    A("  s_and_saveexec_b64 s[40:41], vcc")
    A("  ds_write_b32 v5, v6")
    A("  v_lshlrev_b32 v5, 1, v0")
    A(f"  ds_write_b16 v5, v8 offset:{DUMMY_X//2 + CB}")
    A("  s_mov_b64 exec, s[40:41]")
    A("  s_waitcnt lgkmcnt(0)")
    srd(8, 4, E*32)
    srd(12, 6, NT*TILE_BYTES)
    srd(16, 6, NBIN*DESC_ROW, DESC_OFF)
    A("  s_cmp_ge_u32 s35, 12")
    A("  s_cbranch_scc1 L_k2_iwave")

R0 = 16
def RR(i, k): return R0 + 4*i + k
NSET = 4
def CA(st, r): return 80 + 2*st + r
def RK(st, r): return 88 + 2*st + r
def MK(st, r): return 64 + 4*st + 2*r
vCntB, vOne, vPerm, vL15, vTileJ, vOOB, vDescOff, vDesc, vDescN, vT0, vT1, vK129, vFlag = 96, 97, 98, 99, 100, 101, 102, 103, 104, 105, 106, 108, 109

def ins_A(w, st):
    for r in range(2):
        A(f"  v_cmp_gt_i32 s[{MK(st,r)}:{MK(st,r)+1}], 0, v{w[r]}")
        A(f"  v_lshrrev_b32 v{CA(st,r)}, 22, v{w[r]}")
        A(f"  v_and_or_b32 v{CA(st,r)}, v{CA(st,r)}, s52, v{vCntB}")
    for r in range(2):
        A(f"  s_mov_b64 exec, s[{MK(st,r)}:{MK(st,r)+1}]")
        A(f"  ds_add_rtn_u32 v{RK(st,r)}, v{CA(st,r)}, v{vOne}")
    A(f"  s_mov_b64 exec, -1")

def ins_B(w, cw, st):
    for r in range(2):
        ca = CA(st,r); rk = RK(st,r)
        A(f"  s_mov_b64 exec, s[{MK(st,r)}:{MK(st,r)+1}]")
        A(f"  v_cmp_lt_u32 vcc, {CAP-1}, v{rk}")
        A(f"  v_min_u32 v{rk}, {CAP-1}, v{rk}")
        A(f"  v_mad_u32_u24 v{ca}, v{ca}, v{vK129}, s53")
        A(f"  s_or_b64 s[54:55], s[54:55], vcc")
        A(f"  v_lshl_add_u32 v{ca}, v{rk}, 2, v{ca}")
        A(f"  ds_write_b32 v{ca}, v{w[r]} offset:{WB}")
        A(f"  v_lshrrev_b32 v{rk}, 1, v{ca}")
        A(f"  ds_write_b16{'_d16_hi' if r else ''} v{rk}, v{cw}")
    A(f"  s_mov_b64 exec, -1")

def ins_half(h):
    ops = []
    def emitA(i):
        ins_A((RR(8*h+i,0), RR(8*h+i,1)), i % NSET); ops.extend([('a', i)]*2)
    def emitB(i):
        last = max(k for k, o in enumerate(ops) if o == ('a', i))
        younger = len(ops) - 1 - last
        A(f"  s_waitcnt lgkmcnt({min(younger, 15)})")
        ins_B((RR(8*h+i,0), RR(8*h+i,1)), RR(8*h+i,2), i % NSET); ops.extend([('w', i)]*4)
    for i in range(NSET): emitA(i)
    for i in range(8):
        emitB(i)
        if i + NSET < 8: emitA(i + NSET)

def iw_issue_raw(h, desc):
    for i in range(8*h, 8*h+8):
        A(f"  ds_bpermute_b32 v{RR(i,0)}, v{vPerm}, v{desc} offset:{16*i}")
    A(f"  s_add_u32 s57, s56, {8*h*4*TILE_BYTES}")
    for n, i in enumerate(range(8*h, 8*h+8)):
        d = RR(i,0)
        A(f"  s_waitcnt lgkmcnt({7-n})")
        A(f"  v_and_b32 v{vT0}, 0xffff, v{d}")
        A(f"  v_lshrrev_b32 v{vT1}, 16, v{d}")
        A(f"  v_add_u32 v{vT0}, v{vT0}, v{vL15}")
        A(f"  v_cmp_lt_u32 vcc, v{vT0}, v{vT1}")
        A(f"  v_mad_u32_u24 v{vT0}, v{vT0}, 12, v{vTileJ}")
        A(f"  s_nop 0")
        A(f"  v_cndmask_b32 v{vT0}, v{vOOB}, v{vT0}, vcc")
        A(f"  buffer_load_dwordx3 v[{d}:{d+2}], v{vT0}, s[12:15], s57 offen{RAW_NT}")
        if n < 7:
            A(f"  s_add_u32 s57, s57, {4*TILE_BYTES}")

def iw_desc_load(dst, c_sreg):
    A(f"  s_lshr_b32 s58, s{c_sreg}, 1")
    A(f"  s_lshl_b32 s58, s58, 8")
    A(f"  s_add_u32 s58, s58, s3")
    A(f"  s_lshl_b32 s58, s58, 9")
    A(f"  s_and_b32 s59, s{c_sreg}, 1")
    A(f"  s_mul_i32 s59, s59, 250")
    A(f"  s_add_u32 s59, s59, s60")
    A(f"  s_add_u32 s58, s58, s59")
    A(f"  s_lshl_b32 s58, s58, 2")
    A(f"  buffer_load_dword v{dst}, v{vDescOff}, s[16:19], s58 offen")

def iw_T0(dst, c_sreg):
    A(f"  s_and_b32 s{dst}, s{c_sreg}, 1")
    A(f"  s_mul_i32 s{dst}, s{dst}, 250")
    A(f"  s_add_u32 s{dst}, s{dst}, s60")

RAW_NT = os.environ.get("RAW_NT", "")

def istamp(k):
    if not gen.STAMP: return
    A(f"  s_memtime s[92:93]")
    A(f"  s_waitcnt lgkmcnt(0)")
    A(f"  s_sub_u32 s92, s92, s90")
    A(f"  s_lshl_b32 s93, s61, 3")
    A(f"  s_add_u32 s93, s93, {k}")
    A(f"  s_mov_b32 m0, s93")
    A(f"  v_writelane_b32 v107, s92, m0")

def gen_iwave():
    A("L_k2_iwave:")
    if os.environ.get("IPRIO", "3") != "0": A(f"  s_setprio {os.environ.get('IPRIO', '3')}")
    if gen.STAMP: A("  v_mov_b32 v107, 0")
    A("  s_sub_u32 s60, s35, 12")
    A("  s_lshl_b32 s60, s60, 6")
    A("  s_mov_b32 s52, 0x1fc")
    A("  s_mov_b64 s[54:55], 0")
    A(f"  v_mov_b32 v{vOne}, 1")
    A(f"  v_mov_b32 v{vK129}, {BS//4}")
    A(f"  v_lshrrev_b32 v{vPerm}, 4, v1")
    A(f"  v_mov_b32 v{vTileJ}, {TILE_BYTES}")
    A(f"  v_mul_lo_u32 v{vTileJ}, v{vTileJ}, v{vPerm}")
    A(f"  v_lshlrev_b32 v{vPerm}, 2, v{vPerm}")
    A(f"  v_and_b32 v{vL15}, 15, v1")
    A(f"  v_mov_b32 v{vOOB}, {OOB:#x}")
    A(f"  v_add_u32 v{vDescOff}, s60, v1")
    A(f"  v_cmp_gt_u32 vcc, 250, v{vDescOff}")
    A(f"  v_lshlrev_b32 v{vDescOff}, 2, v1")
    A(f"  s_nop 0")
    A(f"  v_cndmask_b32 v{vDescOff}, v{vOOB}, v{vDescOff}, vcc")
    A("  s_mov_b32 s61, 0")
    A("  s_mov_b32 s62, 1")
    iw_desc_load(vDesc, 61)
    iw_desc_load(vDescN, 62)
    A(f"  v_mov_b32 v{vFlag}, {FLG}")
    A("  s_barrier")
    A("  s_waitcnt vmcnt(1)")
    iw_T0(56, 61)
    A(f"  s_mul_i32 s56, s56, {TILE_BYTES}")
    iw_issue_raw(0, vDesc)
    iw_issue_raw(1, vDesc)
    A("L_iw_loop:")
    A("  s_and_b32 s63, s61, 1")
    A(f"  s_mul_i32 s53, s63, {PB}")
    A("  s_lshl_b32 s63, s63, 9")
    A(f"  s_add_u32 s63, s63, {CNT}")
    A(f"  v_mov_b32 v{vCntB}, s63")
    A(f"  s_mul_i32 s63, s63, {BS//4}")
    A("  s_sub_u32 s53, s53, s63")
    A("  s_add_u32 s62, s61, 1")
    iw_T0(56, 62)
    A(f"  s_mul_i32 s56, s56, {TILE_BYTES}")
    istamp(0)
    A("  s_lshr_b32 s87, s61, 1")
    A("  s_mul_i32 s87, s87, 12")
    A("  s_and_b32 s88, s61, 1")
    A("  s_lshl_b32 s88, s88, 2")
    A(f"  v_add_u32 v{vT1}, s88, v{vFlag}")
    A("L_iw_poll:")
    A(f"  ds_read_b32 v{vT0}, v{vT1} offset:12")
    A("  s_waitcnt lgkmcnt(0)")
    A(f"  v_readfirstlane_b32 s88, v{vT0}")
    A("  s_nop 3")
    A("  s_cmp_ge_u32 s88, s87")
    A("  s_cbranch_scc1 L_iw_go")
    A("  s_sleep 4")
    A("  s_branch L_iw_poll")
    A("L_iw_go:")
    A("  s_waitcnt vmcnt(8)")
    istamp(1)
    ins_half(0)
    istamp(2)
    A("  s_waitcnt vmcnt(0)")
    istamp(3)
    A("  s_cmp_ge_u32 s62, 8")
    A("  s_cbranch_scc1 L_iw_skip0")
    iw_issue_raw(0, vDescN)
    A("L_iw_skip0:")
    istamp(4)
    ins_half(1)
    istamp(5)
    A(f"  v_and_b32 v{vT0}, 0xffff, v{vDesc}")
    A(f"  v_lshrrev_b32 v{vT1}, 16, v{vDesc}")
    A(f"  v_add_u32 v{vT0}, 16, v{vT0}")
    A(f"  v_cmp_lt_u32 s[80:81], v{vT0}, v{vT1}")
    iw_T0(86, 61)
    A("L_iw_long:")
    A("  s_cmp_eq_u64 s[80:81], 0")
    A("  s_cbranch_scc1 L_iw_long_done")
    A("  s_ff1_i32_b64 s82, s[80:81]")
    A("  s_bitset0_b64 s[80:81], s82")
    A(f"  v_readlane_b32 s83, v{vDesc}, s82")
    A("  s_add_u32 s84, s86, s82")
    A(f"  s_mul_i32 s84, s84, {TILE_BYTES}")
    A("  s_lshr_b32 s85, s83, 16")
    A("  s_and_b32 s83, s83, 0xffff")
    A("  s_add_u32 s83, s83, 16")
    A("L_iw_long_win:")
    A(f"  v_add_u32 v{vT0}, s83, v1")
    A(f"  v_cmp_gt_u32 vcc, s85, v{vT0}")
    A(f"  v_mul_u32_u24 v{vT0}, 12, v{vT0}")
    A("  s_nop 0")
    A(f"  v_cndmask_b32 v{vT0}, v{vOOB}, v{vT0}, vcc")
    L = RR(8,0)
    A(f"  buffer_load_dwordx3 v[{L}:{L+2}], v{vT0}, s[12:15], s84 offen")
    A("  s_waitcnt vmcnt(0)")
    ins_A((L, L+1), 0)
    A("  s_waitcnt lgkmcnt(0)")
    ins_B((L, L+1), L+2, 0)
    A("  s_add_u32 s83, s83, 64")
    A("  s_cmp_lt_u32 s83, s85")
    A("  s_cbranch_scc1 L_iw_long_win")
    A("  s_branch L_iw_long")
    A("L_iw_long_done:")
    A("  s_cmp_eq_u64 s[54:55], 0")
    A("  s_cbranch_scc1 L_iw_noovf")
    A(f"  v_mov_b32 v{vT0}, {FLG}")
    A(f"  ds_write_b32 v{vT0}, v{vOne}")
    A("L_iw_noovf:")
    A("  s_and_b32 s88, s61, 1")
    A("  s_lshl_b32 s88, s88, 2")
    A(f"  v_add_u32 v{vT1}, s88, v{vFlag}")
    A("  s_waitcnt lgkmcnt(0)")
    A("  s_mov_b64 exec, 1")
    A(f"  ds_add_u32 v{vT1}, v{vOne} offset:4")
    A("  s_mov_b64 exec, -1")
    A("  s_cmp_ge_u32 s62, 8")
    A("  s_cbranch_scc1 L_iw_last")
    iw_issue_raw(1, vDescN)
    A(f"  v_mov_b32 v{vDesc}, v{vDescN}")
    A("  s_add_u32 s61, s61, 1")
    A("  s_add_u32 s62, s61, 1")
    A("  s_cmp_ge_u32 s62, 8")
    A("  s_cbranch_scc1 L_iw_loop")
    iw_desc_load(vDescN, 62)
    A("  s_branch L_iw_loop")
    A("L_iw_last:")
    A("  s_waitcnt lgkmcnt(0)")
    if gen.STAMP and os.environ.get("ISTAMP"):
        A(f"  s_cmp_lg_u32 s2, {int(gen.WGSEL)}")
        A(f"  s_cbranch_scc1 L_nostamp2")
        A(f"  s_cmp_lg_u32 s35, {int(os.environ['ISTAMP'])}")
        A(f"  s_cbranch_scc1 L_nostamp2")
        A(f"  s_load_dwordx2 s[44:45], s[0:1], 96")
        A(f"  s_waitcnt lgkmcnt(0)")
        srd(48, 44, 256)
        A(f"  v_lshlrev_b32 v4, 2, v1")
        A(f"  buffer_store_dword v107, v4, s[48:51], 0 offen")
        A(f"  s_waitcnt vmcnt(0)")
        A(f"L_nostamp2:")
    A("  s_endpgm")

D = int(os.environ.get("GD", "5")); U = D + 1; LEAD = D + 2; MINT = D + 3
assert U % 3 == 0
XR = lambda u: 40 + 4*(u % U)
WR = lambda u: 64 + (u % U)
CR = lambda u: 70 + (u % U)
B2 = lambda p: 76 + 4*(p % 3)
DA, DB, A2 = 88, 92, 96
ACC = lambda j: 100 + 4*j
B1A, B1B = 32, 36
vLane4, vHalf16, vSelW, vSelR, vZero, vList, vG, vA, vA2, vS, vT, vDum, vL4full, vFl, vOne1 = 2, 3, 4, 5, 6, 7, 8, 9, 10, 11, 12, 13, 14, 16, 17
sM1 = 44
sT = 45; sD = 46; sLeft = 47
sNB = 48
sTot = 55
sC = 56
sCI = 63
sBase0 = 64
sNBn = 72
sCC = 79
sLo = 80

EXP = os.environ.get("EXP", "")
def vr(b, n=4): return f"v[{b}:{b+n-1}]"

def g_body(j, u):
    X = set(EXP.split(","))
    A(f"L_g_{j}_{u}:")
    if "nolds" not in X:
        A(f"  s_waitcnt lgkmcnt({6 if 'nosel' not in X else 2})")
    A(f"  v_and_or_b32 v{vG}, v{WR(u+D)}, s{sM1}, v{vHalf16}")
    if "noload" not in X:
        A(f"  buffer_load_dwordx4 {vr(XR(u+D))}, v{vG}, s[8:11], 0 offen")
        A(f"  s_waitcnt vmcnt({D})")
    if "nomfma" not in X:
        A(f"  v_mfma_f32_16x16x32_bf16 {vr(DA)}, {vr(XR(u))}, {vr(B1A)}, 0")
        A(f"  v_mfma_f32_16x16x32_bf16 {vr(DB)}, {vr(XR(u))}, {vr(B1B)}, 0")
    A(f"  v_readlane_b32 s{sD}, v{vList}, s{sT}")
    A(f"  s_add_u32 s{sT}, s{sT}, 1")
    A(f"  s_sub_u32 s{sLeft}, s{sLeft}, 1")
    A(f"  v_add_u32 v{vA}, s{sD}, v{vLane4}")
    if "nolds" not in X:
        A(f"  ds_read_b32 v{WR(u+D+2)}, v{vA} offset:{WB}")
    A(f"  v_lshrrev_b32 v{vA2}, 1, v{vA}")
    if "noexec" not in X:
        A(f"  s_mov_b64 exec, s[{sLo}:{sLo+1}]")
    if "nolds" not in X:
        A(f"  ds_read_u16 v{CR(u+D+2)}, v{vA2}")
    if "nolds" not in X and "nosel" not in X:
        A(f"  ds_write_b16 v{vS}, v{vZero}")
    A(f"  v_and_or_b32 v{vS}, v{WR(u+2)}, 30, v{vSelW}")
    if "nolds" not in X and "nosel" not in X:
        A(f"  ds_write_b16 v{vS}, v{CR(u+2)}")
    if "noexec" not in X:
        A(f"  s_mov_b64 exec, -1")
    if "nolds" not in X and "nosel" not in X:
        A(f"  ds_read_b64_tr_b16 {vr(B2(u+2),2)}, v{vSelR}")
        A(f"  ds_read_b64_tr_b16 {vr(B2(u+2)+2,2)}, v{vSelR} offset:512")
    if "nocvt" not in X:
        A(f"  v_cvt_pk_bf16_f32 v{A2}, v{DA}, v{DA+1}")
        A(f"  v_cvt_pk_bf16_f32 v{A2+1}, v{DA+2}, v{DA+3}")
        A(f"  v_cvt_pk_bf16_f32 v{A2+2}, v{DB}, v{DB+1}")
        A(f"  v_cvt_pk_bf16_f32 v{A2+3}, v{DB+2}, v{DB+3}")
    A(f"  s_cmp_eq_u32 s{sT}, s{sTot}")
    A(f"  s_nop 0")
    if "nomfma" not in X:
        A(f"  v_mfma_f32_16x16x32_bf16 {vr(ACC(j))}, {vr(A2)}, {vr(B2(u))}, {vr(ACC(j))}")
    A(f"  s_cbranch_scc1 L_gc_{j}_{u}")
    A(f"L_gb_{j}_{u}:")
    A(f"  s_cmp_eq_u32 s{sLeft}, 0")
    A(f"  s_cbranch_scc1 L_gn_{j+1}_{(u+1)%U}")
    if u == U-1:
        A(f"  s_branch L_g_{j}_0")

def g_callstub(j, u):
    A(f"L_gc_{j}_{u}:")
    A(f"  s_call_b64 s[30:31], L_setup")
    A(f"  s_branch L_gb_{j}_{u}")

def g_next(j, u):
    A(f"L_gn_{j}_{u}:")
    if j == GPW:
        A(f"  s_add_u32 s{sCC}, s{sCC}, 1")
        dstamp_cc()
        A(f"  s_cmp_eq_u32 s{sCC}, 8")
        A(f"  s_cbranch_scc1 L_g_end")
        for k in range(GPW):
            A(f"  s_mov_b32 s{sNB+k}, s{sNBn+k}")
        A(f"  s_branch L_gn_0_{u}")
        return
    A(f"  s_mov_b32 s{sLeft}, s{sNB+j}")
    pr = os.environ.get("GPRIO", "")
    if pr == "rot": A(f"  s_setprio {j % 3}")
    if pr == "rot2": A(f"  s_setprio {(j*2+u) % 3}")
    if pr == "dec": A(f"  s_setprio {2 if j < 2 else (1 if j < 5 else 0)}")
    if pr == "inc": A(f"  s_setprio {0 if j < 2 else (1 if j < 5 else 2)}")
    A(f"  s_cmp_eq_u32 s{sLeft}, 0")
    A(f"  s_cbranch_scc1 L_gn_{j+1}_{u}")
    A(f"  s_branch L_g_{j}_{u}")

def dstamp_cc():
    if not gen.STAMP: return
    A(f"  s_memtime s[84:85]")
    A(f"  s_waitcnt lgkmcnt(0)")
    A(f"  s_sub_u32 s84, s84, s90")
    A(f"  s_mov_b32 m0, s{sCC}")
    A(f"  v_writelane_b32 v15, s84, m0")

def g_setup():
    A("L_setup:")
    A(f"  s_waitcnt lgkmcnt(0)")
    if gen.STAMP:
        A(f"  s_memtime s[84:85]")
        A(f"  s_waitcnt lgkmcnt(0)")
        A(f"  s_sub_u32 s84, s84, s90")
        A(f"  s_add_u32 s86, s{sCI}, 17")
        A(f"  s_mov_b32 m0, s86")
        A(f"  v_writelane_b32 v15, s84, m0")
    A(f"  s_cmp_lt_i32 s{sCI}, 0")
    A(f"  s_cbranch_scc1 L_su_nosig")
    A(f"  s_and_b32 s65, s{sCI}, 1")
    A(f"  s_lshl_b32 s65, s65, 2")
    A(f"  v_add_u32 v{vA}, s65, v{vFl}")
    A(f"  s_mov_b64 exec, 1")
    A(f"  ds_add_u32 v{vA}, v{vOne1} offset:12")
    A(f"  s_mov_b64 exec, -1")
    A("L_su_nosig:")
    A(f"  s_add_u32 s{sCI}, s{sCI}, 1")
    A(f"  s_cmp_lt_u32 s{sCI}, 8")
    A(f"  s_cbranch_scc1 L_su_real")
    A(f"  v_mov_b32 v{vList}, {DUMMY_X}")
    A(f"  s_mov_b32 s{sTot}, 0x7fffffff")
    A(f"  s_mov_b32 s{sT}, 0")
    A(f"  s_setpc_b64 s[30:31]")
    A("L_su_real:")
    A(f"  s_and_b32 s65, s{sCI}, 1")
    A(f"  s_lshl_b32 s66, s65, 2")
    A(f"  v_add_u32 v{vA}, s66, v{vFl}")
    A(f"  s_lshr_b32 s67, s{sCI}, 1")
    A(f"  s_lshl_b32 s67, s67, 2")
    A(f"  s_add_u32 s67, s67, 4")
    A("L_su_poll:")
    A(f"  ds_read_b32 v{vA2}, v{vA} offset:4")
    A(f"  s_waitcnt lgkmcnt(0)")
    A(f"  v_readfirstlane_b32 s66, v{vA2}")
    A(f"  s_nop 3")
    A(f"  s_cmp_ge_u32 s66, s67")
    A(f"  s_cbranch_scc1 L_su_go")
    A(f"  s_sleep 2")
    A(f"  s_branch L_su_poll")
    A("L_su_go:")
    A(f"  s_lshl_b32 s66, s65, 9")
    A(f"  s_mul_i32 s67, s35, {GPW*4}")
    A(f"  s_add_u32 s66, s66, s67")
    A(f"  s_add_u32 s66, s66, {CNT}")
    A(f"  v_add_u32 v{vA}, s66, v{vL4full}")
    A(f"  ds_read_b32 v{vA2}, v{vA}")
    A(f"  s_mul_i32 s{sBase0}, s65, {PB}")
    A(f"  s_mul_i32 s67, s35, {GPW*BS}")
    A(f"  s_add_u32 s{sBase0}, s{sBase0}, s67")
    A(f"  s_waitcnt lgkmcnt(0)")
    A(f"  s_mov_b64 exec, 0x7f")
    A(f"  ds_write_b32 v{vA}, v{vZero}")
    A(f"  s_mov_b64 exec, -1")
    A(f"  v_min_u32 v{vA2}, {CAP}, v{vA2}")
    A(f"  s_nop 0")
    for j in range(GPW):
        A(f"  v_readlane_b32 s{sC+j}, v{vA2}, {j}")
    A(f"  s_nop 0")
    for j in range(GPW):
        A(f"  s_add_u32 s{sNBn+j}, s{sC+j}, 31")
        A(f"  s_lshr_b32 s{sNBn+j}, s{sNBn+j}, 5")
        A(f"  s_lshl_b32 s66, s{sNBn+j}, 5")
        A(f"  s_sub_u32 s66, s66, s{sC+j}")
        A(f"  s_cmp_eq_u32 s66, 0")
        A(f"  s_cbranch_scc1 L_gs_nopad{j}")
        A(f"  s_lshl_b32 s67, s{sC+j}, 2")
        A(f"  s_add_u32 s67, s67, s{sBase0}")
        A(f"  s_add_u32 s67, s67, {j*BS}")
        A(f"  v_add_u32 v{vA}, s67, v{vL4full}")
        A(f"  s_bfm_b64 exec, s66, 0")
        A(f"  ds_write_b32 v{vA}, v{vDum} offset:{WB}")
        A(f"  v_lshrrev_b32 v{vA}, 1, v{vA}")
        A(f"  ds_write_b16 v{vA}, v{vZero}")
        A(f"  s_mov_b64 exec, -1")
        A(f"L_gs_nopad{j}:")
    A(f"  v_lshlrev_b32 v{vList}, 5, v{vL4full}")
    A(f"  v_add_u32 v{vList}, s{sBase0}, v{vList}")
    A(f"  s_mov_b32 s66, 0")
    for j in range(1, GPW):
        A(f"  s_add_u32 s66, s66, s{sNBn+j-1}")
        A(f"  s_sub_u32 s67, s66, 1")
        A(f"  v_sub_u32 v{vA}, s67, v{vT}")
        A(f"  s_lshl_b32 s68, s{sNBn+j-1}, 7")
        A(f"  s_sub_u32 s68, {BS}, s68")
        A(f"  v_ashrrev_i32 v{vA}, 31, v{vA}")
        A(f"  v_and_b32 v{vA}, s68, v{vA}")
        A(f"  v_add_u32 v{vList}, v{vList}, v{vA}")
    A(f"  s_add_u32 s66, s66, s{sNBn+GPW-1}")
    A(f"  v_cmp_gt_u32 vcc, s66, v{vT}")
    A(f"  v_mov_b32 v{vA}, {DUMMY_X}")
    A(f"  s_max_u32 s{sTot}, s66, {MINT}")
    A(f"  v_cndmask_b32 v{vList}, v{vA}, v{vList}, vcc")
    A(f"  s_sub_u32 s66, s{sTot}, s66")
    A(f"  s_add_u32 s{sNBn+GPW-1}, s{sNBn+GPW-1}, s66")
    A(f"  s_mov_b32 s{sT}, 0")
    A(f"  s_waitcnt lgkmcnt(0)")
    A(f"  s_setpc_b64 s[30:31]")

def gen_gwave():
    A(f"  v_and_b32 v{vLane4}, 31, v1")
    A(f"  v_lshlrev_b32 v{vLane4}, 2, v{vLane4}")
    A(f"  v_lshrrev_b32 v{vHalf16}, 5, v1")
    A(f"  v_lshlrev_b32 v{vHalf16}, 4, v{vHalf16}")
    A(f"  v_mov_b32 v{vZero}, 0")
    A(f"  v_mov_b32 v{vT}, v1")
    A(f"  v_lshlrev_b32 v{vL4full}, 2, v1")
    A(f"  v_mov_b32 v{vDum}, {DUMMY_W:#x}")
    A(f"  v_mov_b32 v{vFl}, {FLG}")
    A(f"  v_mov_b32 v{vOne1}, 1")
    A(f"  s_mov_b32 s{sM1}, {DUMMY_W:#x}")
    A(f"  s_mov_b32 s{sLo}, -1")
    A(f"  s_mov_b32 s{sLo+1}, 0")
    A(f"  s_lshl_b32 s40, s35, 10")
    A(f"  s_add_u32 s40, s40, {SEL}")
    A(f"  v_and_b32 v18, 31, v1")
    A(f"  v_lshl_add_u32 v{vSelW}, v18, 5, s40")
    A(f"  v_lshl_add_u32 v{vSelR}, v1, 3, s40")
    A(f"  v_mov_b32 v{vS}, v{vSelW}")
    A(f"  s_load_dwordx2 s[38:39], s[0:1], 72")
    A(f"  s_waitcnt lgkmcnt(0)")
    srd(28, 38, 512)
    A(f"  v_lshrrev_b32 v19, 4, v1")
    A(f"  v_and_b32 v18, 15, v1")
    A(f"  v_lshrrev_b32 v20, 1, v19")
    A(f"  v_lshlrev_b32 v20, 8, v20")
    A(f"  v_lshl_add_u32 v20, v18, 1, v20")
    for jj in range(8):
        A(f"  buffer_load_ushort v{22+jj}, v20, s[28:31], 0 offen offset:{32*jj}")
    for u in range(U):
        for k in range(4):
            A(f"  v_mov_b32 v{XR(u)+k}, 0")
        A(f"  v_mov_b32 v{WR(u)}, v{vDum}")
        A(f"  v_mov_b32 v{CR(u)}, 0")
    for p in range(3):
        for k in range(4):
            A(f"  v_mov_b32 v{B2(p)+k}, 0")
    for j in range(GPW):
        for k in range(4):
            A(f"  v_mov_b32 v{ACC(j)+k}, 0")
    A(f"  s_waitcnt vmcnt(0)")
    for k in range(4):
        A(f"  v_lshl_or_b32 v{22+k}, v{23+2*k}, 16, v{22+2*k}")
    A(f"  v_and_b32 v19, 1, v19")
    A(f"  v_cmp_eq_u32 vcc, 0, v19")
    A(f"  s_nop 1")
    for k in range(4):
        A(f"  v_cndmask_b32 v{B1A+k}, v{vZero}, v{22+k}, vcc")
        A(f"  v_cndmask_b32 v{B1B+k}, v{22+k}, v{vZero}, vcc")
    A("  s_barrier")
    A(f"  s_mov_b32 s{sCI}, -1")
    A(f"  s_mov_b32 s{sCC}, 0")
    A(f"  s_call_b64 s[30:31], L_setup")
    for k in range(GPW):
        A(f"  s_mov_b32 s{sNB+k}, s{sNBn+k}")
    A(f"  s_add_u32 s{sLeft}, s{sNB}, {LEAD}")
    for j in range(GPW):
        for u in range(U):
            g_body(j, u)
    for j in range(GPW):
        for u in range(U):
            g_callstub(j, u)
    for j in range(0, GPW+1):
        for u in range(U):
            g_next(j, u)
    g_setup()
    A("L_g_end:")
    A("  s_waitcnt vmcnt(0) lgkmcnt(0)")

def gen_epilogue():
    A("  s_load_dwordx2 s[36:37], s[0:1], 24")
    A("  s_load_dwordx2 s[38:39], s[0:1], 40")
    A("  s_load_dwordx4 s[40:43], s[0:1], 56")
    A("  s_load_dwordx4 s[44:47], s[0:1], 80")
    A("  s_waitcnt lgkmcnt(0)")
    srd(12, 36, E*2)
    srd(16, 46, E*32)
    srd(20, 38, 16)
    srd(24, 40, 256)
    srd(28, 42, 256)
    srd(48, 44, 512)
    A("  v_and_b32 v16, 15, v1")
    A("  v_lshrrev_b32 v17, 4, v1")
    A("  v_lshlrev_b32 v18, 6, v17")
    A("  v_lshl_add_u32 v18, v16, 1, v18")
    A("  buffer_load_ushort v20, v18, s[28:31], 0 offen")
    A("  buffer_load_ushort v21, v18, s[28:31], 0 offen offset:32")
    A("  buffer_load_ushort v22, v18, s[24:27], 0 offen")
    A("  buffer_load_ushort v23, v18, s[24:27], 0 offen offset:32")
    A("  v_lshlrev_b32 v19, 7, v17")
    A("  v_lshl_add_u32 v19, v16, 1, v19")
    for k in range(4):
        A(f"  buffer_load_ushort v{24+k}, v19, s[48:51], 0 offen offset:{32*k}")
    A("  v_lshlrev_b32 v19, 2, v17")
    A("  buffer_load_ushort v28, v19, s[20:23], 0 offen")
    A("  buffer_load_ushort v29, v19, s[20:23], 0 offen offset:2")
    A(f"  s_mul_i32 s52, s35, {GPW*16}")
    A("  v_add_u32 v30, s52, v16")
    A("  s_mul_i32 s53, s3, 1250")
    for j in range(GPW):
        A(f"  v_add_u32 v31, s53, v30")
        if j:
            A(f"  v_add_u32 v31, {16*j}, v31")
        A(f"  v_lshlrev_b32 v32, 1, v31")
        A(f"  buffer_load_ushort v{64+j}, v32, s[12:15], 0 offen")
        A(f"  v_lshlrev_b32 v32, 5, v31")
        A(f"  v_lshl_add_u32 v32, v17, 3, v32")
        A(f"  buffer_load_dwordx2 v[{72+2*j}:{73+2*j}], v32, s[8:11], 0 offen")
    A("  s_waitcnt vmcnt(14)")
    A("  v_lshl_or_b32 v32, v21, 16, v20")
    A("  v_lshl_or_b32 v36, v23, 16, v22")
    A("  v_lshl_or_b32 v40, v25, 16, v24")
    A("  v_lshl_or_b32 v41, v27, 16, v26")
    A("  v_mov_b32 v42, v40")
    A("  v_mov_b32 v43, v41")
    for r in (33, 34, 35, 37, 38, 39, 45, 46, 47):
        A(f"  v_mov_b32 v{r}, 0")
    A("  v_lshlrev_b32 v28, 16, v28")
    A("  v_lshlrev_b32 v29, 16, v29")
    A("  s_mov_b32 s54, 0xffff0000")
    A(f"  s_mov_b32 s55, {f2u(-10.0):#x}")
    A(f"  s_mov_b32 s56, {f2u(LOG2E):#x}")
    A(f"  v_mov_b32 v31, {OOB:#x}")
    A("  s_waitcnt vmcnt(0)")
    for j in range(GPW):
        acc = ACC(j)
        A(f"  v_lshlrev_b32 v48, 16, v{64+j}")
        A(f"  v_sub_f32 v49, v48, v28")
        A(f"  v_sub_f32 v50, v48, v29")
        A(f"  v_cvt_pk_bf16_f32 v51, v49, v50")
        A(f"  v_lshlrev_b32 v49, 16, v51")
        A(f"  v_and_b32 v50, s54, v51")
        A(f"  v_mul_f32 v49, v49, v49")
        A(f"  v_mul_f32 v50, v50, v50")
        A(f"  v_cvt_pk_bf16_f32 v51, v49, v50")
        A(f"  v_lshlrev_b32 v49, 16, v51")
        A(f"  v_and_b32 v50, s54, v51")
        A(f"  v_mul_f32 v49, s55, v49")
        A(f"  v_mul_f32 v50, s55, v50")
        A(f"  v_cvt_pk_bf16_f32 v51, v49, v50")
        A(f"  v_lshlrev_b32 v49, 16, v51")
        A(f"  v_and_b32 v50, s54, v51")
        A(f"  v_mul_f32 v49, s56, v49")
        A(f"  v_mul_f32 v50, s56, v50")
        A(f"  v_exp_f32 v49, v49")
        A(f"  v_exp_f32 v50, v50")
        A(f"  s_nop 0")
        A(f"  v_cvt_pk_bf16_f32 v44, v49, v50")
        A(f"  s_nop 1")
        A(f"  v_mfma_f32_16x16x32_bf16 v[48:51], v[32:35], v[44:47], 0")
        A(f"  v_mfma_f32_16x16x32_bf16 v[52:55], v[36:39], v[44:47], 0")
        A(f"  s_nop 7")
        for k in range(4):
            A(f"  v_mul_f32 v{56+k}, v{acc+k}, v{48+k}")
        A(f"  v_cvt_pk_bf16_f32 v60, v56, v57")
        A(f"  v_cvt_pk_bf16_f32 v61, v58, v59")
        A(f"  v_lshlrev_b32 v48, 16, v60")
        A(f"  v_and_b32 v49, s54, v60")
        A(f"  v_lshlrev_b32 v50, 16, v61")
        A(f"  v_and_b32 v51, s54, v61")
        for k in range(4):
            A(f"  v_sub_f32 v{56+k}, v{56+k}, v{48+k}")
        A(f"  v_cvt_pk_bf16_f32 v62, v56, v57")
        A(f"  v_cvt_pk_bf16_f32 v63, v58, v59")
        A(f"  v_cvt_pk_bf16_f32 v48, v52, v53")
        A(f"  v_cvt_pk_bf16_f32 v49, v54, v55")
        A(f"  v_mfma_f32_16x16x32_bf16 v[56:59], v[40:43], v[60:63], 0")
        A(f"  v_lshlrev_b32 v52, 16, v48")
        A(f"  v_and_b32 v53, s54, v48")
        A(f"  v_lshlrev_b32 v54, 16, v49")
        A(f"  v_and_b32 v55, s54, v49")
        A(f"  v_lshlrev_b32 v48, 16, v{72+2*j}")
        A(f"  v_and_b32 v49, s54, v{72+2*j}")
        A(f"  v_lshlrev_b32 v50, 16, v{73+2*j}")
        A(f"  v_and_b32 v51, s54, v{73+2*j}")
        A(f"  v_add_u32 v60, {16*j}, v30")
        A(f"  s_movk_i32 s57, 1250")
        A(f"  v_cmp_gt_u32 vcc, s57, v60")
        A(f"  v_add_u32 v60, s53, v60")
        A(f"  v_lshlrev_b32 v60, 5, v60")
        A(f"  v_lshl_add_u32 v60, v17, 3, v60")
        A(f"  v_cndmask_b32 v60, v31, v60, vcc")
        A(f"  s_nop 1")
        for k in range(4):
            A(f"  v_fma_f32 v{48+k}, v{56+k}, v{52+k}, v{48+k}")
        A(f"  v_cvt_pk_bf16_f32 v62, v48, v49")
        A(f"  v_cvt_pk_bf16_f32 v63, v50, v51")
        A(f"  buffer_store_dwordx2 v[62:63], v60, s[16:19], 0 offen")
        A(f"  s_nop 1")

def gen_k2():
    k2_prologue()
    gen_gwave()
    gen_epilogue()
    A("  s_waitcnt vmcnt(0)")
    if gen.STAMP:
        A(f"  s_memtime s[70:71]")
        A(f"  s_memrealtime s[94:95]")
        A(f"  s_waitcnt lgkmcnt(0)")
        A(f"  s_sub_u32 s70, s70, s90")
        A(f"  v_writelane_b32 v15, s70, 32")
        A(f"  s_sub_u32 s70, s94, s92")
        A(f"  v_writelane_b32 v15, s70, 33")
        if os.environ.get("ALLWG"):
            A(f"  v_writelane_b32 v15, s92, 34")
            A(f"  v_writelane_b32 v15, s94, 35")
            A(f"  s_load_dwordx2 s[44:45], s[0:1], 104")
            A(f"  s_waitcnt lgkmcnt(0)")
            srd(48, 44, 256*16*256, 128 << 20)
            A(f"  s_lshl_b32 s44, s2, 4")
            A(f"  s_add_u32 s44, s44, s35")
            A(f"  s_lshl_b32 s44, s44, 8")
            A(f"  v_lshlrev_b32 v4, 2, v1")
            A(f"  buffer_store_dword v15, v4, s[48:51], s44 offen")
        else:
            A(f"  s_cmp_lg_u32 s2, {int(gen.WGSEL)}")
            A(f"  s_cbranch_scc1 L_nostamp")
            A(f"  s_cmp_lg_u32 s35, {int(os.environ.get('WAVESEL','0')) if not os.environ.get('ISTAMP') else 99}")
            A(f"  s_cbranch_scc1 L_nostamp")
            A(f"  s_load_dwordx2 s[44:45], s[0:1], 96")
            A(f"  s_waitcnt lgkmcnt(0)")
            srd(48, 44, 256)
            A(f"  v_lshlrev_b32 v4, 2, v1")
            A(f"  buffer_store_dword v15, v4, s[48:51], 0 offen")
        A(f"L_nostamp:")
    A("L_k2_end:")
    A("  s_endpgm")
    gen_iwave()

if __name__ == "__main__":
    import os
    st = os.environ.get("STAMP", "0")
    A(f"; @launch kernel=k1_kernel grid=(256,1,1) block=(1024,1,1) lds={gen.K1_LDS}")
    A(f"; @launch kernel=k2_kernel grid=(256,1,1) block=(1024,1,1) lds={K2_LDS}")
    A('.amdgcn_target "amdgcn-amd-amdhsa--gfx950"')
    A(".text")
    gen.STAMP = False
    gen_k1()
    gen.STAMP = (st == "1")
    gen.stamp_idx[0] = 0
    gen_k2()
    A('.section .rodata,"a"')
    A(".p2align 6")
    desc_block("k1_kernel", 128)
    A(".p2align 6")
    desc_block("k2_kernel", 128)
    lines = [l for l in out if l is not None]
    open(sys.argv[1], "w").write("\n".join(lines) + "\n")
```

```python
import struct, sys, os
import numpy as np

E = 320000; T = 10240000
TILE = 20480; NT = 500; NBIN = 1024
TILE_BYTES = 129024
DESC_OFF = NT * TILE_BYTES
DESC_ROW = 512 * 4
ROWS_PER_B = 1250

out = []
def A(s=""):
    out.append(s)
def f2u(x):
    return struct.unpack("<I", struct.pack("<f", x))[0]

def srd(base_s, ptr_lo, nbytes, off=0):
    if off:
        A(f"  s_add_u32 s{base_s}, s{ptr_lo}, {off}")
        A(f"  s_addc_u32 s{base_s+1}, s{ptr_lo+1}, 0")
    else:
        A(f"  s_mov_b32 s{base_s}, s{ptr_lo}")
        A(f"  s_mov_b32 s{base_s+1}, s{ptr_lo+1}")
    A(f"  s_mov_b32 s{base_s+2}, {nbytes}")
    A(f"  s_mov_b32 s{base_s+3}, 0x20000")

STAMP = False
stamp_idx = [0]
def stamp():
    if not STAMP: return
    i = stamp_idx[0]; stamp_idx[0] += 1
    A(f"  s_memtime s[{60+2*i}:{61+2*i}]")
    A(f"  s_waitcnt lgkmcnt(0)")
def rstamp(reg):
    if not STAMP: return
    A(f"  s_memrealtime s[{reg}:{reg+1}]")
    A(f"  s_waitcnt lgkmcnt(0)")
def stamp_flush(wgsel):
    if not STAMP: return
    n = stamp_idx[0]
    A(f"  s_cmp_lg_u32 s2, {wgsel}")
    A(f"  s_cbranch_scc1 L_nostamp")
    A(f"  s_cmp_lg_u32 s35, 0")
    A(f"  s_cbranch_scc1 L_nostamp")
    A(f"  s_load_dwordx2 s[44:45], s[0:1], 96")
    A(f"  s_waitcnt lgkmcnt(0)")
    srd(48, 44, 256)
    A(f"  v_mov_b32 v4, 0")
    for i in range(n):
        A(f"  s_sub_u32 s46, s{60+2*i}, s60")
        A(f"  v_mov_b32 v5, s46")
        A(f"  buffer_store_dword v5, v4, s[48:51], 0 offen offset:{4*i}")
    A(f"  s_sub_u32 s46, s94, s92")
    A(f"  v_mov_b32 v5, s46")
    A(f"  buffer_store_dword v5, v4, s[48:51], 0 offen offset:{4*n}")
    A(f"L_nostamp:")
K1_HIST = TILE_BYTES
K1_WT = K1_HIST + 4096
K1_LDS = K1_WT + 64

c_full = 0.15915494309189535
c_hi_u = f2u(c_full) & 0xFFFFFF00
c_hi = struct.unpack("<f", struct.pack("<I", c_hi_u))[0]
c_lo_u = f2u(c_full - c_hi)

def k1_loads(O, I, An, stau, nt=os.environ.get("K1_LD", " nt")):
    A(f"  s_mul_i32 s40, s{stau}, 81920")
    A(f"  s_mul_i32 s42, s{stau}, 40960")
    for c in range(5):
        A(f"  buffer_load_dwordx4 v[{O+4*c}:{O+4*c+3}], v1, s[8:11], s40 offen{nt}")
        A(f"  buffer_load_dwordx4 v[{I+4*c}:{I+4*c+3}], v1, s[12:15], s40 offen{nt}")
        A(f"  buffer_load_dwordx2 v[{An+2*c}:{An+2*c+1}], v2, s[16:19], s42 offen{nt}")
        if c < 4:
            A(f"  s_add_u32 s40, s40, 16384")
            A(f"  s_add_u32 s42, s42, 8192")

def k1_fields(O, I, An, c):
    for r in range(4):
        o = O + 4*c + r; i = I + 4*c + r
        A(f"  v_mul_hi_u32_u24 v12, s28, v{o}")
        A(f"  v_mul_hi_u32_u24 v13, s30, v{i}")
        A(f"  v_mad_i32_i24 v14, v12, s29, v{o}")
        A(f"  v_lshlrev_b32 v12, 2, v12")
        A(f"  v_lshl_or_b32 v{o}, v13, 10, v12")
        A(f"  v_lshl_or_b32 v{i}, v{i}, 5, s32")
        A(f"  v_lshlrev_b32 v15, 20, v14")
        A(f"  v_lshlrev_b32 v14, 1, v14")
        A(f"  v_and_or_b32 v{i}, v15, s37, v{i}")
        A(f"  v_and_or_b32 v{i}, v14, 30, v{i}")
        rk = 4 + (c % 2) * 4 + r
        A(f"  ds_add_rtn_u32 v{rk}, v{o}, v3 offset:{K1_HOFF}")
    for h in range(2):
        a = An + 2*c + h
        A(f"  v_lshlrev_b32 v12, 16, v{a}")
        A(f"  v_and_b32 v13, s38, v{a}")
        if os.environ.get("FREQ1", "0") != "1":
            A(f"  v_mul_f32 v12, s31, v12")
            A(f"  v_mul_f32 v13, s31, v13")
            A(f"  v_cvt_pk_bf16_f32 v14, v12, v13")
            A(f"  v_lshlrev_b32 v12, 16, v14")
            A(f"  v_and_b32 v13, s38, v14")
        A(f"  v_mul_f32 v14, s33, v12")
        A(f"  v_mul_f32 v15, s33, v13")
        A(f"  v_fract_f32 v14, v14")
        A(f"  v_fract_f32 v15, v15")
        A(f"  v_fma_f32 v14, v12, s34, v14")
        A(f"  v_fma_f32 v15, v13, s34, v15")
        A(f"  v_cos_f32 v14, v14")
        A(f"  v_cos_f32 v15, v15")
        A(f"  s_nop 0")
        A(f"  v_cvt_pk_bf16_f32 v{a}, v14, v15")

K1_HIST = 0
K1_WT = 4096
K1_STG = 4096 + 128
K1_LDS = K1_STG + TILE_BYTES
K1_HOFF = K1_HIST

def k1_pack(O, c):
    for r in range(4):
        o = O + 4*c + r; rk = 4 + (c % 2) * 4 + r
        A(f"  v_lshl_or_b32 v{o}, v{rk}, 12, v{o}")

def k1_tile(O, I, An, stau, vm_base, tag, after_first=None):
    for c in range(5):
        if vm_base is not None:
            if c == 0 and after_first is not None:
                A(f"  s_waitcnt vmcnt({15 - 3})")
                stamp()
                after_first()
            else:
                A(f"  s_waitcnt vmcnt({vm_base + 15 - 3*(c+1)})")
        k1_fields(O, I, An, c)
        if c > 0:
            A(f"  s_waitcnt lgkmcnt(4)")
            k1_pack(O, c-1)
    A(f"  s_waitcnt lgkmcnt(0)")
    k1_pack(O, 4)
    stamp()
    A(f"  s_barrier")
    stamp()
    A(f"  ds_read_b32 v4, v16 offset:{K1_HIST}")
    A(f"  s_waitcnt lgkmcnt(0)")
    A(f"  v_add_u32 v5, 1, v4")
    A(f"  v_and_b32 v5, -2, v5")
    A(f"  v_mov_b32 v6, v5")
    A(f"  s_nop 1")
    for sh in (1, 2, 4, 8):
        A(f"  v_add_u32_dpp v6, v6, v6 row_shr:{sh} row_mask:0xf bank_mask:0xf bound_ctrl:0")
        A(f"  s_nop 1")
    A(f"  v_add_u32_dpp v6, v6, v6 row_bcast:15 row_mask:0xa bank_mask:0xf")
    A(f"  s_nop 1")
    A(f"  v_add_u32_dpp v6, v6, v6 row_bcast:31 row_mask:0xc bank_mask:0xf")
    A(f"  s_nop 1")
    A(f"  v_readlane_b32 s43, v6, 63")
    A(f"  s_lshl_b32 s44, s35, 2")
    A(f"  v_mov_b32 v7, s44")
    A(f"  s_nop 0")
    A(f"  v_mov_b32 v8, s43")
    A(f"  ds_write_b32 v7, v8 offset:{K1_WT}")
    A(f"  s_waitcnt lgkmcnt(0)")
    A(f"  s_barrier")
    A(f"  ds_read_b32 v7, v17 offset:{K1_WT}")
    A(f"  s_waitcnt lgkmcnt(0)")
    A(f"  s_nop 1")
    for sh in (1, 2, 4, 8):
        A(f"  v_add_u32_dpp v7, v7, v7 row_shr:{sh} row_mask:0xf bank_mask:0xf bound_ctrl:0")
        A(f"  s_nop 1")
    A(f"  s_sub_u32 s44, s35, 1")
    A(f"  s_max_i32 s44, s44, 0")
    A(f"  v_readlane_b32 s43, v7, s44")
    A(f"  s_cmp_eq_u32 s35, 0")
    A(f"  s_cselect_b32 s43, 0, s43")
    A(f"  v_sub_u32 v6, v6, v5")
    A(f"  s_nop 1")
    A(f"  v_add_u32 v6, s43, v6")
    A(f"  ds_write_b32 v16, v6 offset:{K1_HIST}")
    A(f"  v_add_u32 v7, v6, v5")
    A(f"  v_lshrrev_b32 v8, 1, v6")
    A(f"  v_lshrrev_b32 v7, 1, v7")
    A(f"  v_lshl_or_b32 v7, v7, 16, v8")
    A(f"  s_lshl_b32 s44, s{stau}, 2")
    A(f"  buffer_store_dword v7, v18, s[24:27], s44 offen{os.environ.get('DESC_ST', K1_ST)}")
    A(f"  v_and_b32 v8, 1, v4")
    A(f"  v_cmp_eq_u32 vcc, 1, v8")
    A(f"  v_add_u32 v8, v6, v4")
    A(f"  v_mul_u32_u24 v8, 6, v8")
    A(f"  v_mov_b32 v9, 0")
    A(f"  s_and_saveexec_b64 s[46:47], vcc")
    A(f"  ds_write_b32 v8, v9 offset:{K1_STG - 2}")
    A(f"  s_mov_b64 exec, s[46:47]")
    A(f"  s_waitcnt lgkmcnt(0)")
    A(f"  s_barrier")
    stamp()
    def rd(c):
        for r in range(4):
            o = O + 4*c + r; rk = 4 + (c % 2) * 4 + r
            A(f"  v_and_b32 v{rk}, s39, v{o}")
            A(f"  ds_read_b32 v{rk}, v{rk} offset:{K1_HIST}")
    rd(0)
    for c in range(5):
        if c < 4:
            rd(c+1)
        A(f"  s_waitcnt lgkmcnt({4 if c < 4 else 0})")
        for r in range(4):
            k = 4*c + r; o = O + k; i = I + k; rk = 4 + (c % 2) * 4 + r
            a = An + k // 2
            A(f"  v_lshrrev_b32 v12, 12, v{o}")
            A(f"  v_add_u32 v12, v12, v{rk}")
            A(f"  v_and_b32 v13, 1, v12")
            A(f"  v_mul_u32_u24 v12, 6, v12")
            A(f"  v_mad_i32_i24 v12, v13, -2, v12")
            A(f"  v_mad_i32_i24 v13, v13, -2, v12")
            A(f"  ds_write_b32 v12, v{i} offset:{K1_STG}")
            A(f"  ds_write_b16{'_d16_hi' if k % 2 else ''} v13, v{a} offset:{K1_STG + 8}")
    A(f"  s_waitcnt lgkmcnt(0)")
    A(f"  s_barrier")
    stamp()
    A(f"  v_mov_b32 v9, 0")
    A(f"  ds_write_b32 v16, v9 offset:{K1_HIST}")
    R = O
    assert I == O + 20
    for it in range(7):
        base = "v1" if it < 3 else "v19"
        off = K1_STG + it*16384 - (0 if it < 3 else 49152)
        A(f"  ds_read_b128 v[{R+4*it}:{R+4*it+3}], {base} offset:{off}")
    A(f"  s_cmp_lt_u32 s35, 14")
    A(f"  s_cbranch_scc0 L_k1_skip7_{tag}")
    A(f"  v_add_u32 v12, 65536, v19")
    A(f"  ds_read_b128 v[{R+28}:{R+31}], v12 offset:{K1_STG + 7*16384 - 49152 - 65536}")
    A(f"L_k1_skip7_{tag}:")
    A(f"  s_mul_i32 s44, s{stau}, {TILE_BYTES}")
    A(f"  s_waitcnt lgkmcnt(0)")
    A(f"  s_barrier")
    for it in range(7):
        A(f"  buffer_store_dwordx4 v[{R+4*it}:{R+4*it+3}], v1, s[20:23], s44 offen{K1_ST}")
        A(f"  s_add_u32 s44, s44, 16384")
    A(f"  s_cmp_lt_u32 s35, 14")
    A(f"  s_cbranch_scc0 L_k1_skip7s_{tag}")
    A(f"  buffer_store_dwordx4 v[{R+28}:{R+31}], v1, s[20:23], s44 offen{K1_ST}")
    A(f"L_k1_skip7s_{tag}:")
    stamp()

K1_ST = os.environ.get("K1_ST", "")

def gen_k1():
    A(".p2align 8")
    A(".globl k1_kernel")
    A(".type k1_kernel,@function")
    A("k1_kernel:")
    A("  s_cmp_ge_u32 s2, 256")
    A("  s_cbranch_scc1 L_k1_end")
    stamp()
    rstamp(92)
    A("  s_load_dwordx4 s[4:7], s[0:1], 8")
    A("  s_load_dwordx2 s[44:45], s[0:1], 32")
    A("  s_load_dwordx2 s[46:47], s[0:1], 48")
    A("  s_load_dwordx2 s[48:49], s[0:1], 104")
    A("  s_and_b32 s3, s2, 7")
    A("  s_lshl_b32 s3, s3, 5")
    A("  s_lshr_b32 s36, s2, 3")
    A("  s_add_u32 s3, s3, s36")
    A("  s_add_u32 s36, s3, 256")
    A("  v_lshlrev_b32 v1, 4, v0")
    A("  v_lshlrev_b32 v2, 3, v0")
    A("  v_mov_b32 v3, 1")
    A("  v_lshlrev_b32 v16, 2, v0")
    A("  v_and_b32 v17, 15, v0")
    A("  v_lshlrev_b32 v17, 2, v17")
    A("  v_lshlrev_b32 v18, 11, v0")
    A("  v_add_u32 v19, 49152, v1")
    A("  v_lshrrev_b32 v4, 6, v0")
    A("  s_nop 0")
    A("  v_readfirstlane_b32 s35, v4")
    A("  s_mov_b32 s28, 3435974")
    A("  s_mov_b32 s29, -1250")
    A("  s_mov_b32 s30, 53248")
    A("  s_mov_b32 s32, 0x80000000")
    A(f"  s_mov_b32 s33, {c_hi_u:#x}")
    A(f"  s_mov_b32 s34, {c_lo_u:#x}")
    A("  s_mov_b32 s37, 0x7f000000")
    A("  s_mov_b32 s38, 0xffff0000")
    A("  s_mov_b32 s39, 0xfff")
    A("  v_mov_b32 v9, 0")
    A(f"  ds_write_b32 v16, v9 offset:{K1_HIST}")
    A("  s_waitcnt lgkmcnt(0)")
    srd(12, 4, T*4)
    srd(8, 6, T*4)
    srd(16, 44, T*2)
    srd(20, 48, NT*TILE_BYTES)
    srd(24, 48, NBIN*DESC_ROW, DESC_OFF)
    A("  s_load_dword s31, s[46:47], 0")
    k1_loads(20, 40, 60, 3)
    A("  s_waitcnt lgkmcnt(0)")
    A("  s_lshl_b32 s31, s31, 16")
    A("  s_barrier")
    k1_tile(20, 40, 60, 3, 15, "a", after_first=lambda: k1_loads(70, 90, 110, 36))
    A("  s_cmp_ge_u32 s36, 500")
    A("  s_cbranch_scc1 L_k1_end")
    A("  s_waitcnt vmcnt(8)")
    stamp()
    k1_tile(70, 90, 110, 36, None, "b")
    A("  s_waitcnt vmcnt(0)")
    stamp()
    rstamp(94)
    stamp_flush(int(WGSEL))
    A("L_k1_end:")
    A("  s_endpgm")

def desc_block(name, vg, sg=96):
    A(f".amdhsa_kernel {name}")
    A(f"  .amdhsa_next_free_vgpr {vg}")
    A(f"  .amdhsa_next_free_sgpr {sg}")
    A(f"  .amdhsa_accum_offset {vg}")
    A("  .amdhsa_group_segment_fixed_size 0")
    A("  .amdhsa_kernarg_size 112")
    A("  .amdhsa_user_sgpr_count 2")
    A("  .amdhsa_user_sgpr_kernarg_segment_ptr 1")
    A("  .amdhsa_system_sgpr_workgroup_id_x 1")
    A("  .amdhsa_float_denorm_mode_32 3")
    A(".end_amdhsa_kernel")

import os
WGSEL = os.environ.get("WGSEL", "0")
if __name__ == "__main__":
    STAMP = os.environ.get("STAMP", "0") == "1"
    which = sys.argv[1] if len(sys.argv) > 1 else "k1"
    A(f"; @launch kernel=k1_kernel grid=(256,1,1) block=(1024,1,1) lds={K1_LDS}")
    A('.amdgcn_target "amdgcn-amd-amdhsa--gfx950"')
    A(".text")
    gen_k1()
    A('.section .rodata,"a"')
    A(".p2align 6")
    desc_block("k1_kernel", 128)
    open(sys.argv[2] if len(sys.argv) > 2 else "k.s", "w").write("\n".join(out) + "\n")
```

```python
from gen import *
import gen, os, sys

CAP = 128
BS = 528
NGW = 8; GPW = 10; NIW = 8
PB = 80 * BS
WB = PB
SEL = 126976
LIST = SEL + NGW * 1024
CNT = LIST + NGW * 256
FLG = CNT + 1024
K2_LDS = FLG + 128
assert SEL >= 3 * PB and SEL % 1024 == 0 and CNT % 512 == 0
F_OVF, F_RDY, F_DONE, F_FIN = 0, 4, 12, 32
DUMMY_X = 79 * BS
DUMMY_W = 0x00FFFFE0
OOB = 0x7FFFFF00
LOG2E = 1.4426950408889634
EXP = set(os.environ.get("EXP", "").split(","))
RAW_NT = os.environ.get("RAW_NT", "")
NCH = 8
F0 = False

def vr(b, n=4): return f"v[{b}:{b+n-1}]"
STAMP = os.environ.get("STAMP", "0") == "1"
def stamp_init():
    if not STAMP: return
    A("  s_memtime s[90:91]"); A("  s_memrealtime s[92:93]"); A("  s_waitcnt lgkmcnt(0)"); A("  v_mov_b32 v15, 0")
def stampk(k=None, sreg=None, add=0):
    if not STAMP: return
    A("  s_memtime s[94:95]"); A("  s_waitcnt lgkmcnt(0)"); A("  s_sub_u32 s94, s94, s90")
    if k is not None:
        A(f"  v_writelane_b32 v15, s94, {k}")
    else:
        A(f"  s_add_u32 s95, s{sreg}, {add}"); A("  s_mov_b32 m0, s95"); A("  v_writelane_b32 v15, s94, m0")
def stamp_flush():
    if not STAMP: return
    A("  s_memtime s[94:95]"); A("  s_waitcnt lgkmcnt(0)"); A("  s_sub_u32 s94, s94, s90"); A("  v_writelane_b32 v15, s94, 32")
    A("  s_memrealtime s[94:95]"); A("  s_waitcnt lgkmcnt(0)")
    A("  v_writelane_b32 v15, s92, 34"); A("  v_writelane_b32 v15, s94, 35")
    A("  s_load_dwordx2 s[44:45], s[0:1], 104"); A("  s_waitcnt lgkmcnt(0)")
    srd(48, 44, 256*16*256, 128 << 20)
    A("  s_lshl_b32 s44, s2, 4"); A("  s_add_u32 s44, s44, s35"); A("  s_lshl_b32 s44, s44, 8")
    A("  v_lshlrev_b32 v4, 2, v1"); A("  buffer_store_dword v15, v4, s[48:51], s44 offen"); A("  s_waitcnt vmcnt(0)")

def k2_prologue():
    A(".p2align 8"); A(".globl k2_kernel"); A(".type k2_kernel,@function"); A("k2_kernel:")
    A("  s_cmp_ge_u32 s2, 256"); A("  s_cbranch_scc1 L_k2_end")
    stamp_init()
    A("  s_load_dwordx2 s[4:5], s[0:1], 0")
    A("  s_load_dwordx2 s[6:7], s[0:1], 104")
    A("  s_and_b32 s3, s2, 7"); A("  s_lshl_b32 s3, s3, 5"); A("  s_lshr_b32 s36, s2, 3"); A("  s_add_u32 s3, s3, s36")
    A("  v_lshrrev_b32 v4, 6, v0"); A("  v_and_b32 v1, 63, v0"); A("  v_readfirstlane_b32 s35, v4")
    A("  s_waitcnt lgkmcnt(0)")
    srd(8, 4, E*32)
    srd(12, 6, NT*TILE_BYTES)
    srd(16, 6, NBIN*DESC_ROW, DESC_OFF)
    A("  s_cmp_ge_u32 s35, 8"); A("  s_cbranch_scc1 L_k2_iwave")

def lds_init():
    for r in (8, 9, 10, 11): A(f"  v_mov_b32 v{r}, 0")
    A("  v_lshlrev_b32 v5, 4, v0")
    def region(base, nbytes):
        n16 = nbytes // 16
        k = 0
        cur = None
        while k * 512 < n16:
            addr = base + k * 8192
            seg = addr // 65536
            if seg != cur:
                A(f"  v_add_u32 v6, {seg * 65536}, v5"); cur = seg
            off = addr - seg * 65536
            if (k + 1) * 512 <= n16:
                A(f"  ds_write_b128 v6, v[8:11] offset:{off}")
            else:
                A(f"  v_cmp_gt_u32 vcc, {n16 - k*512}, v0"); A("  s_and_saveexec_b64 s[40:41], vcc")
                A(f"  ds_write_b128 v6, v[8:11] offset:{off}"); A("  s_mov_b64 exec, s[40:41]")
            k += 1
    region(SEL, K2_LDS - SEL)
    region(0, PB)
    for r in (8, 9, 10, 11): A(f"  v_mov_b32 v{r}, {DUMMY_W:#x}")
    region(WB, 2 * PB)
    A("  s_waitcnt lgkmcnt(0)")

def poll(vaddr, off, sneed, label, vtmp, stmp, sleep=2):
    A(f"{label}:")
    A(f"  ds_read_b32 v{vtmp}, v{vaddr} offset:{off}")
    A(f"  s_waitcnt lgkmcnt(0)")
    A(f"  v_readfirstlane_b32 s{stmp}, v{vtmp}")
    A(f"  s_nop 3")
    A(f"  s_cmp_ge_u32 s{stmp}, s{sneed}")
    A(f"  s_cbranch_scc1 {label}_ok")
    A(f"  s_sleep {sleep}")
    A(f"  s_branch {label}")
    A(f"{label}_ok:")

def RR(st, i, k): return 16 + 32*st + 4*i + k
NSET = 4
def CA(st, r): return 80 + 2*st + r
def RK(st, r): return 88 + 2*st + r
def MK(st, r): return 64 + 4*st + 2*r
vCntB, vOne, vPerm, vL15, vTileJ, vOOB, vDescOff, vD0, vD1, vD2, vT0, vT1, vKB, vFlag = 96, 97, 98, 99, 100, 101, 102, 103, 104, 105, 106, 107, 108, 109

def ins_A(w, st):
    for r in range(2):
        A(f"  v_cmp_gt_i32 s[{MK(st,r)}:{MK(st,r)+1}], 0, v{w[r]}")
        A(f"  v_lshrrev_b32 v{CA(st,r)}, 22, v{w[r]}")
        A(f"  v_and_or_b32 v{CA(st,r)}, v{CA(st,r)}, s52, v{vCntB}")
    for r in range(2):
        A(f"  s_mov_b64 exec, s[{MK(st,r)}:{MK(st,r)+1}]")
        A(f"  ds_add_rtn_u32 v{RK(st,r)}, v{CA(st,r)}, v{vOne}")
    A(f"  s_mov_b64 exec, -1")

def ins_B(w, cw, st):
    for r in range(2):
        ca = CA(st,r); rk = RK(st,r)
        A(f"  s_mov_b64 exec, s[{MK(st,r)}:{MK(st,r)+1}]")
        A(f"  v_cmp_lt_u32 vcc, {CAP-1}, v{rk}")
        A(f"  v_min_u32 v{rk}, {CAP-1}, v{rk}")
        A(f"  v_mad_u32_u24 v{ca}, v{ca}, v{vKB}, s53")
        A(f"  s_or_b64 s[54:55], s[54:55], vcc")
        A(f"  v_lshl_add_u32 v{ca}, v{rk}, 2, v{ca}")
        A(f"  ds_write_b32 v{ca}, v{w[r]} offset:{WB}")
        A(f"  v_lshrrev_b32 v{rk}, 1, v{ca}")
        A(f"  ds_write_b16{'_d16_hi' if r else ''} v{rk}, v{cw}")
    A(f"  s_mov_b64 exec, -1")

def ins_set(st):
    ops = []
    def emitA(i):
        ins_A((RR(st,i,0), RR(st,i,1)), i % NSET); ops.extend([('a', i)]*2)
    def emitB(i):
        last = max(k for k, o in enumerate(ops) if o == ('a', i))
        A(f"  s_waitcnt lgkmcnt({min(len(ops) - 1 - last, 15)})")
        ins_B((RR(st,i,0), RR(st,i,1)), RR(st,i,2), i % NSET); ops.extend([('w', i)]*4)
    for i in range(NSET): emitA(i)
    for i in range(8):
        emitB(i)
        if i + NSET < 8: emitA(i + NSET)

def iw_T0(dst, c_sreg, add=0):
    A(f"  s_add_u32 s{dst}, s{c_sreg}, {add}")
    A(f"  s_and_b32 s{dst}, s{dst}, 1")
    A(f"  s_mul_i32 s{dst}, s{dst}, 250")
    A(f"  s_add_u32 s{dst}, s{dst}, s60")

def iw_issue_raw(st, desc, c_sreg, add):
    iw_T0(57, c_sreg, add)
    A(f"  s_mul_i32 s57, s57, {TILE_BYTES}")
    for i in range(8):
        A(f"  ds_bpermute_b32 v{RR(st,i,0)}, v{vPerm}, v{desc} offset:{16*i}")
    for i in range(8):
        d = RR(st,i,0)
        A(f"  s_waitcnt lgkmcnt({7-i})")
        A(f"  v_and_b32 v{vT0}, 0xffff, v{d}")
        A(f"  v_lshrrev_b32 v{vT1}, 16, v{d}")
        A(f"  v_add_u32 v{vT0}, v{vT0}, v{vL15}")
        A(f"  v_cmp_lt_u32 vcc, v{vT0}, v{vT1}")
        A(f"  v_mad_u32_u24 v{vT0}, v{vT0}, 12, v{vTileJ}")
        A(f"  s_nop 0")
        A(f"  v_cndmask_b32 v{vT0}, v{vOOB}, v{vT0}, vcc")
        if "sc1" in RAW_NT: A(f"  buffer_load_dwordx4 v[{d}:{d+3}], v{vT0}, s[12:15], s57 offen{RAW_NT}")
        else: A(f"  buffer_load_dwordx3 v[{d}:{d+2}], v{vT0}, s[12:15], s57 offen{RAW_NT}")
        if i < 7: A(f"  s_add_u32 s57, s57, {4*TILE_BYTES}")

def iw_desc_load(dst, c_sreg, add):
    A(f"  s_add_u32 s59, s{c_sreg}, {add}")
    A(f"  s_lshr_b32 s58, s59, 1")
    A(f"  s_lshl_b32 s58, s58, 8")
    A(f"  s_add_u32 s58, s58, s3")
    A(f"  s_lshl_b32 s58, s58, 9")
    A(f"  s_and_b32 s59, s59, 1")
    A(f"  s_mul_i32 s59, s59, 250")
    A(f"  s_add_u32 s59, s59, s60")
    A(f"  s_add_u32 s58, s58, s59")
    A(f"  s_lshl_b32 s58, s58, 2")
    A(f"  buffer_load_dword v{dst}, v{vDescOff}, s[16:19], s58 offen{RAW_NT}")

def iw_chunk(st):
    t = f"L_iw{st}"
    A(f"  s_lshr_b32 s87, s61, 1")
    A(f"  s_mul_i32 s87, s87, {NGW}")
    stampk(sreg=61, add=0)
    poll(vFlag, F_DONE + 4*st, 87, f"{t}_poll", vT0, 88, int(os.environ.get("ISLEEP", "4")))
    A(f"  v_mov_b32 v{vCntB}, {CNT + 512*st}")
    A(f"  s_mov_b32 s53, {(PB*st - (CNT + 512*st)*(BS//4)) & 0xffffffff:#x}")
    A(f"  s_waitcnt vmcnt(9)")
    stampk(sreg=61, add=8)
    ins_set(st)
    A(f"  v_and_b32 v{vT0}, 0xffff, v{vD0}")
    A(f"  v_lshrrev_b32 v{vT1}, 16, v{vD0}")
    A(f"  v_add_u32 v{vT0}, 16, v{vT0}")
    A(f"  v_cmp_lt_u32 s[80:81], v{vT0}, v{vT1}")
    iw_T0(86, 61)
    A(f"{t}_long:")
    A(f"  s_cmp_eq_u64 s[80:81], 0")
    A(f"  s_cbranch_scc1 {t}_long_done")
    A(f"  s_ff1_i32_b64 s82, s[80:81]")
    A(f"  s_bitset0_b64 s[80:81], s82")
    A(f"  v_readlane_b32 s83, v{vD0}, s82")
    A(f"  s_add_u32 s84, s86, s82")
    A(f"  s_mul_i32 s84, s84, {TILE_BYTES}")
    A(f"  s_lshr_b32 s85, s83, 16")
    A(f"  s_and_b32 s83, s83, 0xffff")
    A(f"  s_add_u32 s83, s83, 16")
    A(f"{t}_long_win:")
    A(f"  v_add_u32 v{vT0}, s83, v1")
    A(f"  v_cmp_gt_u32 vcc, s85, v{vT0}")
    A(f"  v_mul_u32_u24 v{vT0}, 12, v{vT0}")
    A(f"  s_nop 0")
    A(f"  v_cndmask_b32 v{vT0}, v{vOOB}, v{vT0}, vcc")
    L = RR(st,0,0)
    if "sc1" in RAW_NT: A(f"  buffer_load_dwordx4 v[{L}:{L+3}], v{vT0}, s[12:15], s84 offen{RAW_NT}")
    else: A(f"  buffer_load_dwordx3 v[{L}:{L+2}], v{vT0}, s[12:15], s84 offen")
    A(f"  s_waitcnt vmcnt(0)")
    ins_A((L, L+1), 0)
    A(f"  s_waitcnt lgkmcnt(0)")
    ins_B((L, L+1), L+2, 0)
    A(f"  s_add_u32 s83, s83, 64")
    A(f"  s_cmp_lt_u32 s83, s85")
    A(f"  s_cbranch_scc1 {t}_long_win")
    A(f"  s_branch {t}_long")
    A(f"{t}_long_done:")
    A(f"  s_cmp_eq_u64 s[54:55], 0")
    A(f"  s_cbranch_scc1 {t}_noovf")
    A(f"  ds_write_b32 v{vFlag}, v{vOne} offset:{F_OVF}")
    A(f"{t}_noovf:")
    A(f"  s_waitcnt lgkmcnt(0)")
    A(f"  s_mov_b64 exec, 1")
    A(f"  ds_add_u32 v{vFlag}, v{vOne} offset:{F_RDY + 4*st}")
    A(f"  s_mov_b64 exec, -1")
    stampk(sreg=61, add=16)
    A(f"  s_add_u32 s62, s61, 2")
    A(f"  s_cmp_ge_u32 s62, {NCH}")
    A(f"  s_cbranch_scc1 {t}_noraw")
    A(f"  s_waitcnt vmcnt(0)")
    iw_issue_raw(st, vD2, 61, 2)
    A(f"  s_add_u32 s62, s61, 3")
    A(f"  s_cmp_ge_u32 s62, {NCH}")
    A(f"  v_mov_b32 v{vD0}, v{vD1}")
    A(f"  v_mov_b32 v{vD1}, v{vD2}")
    A(f"  s_cbranch_scc1 {t}_nodesc")
    iw_desc_load(vD2, 61, 3)
    A(f"  s_branch {t}_nodesc")
    A(f"{t}_noraw:")
    A(f"  s_waitcnt vmcnt(0)")
    A(f"  v_mov_b32 v{vD0}, v{vD1}")
    A(f"{t}_nodesc:")
    A(f"  s_add_u32 s61, s61, 1")

def gen_iwave():
    A("L_k2_iwave:")
    A(f"  s_setprio {os.environ.get('IPRIO', '3')}")
    A("  s_sub_u32 s60, s35, 8")
    A("  s_lshl_b32 s60, s60, 5")
    A("  s_mov_b32 s52, 0x1fc")
    A("  s_mov_b64 s[54:55], 0")
    A(f"  v_mov_b32 v{vOOB}, {OOB:#x}")
    A(f"  v_add_u32 v{vDescOff}, s60, v1")
    A(f"  v_cmp_gt_u32 vcc, 250, v{vDescOff}")
    A(f"  v_cmp_gt_u32 s[40:41], 32, v1")
    A(f"  v_lshlrev_b32 v{vDescOff}, 2, v1")
    A(f"  s_and_b64 vcc, vcc, s[40:41]")
    A(f"  s_nop 1")
    A(f"  v_cndmask_b32 v{vDescOff}, v{vOOB}, v{vDescOff}, vcc")
    A("  s_mov_b32 s61, 0")
    if F0:
        A(f"  v_mov_b32 v{vFlag}, {FLG}")
        A("  s_barrier")
        A("  s_cmp_lg_u32 s35, 8"); A("  s_cbranch_scc1 L_i_lpoll")
        A("L_i_nw:")
        A(f"  ds_read_b64 v[16:17], v{vFlag} offset:24"); A("  s_waitcnt lgkmcnt(0)")
        A("  v_readfirstlane_b32 s28, v16"); A("  v_readfirstlane_b32 s29, v17"); A("  s_nop 3")
        A("  s_cmp_lg_u32 s28, 0"); A("  s_cbranch_scc1 L_i_nok")
        A("  s_cmp_eq_u32 s97, 0"); A("  s_cbranch_scc1 L_i_nok"); A("  s_sub_u32 s97, s97, 1")
        A("  s_sleep 2"); A("  s_branch L_i_nw")
        A("L_i_nok:")
        A("  s_and_b32 s62, s2, 7"); A("  s_lshl_b32 s62, s62, 13")
        A(f"  v_lshlrev_b32 v{vT1}, 3, v1")
        A("L_i_rpoll:")
        for k in range(8):
            if k == 7: A("  s_bfm_b64 exec, 52, 0")
            A(f"  buffer_load_dwordx2 v[{16+2*k}:{17+2*k}], v{vT1}, s[24:27], s62 offen offset:{512*k} sc1")
        A("  s_mov_b64 exec, -1"); A("  s_waitcnt vmcnt(0)"); A("  s_mov_b64 s[64:65], -1")
        for k in range(8):
            if k == 7: A("  s_bfm_b64 exec, 52, 0")
            A(f"  v_cmp_ne_u64 vcc, s[28:29], v[{16+2*k}:{17+2*k}]")
            A(f"  s_cmp_eq_u64 vcc, 0"); A(f"  s_cselect_b64 s[64:65], s[64:65], 0")
        A("  s_mov_b64 exec, -1")
        A("  s_cmp_lg_u64 s[64:65], 0"); A("  s_cbranch_scc1 L_i_rok")
        A("  s_cmp_eq_u32 s97, 0"); A("  s_cbranch_scc1 L_i_rok"); A("  s_sub_u32 s97, s97, 1")
        A(f"  s_sleep {os.environ.get('RSLEEP', '8')}"); A("  s_branch L_i_rpoll")
        A("L_i_rok:")
        A(f"  v_mov_b32 v{vT0}, 1"); A(f"  ds_write_b32 v{vFlag}, v{vT0} offset:20")
        A("  s_branch L_i_rdone")
        A("L_i_lpoll:")
        A("  s_mov_b32 s62, 1")
        poll(vFlag, 20, 62, "L_i_lp", vT0, 63, 2)
        A("L_i_rdone:")
        stampk(k=42)
    iw_desc_load(vD0, 61, 0)
    iw_desc_load(vD1, 61, 1)
    iw_desc_load(vD2, 61, 2)
    A(f"  v_mov_b32 v{vOne}, 1")
    A(f"  v_mov_b32 v{vKB}, {BS//4}")
    A(f"  v_lshrrev_b32 v{vPerm}, 4, v1")
    A(f"  v_mov_b32 v{vTileJ}, {TILE_BYTES}")
    A(f"  v_mul_lo_u32 v{vTileJ}, v{vTileJ}, v{vPerm}")
    A(f"  v_lshlrev_b32 v{vPerm}, 2, v{vPerm}")
    A(f"  v_and_b32 v{vL15}, 15, v1")
    A(f"  v_mov_b32 v{vFlag}, {FLG}")
    A("  s_waitcnt vmcnt(2)")
    iw_issue_raw(0, vD0, 61, 0)
    A("  s_waitcnt vmcnt(9)")
    out[-1] = "  s_waitcnt vmcnt(9)"
    iw_issue_raw(1, vD1, 61, 1)
    if not F0: A("  s_barrier")
    A("  s_waitcnt vmcnt(8)")
    A("L_iw_loop:")
    iw_chunk(0)
    iw_chunk(1)
    A(f"  s_cmp_lt_u32 s61, {NCH}")
    A("  s_cbranch_scc1 L_iw_loop")
    gen_epilogue()
    stamp_flush()
    A("  s_endpgm")

D = int(os.environ.get("GD", "2")); U = D + 1; LEAD = D + 2; MINT = D + 3
assert U % 3 == 0
B1A, B1B, DA, DB, A2 = 18, 22, 26, 30, 34
XR = lambda u: 38 + 4*(u % U)
WR = lambda u: 38 + 4*U + (u % U)
CR = lambda u: 38 + 5*U + (u % U)
B2 = lambda p: 38 + 6*U + 4*(p % 3)
assert 38 + 6*U + 12 <= 88
ACC = lambda j: 88 + 4*j
vLane4, vHalf16, vSelW, vSelR, vZero, vList, vG, vA, vA2, vS, vFl, vOne1, vBin, vLA = 2, 3, 4, 5, 6, 7, 8, 9, 10, 11, 12, 13, 14, 16
vF0 = DA
T0, T1, T2, T3 = DA, DA+1, DA+2, DA+3
sM1 = 44; sT = 45; sD = 46; sLeft = 47
sNB = 48
sTot = 58; sCI = 59; sCC = 60
sNBn = 64
sLo = 80

def g_body(j, u):
    A(f"L_g_{j}_{u}:")
    if os.environ.get("GPRIO", "") == "iter": A(f"  s_setprio {u % 3}")
    A(f"  s_waitcnt lgkmcnt(6)")
    A(f"  v_and_or_b32 v{vG}, v{WR(u+D)}, s{sM1}, v{vHalf16}")
    if "noload" not in EXP:
        A(f"  buffer_load_dwordx4 {vr(XR(u+D))}, v{vG}, s[8:11], 0 offen")
        A(f"  s_waitcnt vmcnt({D})")
    A(f"  v_mfma_f32_16x16x32_bf16 {vr(DA)}, {vr(XR(u))}, {vr(B1A)}, 0")
    A(f"  v_mfma_f32_16x16x32_bf16 {vr(DB)}, {vr(XR(u))}, {vr(B1B)}, 0")
    A(f"  v_readlane_b32 s{sD}, v{vList}, s{sT}")
    A(f"  s_add_u32 s{sT}, s{sT}, 1")
    A(f"  v_and_or_b32 v{vA2}, v{WR(u+2)}, 30, v{vSelW}")
    A(f"  v_add_u32 v{vA}, s{sD}, v{vLane4}")
    A(f"  ds_write_b16 v{vS}, v{vZero}")
    A(f"  ds_write_b16 v{vA2}, v{CR(u+2)}")
    A(f"  v_mov_b32 v{vS}, v{vA2}")
    A(f"  ds_read_b64_tr_b16 {vr(B2(u+2),2)}, v{vSelR}")
    A(f"  ds_read_b64_tr_b16 {vr(B2(u+2)+2,2)}, v{vSelR} offset:512")
    A(f"  ds_read_b32 v{WR(u+D+2)}, v{vA} offset:{WB}")
    A(f"  v_lshrrev_b32 v{vA}, 1, v{vA}")
    A(f"  ds_read_u16 v{CR(u+D+2)}, v{vA}")
    A(f"  v_cvt_pk_bf16_f32 v{A2}, v{DA}, v{DA+1}")
    A(f"  v_cvt_pk_bf16_f32 v{A2+1}, v{DA+2}, v{DA+3}")
    A(f"  v_cvt_pk_bf16_f32 v{A2+2}, v{DB}, v{DB+1}")
    A(f"  v_cvt_pk_bf16_f32 v{A2+3}, v{DB+2}, v{DB+3}")
    A(f"  s_cmp_eq_u32 s{sT}, s{sTot}")
    A(f"  s_cbranch_scc1 L_gc_{j}_{u}")
    A(f"L_gb_{j}_{u}:")
    A(f"  s_sub_u32 s{sLeft}, s{sLeft}, 1")
    A(f"  v_mfma_f32_16x16x32_bf16 {vr(ACC(j))}, {vr(A2)}, {vr(B2(u))}, {vr(ACC(j))}")
    A(f"  s_cbranch_scc1 L_gn_{j+1}_{(u+1)%U}")
    if u == U-1:
        A(f"  s_branch L_g_{j}_0")

def g_callstub(j, u):
    A(f"L_gc_{j}_{u}:")
    A(f"  s_call_b64 s[30:31], L_setup")
    A(f"  s_branch L_gb_{j}_{u}")

def g_next(j, u):
    A(f"L_gn_{j}_{u}:")
    if j == GPW:
        A(f"  s_add_u32 s{sCC}, s{sCC}, 1")
        stampk(sreg=sCC, add=0)
        A(f"  s_cmp_eq_u32 s{sCC}, {NCH}")
        A(f"  s_cbranch_scc1 L_g_end")
        for k in range(0, GPW, 2):
            A(f"  s_mov_b64 s[{sNB+k}:{sNB+k+1}], s[{sNBn+k}:{sNBn+k+1}]")
        A(f"  s_branch L_gn_0_{u}")
        return
    A(f"  s_sub_u32 s{sLeft}, s{sNB+j}, 1")
    A(f"  s_cbranch_scc1 L_gn_{j+1}_{u}")
    A(f"  s_branch L_g_{j}_{u}")

def fill_own_bins(sreg_p):
    for k in range(4):
        A(f"  v_mov_b32 v{vF0+k}, {DUMMY_W:#x}")
        A(f"  v_mov_b32 v{vF0+4+k}, 0")
    A(f"  s_mul_i32 s76, s{sreg_p}, {PB}")
    A(f"  s_mul_i32 s77, s35, {GPW*BS}")
    A(f"  s_add_u32 s76, s76, s77")
    A(f"  v_add_u32 v{vA}, s76, v{vLA}")
    for k in range(5):
        A(f"  ds_write_b128 v{vA}, {vr(vF0)} offset:{WB + 1024*k}")
    A(f"  s_mov_b64 exec, 0x3ff")
    A(f"  ds_write_b128 v{vA}, {vr(vF0)} offset:{WB + 5120}")
    A(f"  s_mov_b64 exec, -1")
    A(f"  s_lshr_b32 s76, s76, 1")
    A(f"  v_add_u32 v{vA}, s76, v{vLA}")
    A(f"  ds_write_b128 v{vA}, {vr(vF0+4)}")
    A(f"  ds_write_b128 v{vA}, {vr(vF0+4)} offset:1024")
    A(f"  s_mov_b64 exec, 0x{(1<<37)-1:x}") if False else None
    A(f"  s_bfm_b64 exec, 37, 0")
    A(f"  ds_write_b128 v{vA}, {vr(vF0+4)} offset:2048")
    A(f"  s_mov_b64 exec, -1")

def g_setup():
    A("L_setup:")
    A(f"  s_waitcnt lgkmcnt(0)")
    stampk(sreg=sCI, add=17)
    A(f"  s_cmp_lt_i32 s{sCI}, 0")
    A(f"  s_cbranch_scc1 L_su_nosig")
    A(f"  s_and_b32 s75, s{sCI}, 1")
    fill_own_bins(75)
    A(f"  s_lshl_b32 s75, s75, 2")
    A(f"  v_add_u32 v{vA}, s75, v{vFl}")
    A(f"  s_waitcnt lgkmcnt(0)")
    A(f"  s_mov_b64 exec, 1")
    A(f"  ds_add_u32 v{vA}, v{vOne1} offset:{F_DONE}")
    A(f"  s_mov_b64 exec, -1")
    A("L_su_nosig:")
    A(f"  s_add_u32 s{sCI}, s{sCI}, 1")
    A(f"  v_lshrrev_b32 v{vG}, 2, v{vLA}")
    A(f"  s_lshl_b32 s76, s35, 8")
    A(f"  s_add_u32 s76, s76, {LIST}")
    A(f"  v_add_u32 v{vG}, s76, v{vG}")
    A(f"  s_cmp_lt_u32 s{sCI}, {NCH}")
    A(f"  s_cbranch_scc1 L_su_real")
    A(f"  v_mov_b32 v{vList}, {DUMMY_X}")
    A(f"  s_mov_b32 s{sTot}, 0x7fffffff")
    A(f"  s_mov_b32 s{sT}, 0")
    A(f"  s_setpc_b64 s[30:31]")
    A("L_su_real:")
    A(f"  v_mov_b32 v{vList}, {DUMMY_X}")
    A(f"  ds_write_b32 v{vG}, v{vList}")
    A(f"  s_and_b32 s75, s{sCI}, 1")
    A(f"  s_lshl_b32 s77, s75, 2")
    A(f"  v_add_u32 v{vA}, s77, v{vFl}")
    A(f"  s_lshr_b32 s77, s{sCI}, 1")
    A(f"  s_add_u32 s77, s77, 1")
    A(f"  s_mul_i32 s77, s77, {NIW}")
    poll(vA, F_RDY, 77, "L_su_poll", vA2, 78, 2)
    A(f"  s_lshl_b32 s77, s75, 9")
    A(f"  s_mul_i32 s78, s35, {GPW*4}")
    A(f"  s_add_u32 s77, s77, s78")
    A(f"  s_add_u32 s77, s77, {CNT}")
    A(f"  v_lshrrev_b32 v{vA}, 2, v{vLA}")
    A(f"  v_add_u32 v{vA}, s77, v{vA}")
    A(f"  s_mov_b64 exec, 0x3ff")
    A(f"  v_mov_b32 v{T0}, 0")
    A(f"  s_mov_b64 exec, -1")
    A(f"  v_mov_b32 v{T0}, 0")
    A(f"  s_mov_b64 exec, 0x3ff")
    A(f"  ds_read_b32 v{T0}, v{vA}")
    A(f"  s_waitcnt lgkmcnt(0)")
    A(f"  ds_write_b32 v{vA}, v{vZero}")
    A(f"  s_mov_b64 exec, -1")
    A(f"  v_min_u32 v{T0}, {CAP}, v{T0}")
    A(f"  v_add_u32 v{T0}, 31, v{T0}")
    A(f"  v_lshrrev_b32 v{T0}, 5, v{T0}")
    A(f"  v_mov_b32 v{T1}, v{T0}")
    A(f"  s_mul_i32 s77, s75, {PB}")
    A(f"  s_mul_i32 s78, s35, {GPW*BS}")
    for sh in (1, 2, 4, 8):
        A(f"  s_nop 0") if sh > 1 else A(f"  s_add_u32 s77, s77, s78")
        A(f"  v_add_u32_dpp v{T1}, v{T1}, v{T1} row_shr:{sh} row_mask:0xf bank_mask:0xf bound_ctrl:0")
        A(f"  s_nop 0")
    A(f"  v_add_u32 v{T2}, s77, v{vBin}")
    A(f"  v_sub_u32 v{T3}, v{T1}, v{T0}")
    A(f"  v_lshl_add_u32 v{T3}, v{T3}, 2, s76")
    for i in range(4):
        A(f"  v_cmp_lt_u32 vcc, {i}, v{T0}")
        A(f"  s_and_saveexec_b64 s[78:79], vcc")
        A(f"  ds_write_b32 v{T3}, v{T2} offset:{4*i}")
        A(f"  s_mov_b64 exec, s[78:79]")
        if i < 3: A(f"  v_add_u32 v{T2}, 128, v{T2}")
    A(f"  ds_read_b32 v{vList}, v{vG}")
    for j in range(GPW):
        A(f"  v_readlane_b32 s{sNBn+j}, v{T0}, {j}")
    A(f"  v_readlane_b32 s77, v{T1}, {GPW-1}")
    A(f"  s_nop 2")
    A(f"  s_max_u32 s{sTot}, s77, {MINT}")
    A(f"  s_sub_u32 s77, s{sTot}, s77")
    A(f"  s_add_u32 s{sNBn+GPW-1}, s{sNBn+GPW-1}, s77")
    A(f"  s_mov_b32 s{sT}, 0")
    A(f"  s_waitcnt lgkmcnt(0)")
    A(f"  s_setpc_b64 s[30:31]")

def gen_gwave():
    A(f"  s_load_dwordx2 s[38:39], s[0:1], 72")
    PFL = int(os.environ.get("PFL", "0"))
    if PFL:
        A("  s_lshr_b32 s40, s2, 3"); A("  s_lshl_b32 s40, s40, 9"); A("  s_lshl_b32 s41, s35, 6"); A("  s_add_u32 s40, s40, s41")
        A("  v_add_u32 v16, s40, v1"); A("  v_lshlrev_b32 v16, 7, v16")
        for k in range((PFL + 16383) // 16384):
            A(f"  s_mov_b32 s42, {k*16384*128}")
            A(f"  buffer_load_dword v{76+k}, v16, s[8:11], s42 offen")
    lds_init()
    A(f"  v_and_b32 v{vLane4}, 31, v1")
    A(f"  v_lshlrev_b32 v{vLane4}, 2, v{vLane4}")
    A(f"  v_lshrrev_b32 v{vHalf16}, 5, v1")
    A(f"  v_lshlrev_b32 v{vHalf16}, 4, v{vHalf16}")
    A(f"  v_lshlrev_b32 v{vLA}, 4, v1")
    A(f"  v_mul_u32_u24 v{vBin}, {BS}, v1")
    A(f"  s_mov_b32 s{sM1}, {DUMMY_W:#x}")
    A(f"  s_lshl_b32 s40, s35, 10")
    A(f"  s_add_u32 s40, s40, {SEL}")
    A(f"  v_and_b32 v20, 31, v1")
    A(f"  v_lshl_add_u32 v{vSelW}, v20, 5, s40")
    A(f"  v_lshl_add_u32 v{vSelR}, v1, 3, s40")
    srd(28, 38, 512)
    A(f"  v_lshrrev_b32 v19, 4, v1")
    A(f"  v_and_b32 v18, 15, v1")
    A(f"  v_lshrrev_b32 v20, 1, v19")
    A(f"  v_lshlrev_b32 v20, 8, v20")
    A(f"  v_lshl_add_u32 v20, v18, 1, v20")
    for jj in range(8):
        A(f"  buffer_load_ushort v{DA+jj}, v20, s[28:31], 0 offen offset:{32*jj}")
    A(f"  v_mov_b32 v{vZero}, 0")
    A(f"  v_mov_b32 v{vFl}, {FLG}")
    A(f"  v_mov_b32 v{vOne1}, 1")
    A(f"  v_mov_b32 v{vS}, v{vSelW}")
    A(f"  v_and_b32 v21, 1, v19")
    A(f"  v_cmp_eq_u32 s[40:41], 0, v21")
    for u in range(U):
        for k in range(4):
            A(f"  v_mov_b32 v{XR(u)+k}, 0")
        A(f"  v_mov_b32 v{WR(u)}, {DUMMY_W:#x}")
        A(f"  v_mov_b32 v{CR(u)}, 0")
    for p in range(3):
        for k in range(4):
            A(f"  v_mov_b32 v{B2(p)+k}, 0")
    for j in range(GPW):
        for k in range(4):
            A(f"  v_mov_b32 v{ACC(j)+k}, 0")
    A(f"  s_waitcnt vmcnt(0)")
    for k in range(4):
        A(f"  v_lshl_or_b32 v{DA+k}, v{DA+1+2*k}, 16, v{DA+2*k}")
    for k in range(4):
        A(f"  v_cndmask_b32 v{B1A+k}, v{vZero}, v{DA+k}, s[40:41]")
        A(f"  v_cndmask_b32 v{B1B+k}, v{DA+k}, v{vZero}, s[40:41]")
    A("  s_barrier")
    if F0:
        A("  s_cmp_lg_u32 s35, 0"); A("  s_cbranch_scc1 L_g_nonon")
        A("  v_mov_b32 v76, s60"); A("  v_mov_b32 v77, s61")
        A(f"  ds_write_b64 v{vFl}, v[76:77] offset:24")
        A("L_g_nonon:")
    A(f"  s_mov_b32 s{sCI}, -1")
    A(f"  s_mov_b32 s{sCC}, 0")
    A(f"  s_call_b64 s[30:31], L_setup")
    for k in range(0, GPW, 2):
        A(f"  s_mov_b64 s[{sNB+k}:{sNB+k+1}], s[{sNBn+k}:{sNBn+k+1}]")
    A(f"  s_add_u32 s{sLeft}, s{sNB}, {LEAD-1}")
    for j in range(GPW):
        for u in range(U):
            g_body(j, u)
    for j in range(GPW):
        for u in range(U):
            g_callstub(j, u)
    for j in range(0, GPW+1):
        for u in range(U):
            g_next(j, u)
    g_setup()
    A("L_g_end:")
    A("  s_waitcnt vmcnt(0) lgkmcnt(0)")
    A("  s_nop 7")
    A(f"  s_mul_i32 s76, s35, {GPW*BS}")
    A(f"  s_add_u32 s76, s76, {WB}")
    A(f"  v_add_u32 v{vA}, s76, v{vLA}")
    for j in range(GPW):
        A(f"  ds_write_b128 v{vA}, {vr(ACC(j))} offset:{(j//5)*PB + (j%5)*1024}")
    A(f"  s_lshl_b32 s76, s35, 2")
    A(f"  v_add_u32 v{vA}, s76, v{vFl}")
    A(f"  s_waitcnt lgkmcnt(0)")
    A(f"  s_mov_b64 exec, 1")
    A(f"  ds_write_b32 v{vA}, v{vOne1} offset:{F_FIN}")
    A(f"  s_mov_b64 exec, -1")
    A(f"  s_waitcnt lgkmcnt(0)")
    stamp_flush()

def gen_epilogue():
    A("  s_load_dwordx2 s[36:37], s[0:1], 24")
    A("  s_load_dwordx2 s[38:39], s[0:1], 40")
    A("  s_load_dwordx4 s[40:43], s[0:1], 56")
    A("  s_load_dwordx4 s[44:47], s[0:1], 80")
    A("  s_waitcnt lgkmcnt(0)")
    srd(12, 36, E*2); srd(16, 46, E*32); srd(20, 38, 16); srd(24, 40, 256); srd(28, 42, 256); srd(48, 44, 512)
    n, q = 2, 3
    A(f"  v_and_b32 v{n}, 15, v1"); A(f"  v_lshrrev_b32 v{q}, 4, v1")
    A(f"  v_lshlrev_b32 v4, 6, v{q}"); A(f"  v_lshl_add_u32 v4, v{n}, 1, v4")
    A("  buffer_load_ushort v96, v4, s[28:31], 0 offen"); A("  buffer_load_ushort v97, v4, s[28:31], 0 offen offset:32")
    A("  buffer_load_ushort v98, v4, s[24:27], 0 offen"); A("  buffer_load_ushort v99, v4, s[24:27], 0 offen offset:32")
    A(f"  v_lshlrev_b32 v4, 7, v{q}"); A(f"  v_lshl_add_u32 v4, v{n}, 1, v4")
    for k in range(4): A(f"  buffer_load_ushort v{100+k}, v4, s[48:51], 0 offen offset:{32*k}")
    A(f"  v_lshlrev_b32 v4, 2, v{q}")
    A("  buffer_load_ushort v104, v4, s[20:23], 0 offen"); A("  buffer_load_ushort v105, v4, s[20:23], 0 offen offset:2")
    A("  s_sub_u32 s52, s35, 8"); A(f"  s_mul_i32 s52, s52, {GPW*16}")
    A(f"  v_add_u32 v5, s52, v{n}")
    A("  s_mul_i32 s53, s3, 1250")
    for j in range(GPW):
        A(f"  v_add_u32 v6, s53, v5")
        if j: A(f"  v_add_u32 v6, {16*j}, v6")
        A(f"  v_lshlrev_b32 v7, 1, v6")
        A(f"  buffer_load_ushort v{16+8*j}, v7, s[12:15], 0 offen")
        A(f"  v_lshlrev_b32 v7, 5, v6")
        A(f"  v_lshl_add_u32 v7, v{q}, 3, v7")
        A(f"  buffer_load_dwordx2 v[{22+8*j}:{23+8*j}], v7, s[8:11], 0 offen")
    A(f"  s_waitcnt vmcnt({2*GPW})")
    A("  v_lshl_or_b32 v108, v97, 16, v96"); A("  v_lshl_or_b32 v112, v99, 16, v98")
    A("  v_lshl_or_b32 v116, v101, 16, v100"); A("  v_lshl_or_b32 v117, v103, 16, v102")
    A("  v_mov_b32 v118, v116"); A("  v_mov_b32 v119, v117")
    for r in (109, 110, 111, 113, 114, 115, 121, 122, 123): A(f"  v_mov_b32 v{r}, 0")
    A("  v_lshlrev_b32 v104, 16, v104"); A("  v_lshlrev_b32 v105, 16, v105")
    A("  s_mov_b32 s54, 0xffff0000"); A(f"  s_mov_b32 s55, {f2u(-10.0):#x}"); A(f"  s_mov_b32 s56, {f2u(LOG2E):#x}")
    A("  s_waitcnt vmcnt(0)")
    for j in range(GPW):
        b = 16 + 8*j
        A(f"  v_lshlrev_b32 v8, 16, v{b}")
        A(f"  v_sub_f32 v9, v8, v104"); A(f"  v_sub_f32 v10, v8, v105")
        for step, op in enumerate(["sq", "m10", "exp"]):
            A(f"  v_cvt_pk_bf16_f32 v11, v9, v10")
            A(f"  v_lshlrev_b32 v9, 16, v11"); A(f"  v_and_b32 v10, s54, v11")
            if op == "sq":
                A(f"  v_mul_f32 v9, v9, v9"); A(f"  v_mul_f32 v10, v10, v10")
            elif op == "m10":
                A(f"  v_mul_f32 v9, s55, v9"); A(f"  v_mul_f32 v10, s55, v10")
            else:
                A(f"  v_mul_f32 v9, s56, v9"); A(f"  v_mul_f32 v10, s56, v10")
                A(f"  v_exp_f32 v9, v9"); A(f"  v_exp_f32 v10, v10"); A(f"  s_nop 0")
        A(f"  v_cvt_pk_bf16_f32 v120, v9, v10")
        A(f"  s_nop 1")
        A(f"  v_mfma_f32_16x16x32_bf16 v[{b}:{b+3}], v[108:111], v[120:123], 0")
        A(f"  v_mfma_f32_16x16x32_bf16 v[96:99], v[112:115], v[120:123], 0")
        A(f"  s_nop 7")
        A(f"  v_cvt_pk_bf16_f32 v{b+4}, v96, v97")
        A(f"  v_cvt_pk_bf16_f32 v{b+5}, v98, v99")
    stampk(k=40)
    A("  s_sub_u32 s57, s35, 8"); A("  s_lshl_b32 s58, s57, 2")
    A(f"  v_mov_b32 v4, {FLG}"); A("  v_add_u32 v4, s58, v4")
    A("  s_mov_b32 s59, 1")
    poll(4, F_FIN, 59, "L_ep_poll", 6, 58, int(os.environ.get("ESLEEP", "2")))
    stampk(k=41)
    A(f"  s_mul_i32 s57, s57, {GPW*BS}"); A(f"  s_add_u32 s57, s57, {WB}")
    A("  v_lshlrev_b32 v4, 4, v1"); A("  v_add_u32 v4, s57, v4")
    A(f"  v_mov_b32 v124, {OOB:#x}"); A("  s_movk_i32 s57, 1250")
    for j in range(GPW):
        b = 16 + 8*j
        acc = 96 + 4*(j % 2)
        if j == 0:
            A(f"  ds_read_b128 v[96:99], v4 offset:0")
        if j + 1 < GPW:
            jn = j + 1
            A(f"  ds_read_b128 v[{96+4*(jn%2)}:{99+4*(jn%2)}], v4 offset:{(jn//5)*PB + (jn%5)*1024}")
            A(f"  s_waitcnt lgkmcnt(1)")
        else:
            A(f"  s_waitcnt lgkmcnt(0)")
        for k in range(4): A(f"  v_mul_f32 v{8+k}, v{acc+k}, v{b+k}")
        A(f"  v_cvt_pk_bf16_f32 v104, v8, v9"); A(f"  v_cvt_pk_bf16_f32 v105, v10, v11")
        A(f"  v_lshlrev_b32 v12, 16, v104"); A(f"  v_and_b32 v13, s54, v104")
        A(f"  v_lshlrev_b32 v14, 16, v105"); A(f"  v_and_b32 v125, s54, v105")
        A(f"  v_sub_f32 v8, v8, v12"); A(f"  v_sub_f32 v9, v9, v13"); A(f"  v_sub_f32 v10, v10, v14"); A(f"  v_sub_f32 v11, v11, v125")
        A(f"  v_cvt_pk_bf16_f32 v106, v8, v9"); A(f"  v_cvt_pk_bf16_f32 v107, v10, v11")
        A(f"  v_add_u32 v6, {16*j}, v5")
        A(f"  v_cmp_gt_u32 vcc, s57, v6")
        A(f"  v_mfma_f32_16x16x32_bf16 v[108:111], v[116:119], v[104:107], 0")
        A(f"  v_add_u32 v6, s53, v6"); A(f"  v_lshlrev_b32 v6, 5, v6"); A(f"  v_lshl_add_u32 v6, v{q}, 3, v6")
        A(f"  v_cndmask_b32 v6, v124, v6, vcc")
        A(f"  v_lshlrev_b32 v8, 16, v{b+4}"); A(f"  v_and_b32 v9, s54, v{b+4}"); A(f"  v_lshlrev_b32 v10, 16, v{b+5}"); A(f"  v_and_b32 v11, s54, v{b+5}")
        A(f"  v_lshlrev_b32 v12, 16, v{b+6}"); A(f"  v_and_b32 v13, s54, v{b+6}"); A(f"  v_lshlrev_b32 v14, 16, v{b+7}"); A(f"  v_and_b32 v125, s54, v{b+7}")
        A(f"  v_fma_f32 v12, v108, v8, v12"); A(f"  v_fma_f32 v13, v109, v9, v13"); A(f"  v_fma_f32 v14, v110, v10, v14"); A(f"  v_fma_f32 v125, v111, v11, v125")
        A(f"  v_cvt_pk_bf16_f32 v{b+4}, v12, v13"); A(f"  v_cvt_pk_bf16_f32 v{b+5}, v14, v125")
        A(f"  buffer_store_dwordx2 v[{b+4}:{b+5}], v6, s[16:19], 0 offen")

def gen_k2():
    k2_prologue()
    gen_gwave()
    A("L_k2_end:")
    A("  s_endpgm")
    gen_iwave()

if __name__ == "__main__":
    A(f"; @launch kernel=k1_kernel grid=(256,1,1) block=(1024,1,1) lds={gen.K1_LDS}")
    A(f"; @launch kernel=k2_kernel grid=(256,1,1) block=(1024,1,1) lds={K2_LDS}")
    A('.amdgcn_target "amdgcn-amd-amdhsa--gfx950"')
    A(".text")
    gen.STAMP = False
    gen_k1()
    gen_k2()
    A('.section .rodata,"a"')
    A(".p2align 6")
    desc_block("k1_kernel", 128)
    A(".p2align 6")
    desc_block("k2_kernel", 128, 100)
    lines = [l for l in out if l is not None]
    open(sys.argv[1], "w").write("\n".join(lines) + "\n")
```

```python
from gen import *
import gen, os, sys

CAP = 128
BS = 528
NGW = 8; GPW = 10; NIW = 8
PB = 80 * BS
WB = PB
SEL = 126976
LIST = SEL + NGW * 1024
CNT = LIST + NGW * 256
FLG = CNT + 1024
K2_LDS = FLG + 128
assert SEL >= 3 * PB and SEL % 1024 == 0 and CNT % 512 == 0
F_OVF, F_RDY, F_DONE, F_FIN, F_NDONE, F_LAST = 0, 4, 12, 32, 64, 68
DUMMY_X = 79 * BS
DUMMY_W = 0x00FFFFE0
OOB = 0x7FFFFF00
LOG2E = 1.4426950408889634
EXP = set(os.environ.get("EXP", "").split(","))
RAW_NT = os.environ.get("RAW_NT", "")
NCH = 8
F0 = False

def vr(b, n=4): return f"v[{b}:{b+n-1}]"
STAMP = os.environ.get("STAMP", "0") == "1"
def stamp_init():
    if not STAMP: return
    A("  s_memtime s[90:91]"); A("  s_memrealtime s[92:93]"); A("  s_waitcnt lgkmcnt(0)"); A("  v_mov_b32 v15, 0")
def stampk(k=None, sreg=None, add=0):
    if not STAMP: return
    A("  s_memtime s[94:95]"); A("  s_waitcnt lgkmcnt(0)"); A("  s_sub_u32 s94, s94, s90")
    if k is not None:
        A(f"  v_writelane_b32 v15, s94, {k}")
    else:
        A(f"  s_add_u32 s95, s{sreg}, {add}"); A("  s_mov_b32 m0, s95"); A("  v_writelane_b32 v15, s94, m0")
def stamp_flush():
    if not STAMP: return
    A("  s_memtime s[94:95]"); A("  s_waitcnt lgkmcnt(0)"); A("  s_sub_u32 s94, s94, s90"); A("  v_writelane_b32 v15, s94, 32")
    A("  s_memrealtime s[94:95]"); A("  s_waitcnt lgkmcnt(0)")
    A("  v_writelane_b32 v15, s92, 34"); A("  v_writelane_b32 v15, s94, 35")
    A("  s_load_dwordx2 s[44:45], s[0:1], 104"); A("  s_waitcnt lgkmcnt(0)")
    srd(48, 44, 256*16*256, 128 << 20)
    A("  s_lshl_b32 s44, s2, 4"); A("  s_add_u32 s44, s44, s35"); A("  s_lshl_b32 s44, s44, 8")
    A("  v_lshlrev_b32 v4, 2, v1"); A("  buffer_store_dword v15, v4, s[48:51], s44 offen"); A("  s_waitcnt vmcnt(0)")

def k2_prologue():
    A(".p2align 8"); A(".globl k2_kernel"); A(".type k2_kernel,@function"); A("k2_kernel:")
    A("  s_cmp_ge_u32 s2, 256"); A("  s_cbranch_scc1 L_k2_end")
    stamp_init()
    A("  s_load_dwordx2 s[4:5], s[0:1], 0")
    A("  s_load_dwordx2 s[6:7], s[0:1], 104")
    A("  s_and_b32 s3, s2, 7"); A("  s_lshl_b32 s3, s3, 5"); A("  s_lshr_b32 s36, s2, 3"); A("  s_add_u32 s3, s3, s36")
    A("  v_lshrrev_b32 v4, 6, v0"); A("  v_and_b32 v1, 63, v0"); A("  v_readfirstlane_b32 s35, v4")
    A("  s_waitcnt lgkmcnt(0)")
    srd(8, 4, E*32)
    srd(12, 6, NT*TILE_BYTES)
    srd(16, 6, NBIN*DESC_ROW, DESC_OFF)
    A("  s_cmp_ge_u32 s35, 8"); A("  s_cbranch_scc1 L_k2_iwave")

def lds_init():
    for r in (8, 9, 10, 11): A(f"  v_mov_b32 v{r}, 0")
    A("  v_lshlrev_b32 v5, 4, v0")
    def region(base, nbytes):
        n16 = nbytes // 16
        k = 0
        cur = None
        while k * 512 < n16:
            addr = base + k * 8192
            seg = addr // 65536
            if seg != cur:
                A(f"  v_add_u32 v6, {seg * 65536}, v5"); cur = seg
            off = addr - seg * 65536
            if (k + 1) * 512 <= n16:
                A(f"  ds_write_b128 v6, v[8:11] offset:{off}")
            else:
                A(f"  v_cmp_gt_u32 vcc, {n16 - k*512}, v0"); A("  s_and_saveexec_b64 s[40:41], vcc")
                A(f"  ds_write_b128 v6, v[8:11] offset:{off}"); A("  s_mov_b64 exec, s[40:41]")
            k += 1
    region(SEL, K2_LDS - SEL)
    region(0, PB)
    for r in (8, 9, 10, 11): A(f"  v_mov_b32 v{r}, {DUMMY_W:#x}")
    region(WB, 2 * PB)
    A("  s_waitcnt lgkmcnt(0)")

def poll(vaddr, off, sneed, label, vtmp, stmp, sleep=2):
    A(f"{label}:")
    A(f"  ds_read_b32 v{vtmp}, v{vaddr} offset:{off}")
    A(f"  s_waitcnt lgkmcnt(0)")
    A(f"  v_readfirstlane_b32 s{stmp}, v{vtmp}")
    A(f"  s_nop 3")
    A(f"  s_cmp_ge_u32 s{stmp}, s{sneed}")
    A(f"  s_cbranch_scc1 {label}_ok")
    A(f"  s_sleep {sleep}")
    A(f"  s_branch {label}")
    A(f"{label}_ok:")

def RR(st, i, k): return 16 + 32*st + 4*i + k
NSET = 4
def CA(st, r): return 80 + 2*st + r
def RK(st, r): return 88 + 2*st + r
def MK(st, r): return 64 + 4*st + 2*r
vCntB, vOne, vPerm, vL15, vTileJ, vOOB, vDescOff, vD0, vD1, vD2, vT0, vT1, vKB, vFlag = 96, 97, 98, 99, 100, 101, 102, 103, 104, 105, 106, 107, 108, 109

def ins_A(w, st):
    for r in range(2):
        A(f"  v_cmp_gt_i32 s[{MK(st,r)}:{MK(st,r)+1}], 0, v{w[r]}")
        A(f"  v_lshrrev_b32 v{CA(st,r)}, 22, v{w[r]}")
        A(f"  v_and_or_b32 v{CA(st,r)}, v{CA(st,r)}, s52, v{vCntB}")
    for r in range(2):
        A(f"  s_mov_b64 exec, s[{MK(st,r)}:{MK(st,r)+1}]")
        A(f"  ds_add_rtn_u32 v{RK(st,r)}, v{CA(st,r)}, v{vOne}")
    A(f"  s_mov_b64 exec, -1")

def ins_B(w, cw, st):
    for r in range(2):
        ca = CA(st,r); rk = RK(st,r)
        A(f"  s_mov_b64 exec, s[{MK(st,r)}:{MK(st,r)+1}]")
        A(f"  v_cmp_lt_u32 vcc, {CAP-1}, v{rk}")
        A(f"  v_min_u32 v{rk}, {CAP-1}, v{rk}")
        A(f"  v_mad_u32_u24 v{ca}, v{ca}, v{vKB}, s53")
        A(f"  s_or_b64 s[54:55], s[54:55], vcc")
        A(f"  v_lshl_add_u32 v{ca}, v{rk}, 2, v{ca}")
        A(f"  ds_write_b32 v{ca}, v{w[r]} offset:{WB}")
        A(f"  v_lshrrev_b32 v{rk}, 1, v{ca}")
        A(f"  ds_write_b16{'_d16_hi' if r else ''} v{rk}, v{cw}")
    A(f"  s_mov_b64 exec, -1")

def ins_set(st):
    ops = []
    def emitA(i):
        ins_A((RR(st,i,0), RR(st,i,1)), i % NSET); ops.extend([('a', i)]*2)
    def emitB(i):
        last = max(k for k, o in enumerate(ops) if o == ('a', i))
        A(f"  s_waitcnt lgkmcnt({min(len(ops) - 1 - last, 15)})")
        ins_B((RR(st,i,0), RR(st,i,1)), RR(st,i,2), i % NSET); ops.extend([('w', i)]*4)
    for i in range(NSET): emitA(i)
    for i in range(8):
        emitB(i)
        if i + NSET < 8: emitA(i + NSET)

def iw_T0(dst, c_sreg, add=0):
    A(f"  s_add_u32 s{dst}, s{c_sreg}, {add}")
    A(f"  s_and_b32 s{dst}, s{dst}, 1")
    A(f"  s_mul_i32 s{dst}, s{dst}, 250")
    A(f"  s_add_u32 s{dst}, s{dst}, s60")

def iw_issue_raw(st, desc, c_sreg, add):
    iw_T0(57, c_sreg, add)
    A(f"  s_mul_i32 s57, s57, {TILE_BYTES}")
    for i in range(8):
        A(f"  ds_bpermute_b32 v{RR(st,i,0)}, v{vPerm}, v{desc} offset:{16*i}")
    for i in range(8):
        d = RR(st,i,0)
        A(f"  s_waitcnt lgkmcnt({7-i})")
        A(f"  v_and_b32 v{vT0}, 0xffff, v{d}")
        A(f"  v_lshrrev_b32 v{vT1}, 16, v{d}")
        A(f"  v_add_u32 v{vT0}, v{vT0}, v{vL15}")
        A(f"  v_cmp_lt_u32 vcc, v{vT0}, v{vT1}")
        A(f"  v_mad_u32_u24 v{vT0}, v{vT0}, 12, v{vTileJ}")
        A(f"  s_nop 0")
        A(f"  v_cndmask_b32 v{vT0}, v{vOOB}, v{vT0}, vcc")
        if "sc1" in RAW_NT: A(f"  buffer_load_dwordx4 v[{d}:{d+3}], v{vT0}, s[12:15], s57 offen{RAW_NT}")
        else: A(f"  buffer_load_dwordx3 v[{d}:{d+2}], v{vT0}, s[12:15], s57 offen{RAW_NT}")
        if i < 7: A(f"  s_add_u32 s57, s57, {4*TILE_BYTES}")

def iw_desc_load(dst, c_sreg, add):
    A(f"  s_add_u32 s59, s{c_sreg}, {add}")
    A(f"  s_lshr_b32 s58, s59, 1")
    A(f"  s_lshl_b32 s58, s58, 8")
    A(f"  s_add_u32 s58, s58, s3")
    A(f"  s_lshl_b32 s58, s58, 9")
    A(f"  s_and_b32 s59, s59, 1")
    A(f"  s_mul_i32 s59, s59, 250")
    A(f"  s_add_u32 s59, s59, s60")
    A(f"  s_add_u32 s58, s58, s59")
    A(f"  s_lshl_b32 s58, s58, 2")
    A(f"  buffer_load_dword v{dst}, v{vDescOff}, s[16:19], s58 offen{RAW_NT}")

def iw_chunk(st):
    t = f"L_iw{st}"
    A(f"  s_lshr_b32 s87, s61, 1")
    A(f"  s_mul_i32 s87, s87, {NGW}")
    stampk(sreg=61, add=0)
    poll(vFlag, F_DONE + 4*st, 87, f"{t}_poll", vT0, 88, int(os.environ.get("ISLEEP", "4")))
    A(f"  v_mov_b32 v{vCntB}, {CNT + 512*st}")
    A(f"  s_mov_b32 s53, {(PB*st - (CNT + 512*st)*(BS//4)) & 0xffffffff:#x}")
    A(f"  s_waitcnt vmcnt(9)")
    stampk(sreg=61, add=8)
    ins_set(st)
    A(f"  v_and_b32 v{vT0}, 0xffff, v{vD0}")
    A(f"  v_lshrrev_b32 v{vT1}, 16, v{vD0}")
    A(f"  v_add_u32 v{vT0}, 16, v{vT0}")
    A(f"  v_cmp_lt_u32 s[80:81], v{vT0}, v{vT1}")
    iw_T0(86, 61)
    A(f"{t}_long:")
    A(f"  s_cmp_eq_u64 s[80:81], 0")
    A(f"  s_cbranch_scc1 {t}_long_done")
    A(f"  s_ff1_i32_b64 s82, s[80:81]")
    A(f"  s_bitset0_b64 s[80:81], s82")
    A(f"  v_readlane_b32 s83, v{vD0}, s82")
    A(f"  s_add_u32 s84, s86, s82")
    A(f"  s_mul_i32 s84, s84, {TILE_BYTES}")
    A(f"  s_lshr_b32 s85, s83, 16")
    A(f"  s_and_b32 s83, s83, 0xffff")
    A(f"  s_add_u32 s83, s83, 16")
    A(f"{t}_long_win:")
    A(f"  v_add_u32 v{vT0}, s83, v1")
    A(f"  v_cmp_gt_u32 vcc, s85, v{vT0}")
    A(f"  v_mul_u32_u24 v{vT0}, 12, v{vT0}")
    A(f"  s_nop 0")
    A(f"  v_cndmask_b32 v{vT0}, v{vOOB}, v{vT0}, vcc")
    L = RR(st,0,0)
    if "sc1" in RAW_NT: A(f"  buffer_load_dwordx4 v[{L}:{L+3}], v{vT0}, s[12:15], s84 offen{RAW_NT}")
    else: A(f"  buffer_load_dwordx3 v[{L}:{L+2}], v{vT0}, s[12:15], s84 offen")
    A(f"  s_waitcnt vmcnt(0)")
    ins_A((L, L+1), 0)
    A(f"  s_waitcnt lgkmcnt(0)")
    ins_B((L, L+1), L+2, 0)
    A(f"  s_add_u32 s83, s83, 64")
    A(f"  s_cmp_lt_u32 s83, s85")
    A(f"  s_cbranch_scc1 {t}_long_win")
    A(f"  s_branch {t}_long")
    A(f"{t}_long_done:")
    A(f"  s_cmp_eq_u64 s[54:55], 0")
    A(f"  s_cbranch_scc1 {t}_noovf")
    A(f"  ds_write_b32 v{vFlag}, v{vOne} offset:{F_OVF}")
    A(f"{t}_noovf:")
    A(f"  s_waitcnt lgkmcnt(0)")
    A(f"  s_mov_b64 exec, 1")
    A(f"  ds_add_u32 v{vFlag}, v{vOne} offset:{F_RDY + 4*st}")
    A(f"  s_mov_b64 exec, -1")
    stampk(sreg=61, add=16)
    A(f"  s_add_u32 s62, s61, 2")
    A(f"  s_cmp_ge_u32 s62, {NCH}")
    A(f"  s_cbranch_scc1 {t}_noraw")
    A(f"  s_waitcnt vmcnt(0)")
    iw_issue_raw(st, vD2, 61, 2)
    A(f"  s_add_u32 s62, s61, 3")
    A(f"  s_cmp_ge_u32 s62, {NCH}")
    A(f"  v_mov_b32 v{vD0}, v{vD1}")
    A(f"  v_mov_b32 v{vD1}, v{vD2}")
    A(f"  s_cbranch_scc1 {t}_nodesc")
    iw_desc_load(vD2, 61, 3)
    A(f"  s_branch {t}_nodesc")
    A(f"{t}_noraw:")
    A(f"  s_waitcnt vmcnt(0)")
    A(f"  v_mov_b32 v{vD0}, v{vD1}")
    A(f"{t}_nodesc:")
    A(f"  s_add_u32 s61, s61, 1")

def slow_parity():
    c0 = (0 - CNT*(BS//4)) & 0xffffffff
    c1 = (PB - (CNT + 512)*(BS//4)) & 0xffffffff
    A("  s_and_b32 s88, s61, 1"); A("  s_cmp_eq_u32 s88, 0")
    A(f"  s_cselect_b32 s53, {c0:#x}, s53") if False else None
    A(f"  s_mov_b32 s53, {c0:#x}"); A(f"  s_mov_b32 s89, {c1:#x}"); A("  s_cselect_b32 s53, s53, s89")
    A(f"  s_lshl_b32 s89, s88, 9"); A(f"  s_add_u32 s89, s89, {CNT}"); A(f"  v_mov_b32 v{vCntB}, s89")
    A(f"  s_lshl_b32 s89, s88, 2"); A(f"  v_add_u32 v{vT1}, s89, v{vFlag}")

def gen_iw_slow():
    A(f"  s_mov_b32 s87, {NIW * (NCH // 2)}")
    poll(vFlag, F_RDY + 4, 87, "L_sl_w", vT0, 88, 2)
    A(f"  ds_read_b32 v{vT0}, v{vFlag} offset:{F_OVF}"); A("  s_waitcnt lgkmcnt(0)")
    A(f"  v_readfirstlane_b32 s88, v{vT0}"); A("  s_nop 3"); A("  s_cmp_eq_u32 s88, 0"); A("  s_cbranch_scc1 L_iw_epi")
    A("  s_setprio 0")
    A("  s_mov_b32 s62, 0")
    A("L_sl_q:")
    iw_desc_load(vD0, 62, 0)
    iw_T0(86, 62)
    A("  s_mov_b32 s82, 0")
    A("  s_waitcnt vmcnt(0)")
    A("L_sl_tile:")
    A(f"  v_readlane_b32 s83, v{vD0}, s82")
    A("  s_add_u32 s84, s86, s82"); A(f"  s_mul_i32 s84, s84, {TILE_BYTES}")
    A("  s_lshr_b32 s85, s83, 16"); A("  s_and_b32 s83, s83, 0xffff")
    A("L_sl_win:")
    A("  s_cmp_ge_u32 s83, s85"); A("  s_cbranch_scc1 L_sl_next")
    slow_parity()
    A("  s_lshr_b32 s87, s61, 1"); A(f"  s_mul_i32 s87, s87, {NGW}")
    poll(vT1, F_DONE, 87, "L_sl_d", vT0, 88, 2)
    A(f"  v_add_u32 v{vT0}, s83, v1"); A(f"  v_cmp_gt_u32 vcc, s85, v{vT0}"); A("  v_cmp_gt_u32 s[80:81], 8, v1")
    A(f"  v_mul_u32_u24 v{vT0}, 12, v{vT0}"); A("  s_and_b64 vcc, vcc, s[80:81]"); A("  s_nop 1")
    A(f"  v_cndmask_b32 v{vT0}, v{vOOB}, v{vT0}, vcc")
    L = RR(0,0,0)
    A(f"  buffer_load_dwordx3 v[{L}:{L+2}], v{vT0}, s[12:15], s84 offen")
    A("  s_waitcnt vmcnt(0)")
    ins_A((L, L+1), 0); A("  s_waitcnt lgkmcnt(0)"); ins_B((L, L+1), L+2, 0)
    A("  s_waitcnt lgkmcnt(0)")
    A("  s_mov_b64 exec, 1"); A(f"  ds_add_u32 v{vT1}, v{vOne} offset:{F_RDY}"); A("  s_mov_b64 exec, -1")
    A("  s_add_u32 s61, s61, 1"); A("  s_add_u32 s83, s83, 8"); A("  s_branch L_sl_win")
    A("L_sl_next:")
    A("  s_add_u32 s82, s82, 1"); A("  s_cmp_lt_u32 s82, 32"); A("  s_cbranch_scc1 L_sl_tile")
    A("  s_add_u32 s62, s62, 1"); A(f"  s_cmp_lt_u32 s62, {NCH}"); A("  s_cbranch_scc1 L_sl_q")
    A("  s_mov_b32 s63, 1")
    A("L_sl_idle:")
    A(f"  ds_read_b32 v{vT0}, v{vFlag} offset:{F_LAST}"); A("  s_waitcnt lgkmcnt(0)")
    A(f"  v_readfirstlane_b32 s88, v{vT0}"); A("  s_nop 3")
    A("  s_cmp_eq_u32 s88, 0"); A("  s_cbranch_scc1 L_sl_cont")
    A("  s_cmp_ge_u32 s61, s88"); A("  s_cbranch_scc1 L_iw_epi")
    A("L_sl_cont:")
    slow_parity()
    A("  s_lshr_b32 s87, s61, 1"); A(f"  s_mul_i32 s87, s87, {NGW}")
    A(f"  ds_read_b32 v{vT0}, v{vT1} offset:{F_DONE}"); A("  s_waitcnt lgkmcnt(0)")
    A(f"  v_readfirstlane_b32 s88, v{vT0}"); A("  s_nop 3")
    A("  s_cmp_ge_u32 s88, s87"); A("  s_cbranch_scc1 L_sl_go")
    A("  s_sleep 2"); A("  s_branch L_sl_idle")
    A("L_sl_go:")
    A("  s_cmp_eq_u32 s63, 0"); A("  s_cbranch_scc1 L_sl_sig")
    A("  s_mov_b32 s63, 0")
    A("  s_mov_b64 exec, 1"); A(f"  ds_add_rtn_u32 v{vT0}, v{vFlag}, v{vOne} offset:{F_NDONE}"); A("  s_waitcnt lgkmcnt(0)")
    A(f"  v_readfirstlane_b32 s88, v{vT0}"); A("  s_mov_b64 exec, -1"); A("  s_nop 2")
    A(f"  s_cmp_lg_u32 s88, {NIW-1}"); A("  s_cbranch_scc1 L_sl_sig")
    A("  s_add_u32 s88, s61, 1"); A(f"  v_mov_b32 v{vT0}, s88"); A(f"  ds_write_b32 v{vFlag}, v{vT0} offset:{F_LAST}"); A("  s_waitcnt lgkmcnt(0)")
    A("L_sl_sig:")
    A("  s_mov_b64 exec, 1"); A(f"  ds_add_u32 v{vT1}, v{vOne} offset:{F_RDY}"); A("  s_mov_b64 exec, -1")
    A("  s_add_u32 s61, s61, 1"); A("  s_branch L_sl_idle")

def gen_iwave():
    A("L_k2_iwave:")
    A(f"  s_setprio {os.environ.get('IPRIO', '3')}")
    A("  s_sub_u32 s60, s35, 8")
    A("  s_lshl_b32 s60, s60, 5")
    A("  s_mov_b32 s52, 0x1fc")
    A("  s_mov_b64 s[54:55], 0")
    A(f"  v_mov_b32 v{vOOB}, {OOB:#x}")
    A(f"  v_add_u32 v{vDescOff}, s60, v1")
    A(f"  v_cmp_gt_u32 vcc, 250, v{vDescOff}")
    A(f"  v_cmp_gt_u32 s[40:41], 32, v1")
    A(f"  v_lshlrev_b32 v{vDescOff}, 2, v1")
    A(f"  s_and_b64 vcc, vcc, s[40:41]")
    A(f"  s_nop 1")
    A(f"  v_cndmask_b32 v{vDescOff}, v{vOOB}, v{vDescOff}, vcc")
    A("  s_mov_b32 s61, 0")
    if F0:
        A(f"  v_mov_b32 v{vFlag}, {FLG}")
        A("  s_barrier")
        A("  s_cmp_lg_u32 s35, 8"); A("  s_cbranch_scc1 L_i_lpoll")
        A("L_i_nw:")
        A(f"  ds_read_b64 v[16:17], v{vFlag} offset:24"); A("  s_waitcnt lgkmcnt(0)")
        A("  v_readfirstlane_b32 s28, v16"); A("  v_readfirstlane_b32 s29, v17"); A("  s_nop 3")
        A("  s_cmp_lg_u32 s28, 0"); A("  s_cbranch_scc1 L_i_nok")
        A("  s_cmp_eq_u32 s97, 0"); A("  s_cbranch_scc1 L_i_nok"); A("  s_sub_u32 s97, s97, 1")
        A("  s_sleep 2"); A("  s_branch L_i_nw")
        A("L_i_nok:")
        A("  s_and_b32 s62, s2, 7"); A("  s_lshl_b32 s62, s62, 13")
        A(f"  v_lshlrev_b32 v{vT1}, 3, v1")
        A("L_i_rpoll:")
        for k in range(8):
            if k == 7: A("  s_bfm_b64 exec, 52, 0")
            A(f"  buffer_load_dwordx2 v[{16+2*k}:{17+2*k}], v{vT1}, s[24:27], s62 offen offset:{512*k} sc1")
        A("  s_mov_b64 exec, -1"); A("  s_waitcnt vmcnt(0)"); A("  s_mov_b64 s[64:65], -1")
        for k in range(8):
            if k == 7: A("  s_bfm_b64 exec, 52, 0")
            A(f"  v_cmp_ne_u64 vcc, s[28:29], v[{16+2*k}:{17+2*k}]")
            A(f"  s_cmp_eq_u64 vcc, 0"); A(f"  s_cselect_b64 s[64:65], s[64:65], 0")
        A("  s_mov_b64 exec, -1")
        A("  s_cmp_lg_u64 s[64:65], 0"); A("  s_cbranch_scc1 L_i_rok")
        A("  s_cmp_eq_u32 s97, 0"); A("  s_cbranch_scc1 L_i_rok"); A("  s_sub_u32 s97, s97, 1")
        A(f"  s_sleep {os.environ.get('RSLEEP', '8')}"); A("  s_branch L_i_rpoll")
        A("L_i_rok:")
        A(f"  v_mov_b32 v{vT0}, 1"); A(f"  ds_write_b32 v{vFlag}, v{vT0} offset:20")
        A("  s_branch L_i_rdone")
        A("L_i_lpoll:")
        A("  s_mov_b32 s62, 1")
        poll(vFlag, 20, 62, "L_i_lp", vT0, 63, 2)
        A("L_i_rdone:")
        stampk(k=42)
    iw_desc_load(vD0, 61, 0)
    iw_desc_load(vD1, 61, 1)
    iw_desc_load(vD2, 61, 2)
    A(f"  v_mov_b32 v{vOne}, 1")
    A(f"  v_mov_b32 v{vKB}, {BS//4}")
    A(f"  v_lshrrev_b32 v{vPerm}, 4, v1")
    A(f"  v_mov_b32 v{vTileJ}, {TILE_BYTES}")
    A(f"  v_mul_lo_u32 v{vTileJ}, v{vTileJ}, v{vPerm}")
    A(f"  v_lshlrev_b32 v{vPerm}, 2, v{vPerm}")
    A(f"  v_and_b32 v{vL15}, 15, v1")
    A(f"  v_mov_b32 v{vFlag}, {FLG}")
    A("  s_waitcnt vmcnt(2)")
    iw_issue_raw(0, vD0, 61, 0)
    A("  s_waitcnt vmcnt(9)")
    out[-1] = "  s_waitcnt vmcnt(9)"
    iw_issue_raw(1, vD1, 61, 1)
    if not F0: A("  s_barrier")
    A("  s_waitcnt vmcnt(8)")
    A("L_iw_loop:")
    iw_chunk(0)
    iw_chunk(1)
    A(f"  s_cmp_lt_u32 s61, {NCH}")
    A("  s_cbranch_scc1 L_iw_loop")
    gen_iw_slow()
    A("L_iw_epi:")
    gen_epilogue()
    stamp_flush()
    A("  s_endpgm")

D = int(os.environ.get("GD", "2")); U = D + 1; LEAD = D + 2; MINT = D + 3
assert U % 3 == 0
B1A, B1B, DA, DB, A2 = 18, 22, 26, 30, 34
XR = lambda u: 38 + 4*(u % U)
WR = lambda u: 38 + 4*U + (u % U)
CR = lambda u: 38 + 5*U + (u % U)
B2 = lambda p: 38 + 6*U + 4*(p % 3)
assert 38 + 6*U + 12 <= 88
ACC = lambda j: 88 + 4*j
vLane4, vHalf16, vSelW, vSelR, vZero, vList, vG, vA, vA2, vS, vFl, vOne1, vBin, vLA = 2, 3, 4, 5, 6, 7, 8, 9, 10, 11, 12, 13, 14, 16
vF0 = DA
T0, T1, T2, T3 = DA, DA+1, DA+2, DA+3
sM1 = 44; sT = 45; sD = 46; sLeft = 47
sNB = 48
sTot = 58; sCI = 59; sCC = 60; sEnd = 61
sNBn = 64
sLo = 80

def g_body(j, u):
    A(f"L_g_{j}_{u}:")
    if os.environ.get("GPRIO", "") == "iter": A(f"  s_setprio {u % 3}")
    A(f"  s_waitcnt lgkmcnt(6)")
    A(f"  v_and_or_b32 v{vG}, v{WR(u+D)}, s{sM1}, v{vHalf16}")
    if "noload" not in EXP:
        A(f"  buffer_load_dwordx4 {vr(XR(u+D))}, v{vG}, s[8:11], 0 offen")
        A(f"  s_waitcnt vmcnt({D})")
    A(f"  v_mfma_f32_16x16x32_bf16 {vr(DA)}, {vr(XR(u))}, {vr(B1A)}, 0")
    A(f"  v_mfma_f32_16x16x32_bf16 {vr(DB)}, {vr(XR(u))}, {vr(B1B)}, 0")
    A(f"  v_readlane_b32 s{sD}, v{vList}, s{sT}")
    A(f"  s_add_u32 s{sT}, s{sT}, 1")
    A(f"  v_and_or_b32 v{vA2}, v{WR(u+2)}, 30, v{vSelW}")
    A(f"  v_add_u32 v{vA}, s{sD}, v{vLane4}")
    A(f"  ds_write_b16 v{vS}, v{vZero}")
    A(f"  ds_write_b16 v{vA2}, v{CR(u+2)}")
    A(f"  v_mov_b32 v{vS}, v{vA2}")
    A(f"  ds_read_b64_tr_b16 {vr(B2(u+2),2)}, v{vSelR}")
    A(f"  ds_read_b64_tr_b16 {vr(B2(u+2)+2,2)}, v{vSelR} offset:512")
    A(f"  ds_read_b32 v{WR(u+D+2)}, v{vA} offset:{WB}")
    A(f"  v_lshrrev_b32 v{vA}, 1, v{vA}")
    A(f"  ds_read_u16 v{CR(u+D+2)}, v{vA}")
    A(f"  v_cvt_pk_bf16_f32 v{A2}, v{DA}, v{DA+1}")
    A(f"  v_cvt_pk_bf16_f32 v{A2+1}, v{DA+2}, v{DA+3}")
    A(f"  v_cvt_pk_bf16_f32 v{A2+2}, v{DB}, v{DB+1}")
    A(f"  v_cvt_pk_bf16_f32 v{A2+3}, v{DB+2}, v{DB+3}")
    A(f"  s_cmp_eq_u32 s{sT}, s{sTot}")
    A(f"  s_cbranch_scc1 L_gc_{j}_{u}")
    A(f"L_gb_{j}_{u}:")
    A(f"  s_sub_u32 s{sLeft}, s{sLeft}, 1")
    A(f"  v_mfma_f32_16x16x32_bf16 {vr(ACC(j))}, {vr(A2)}, {vr(B2(u))}, {vr(ACC(j))}")
    A(f"  s_cbranch_scc1 L_gn_{j+1}_{(u+1)%U}")
    if u == U-1:
        A(f"  s_branch L_g_{j}_0")

def g_callstub(j, u):
    A(f"L_gc_{j}_{u}:")
    A(f"  s_call_b64 s[30:31], L_setup")
    A(f"  s_branch L_gb_{j}_{u}")

def g_next(j, u):
    A(f"L_gn_{j}_{u}:")
    if j == GPW:
        A(f"  s_add_u32 s{sCC}, s{sCC}, 1")
        stampk(sreg=sCC, add=0)
        A(f"  s_cmp_eq_u32 s{sCC}, s{sEnd}")
        A(f"  s_cbranch_scc1 L_g_end")
        A(f"  s_cmp_lg_u32 s{sCC}, {NCH}")
        A(f"  s_cbranch_scc1 L_gz_{u}")
        A(f"  s_nop 7")
        for jj in range(GPW):
            for k in range(4): A(f"  v_mov_b32 v{ACC(jj)+k}, 0")
        A(f"L_gz_{u}:")
        for k in range(0, GPW, 2):
            A(f"  s_mov_b64 s[{sNB+k}:{sNB+k+1}], s[{sNBn+k}:{sNBn+k+1}]")
        A(f"  s_branch L_gn_0_{u}")
        return
    A(f"  s_sub_u32 s{sLeft}, s{sNB+j}, 1")
    A(f"  s_cbranch_scc1 L_gn_{j+1}_{u}")
    A(f"  s_branch L_g_{j}_{u}")

def fill_own_bins(sreg_p):
    for k in range(4):
        A(f"  v_mov_b32 v{vF0+k}, {DUMMY_W:#x}")
        A(f"  v_mov_b32 v{vF0+4+k}, 0")
    A(f"  s_mul_i32 s76, s{sreg_p}, {PB}")
    A(f"  s_mul_i32 s77, s35, {GPW*BS}")
    A(f"  s_add_u32 s76, s76, s77")
    A(f"  v_add_u32 v{vA}, s76, v{vLA}")
    for k in range(5):
        A(f"  ds_write_b128 v{vA}, {vr(vF0)} offset:{WB + 1024*k}")
    A(f"  s_mov_b64 exec, 0x3ff")
    A(f"  ds_write_b128 v{vA}, {vr(vF0)} offset:{WB + 5120}")
    A(f"  s_mov_b64 exec, -1")
    A(f"  s_lshr_b32 s76, s76, 1")
    A(f"  v_add_u32 v{vA}, s76, v{vLA}")
    A(f"  ds_write_b128 v{vA}, {vr(vF0+4)}")
    A(f"  ds_write_b128 v{vA}, {vr(vF0+4)} offset:1024")
    A(f"  s_mov_b64 exec, 0x{(1<<37)-1:x}") if False else None
    A(f"  s_bfm_b64 exec, 37, 0")
    A(f"  ds_write_b128 v{vA}, {vr(vF0+4)} offset:2048")
    A(f"  s_mov_b64 exec, -1")

def g_setup():
    A("L_setup:")
    A(f"  s_waitcnt lgkmcnt(0)")
    stampk(sreg=sCI, add=17)
    A(f"  s_cmp_lt_i32 s{sCI}, 0")
    A(f"  s_cbranch_scc1 L_su_nosig")
    A(f"  s_and_b32 s75, s{sCI}, 1")
    fill_own_bins(75)
    A(f"  s_lshl_b32 s75, s75, 2")
    A(f"  v_add_u32 v{vA}, s75, v{vFl}")
    A(f"  s_waitcnt lgkmcnt(0)")
    A(f"  s_mov_b64 exec, 1")
    A(f"  ds_add_u32 v{vA}, v{vOne1} offset:{F_DONE}")
    A(f"  s_mov_b64 exec, -1")
    A("L_su_nosig:")
    A(f"  s_add_u32 s{sCI}, s{sCI}, 1")
    A(f"  v_lshrrev_b32 v{vG}, 2, v{vLA}")
    A(f"  s_lshl_b32 s76, s35, 8")
    A(f"  s_add_u32 s76, s76, {LIST}")
    A(f"  v_add_u32 v{vG}, s76, v{vG}")
    A(f"  s_cmp_lg_u32 s{sCI}, {NCH}")
    A(f"  s_cbranch_scc1 L_su_noovf")
    A(f"  ds_read_b32 v{vA2}, v{vFl} offset:{F_OVF}"); A(f"  s_waitcnt lgkmcnt(0)")
    A(f"  v_readfirstlane_b32 s77, v{vA2}"); A(f"  s_nop 3"); A(f"  s_cmp_eq_u32 s77, 0"); A(f"  s_cbranch_scc1 L_su_noovf")
    A(f"  s_mov_b32 s{sEnd}, 0x7fffffff")
    A("L_su_noovf:")
    A(f"  s_cmp_lt_u32 s{sCI}, s{sEnd}")
    A(f"  s_cbranch_scc1 L_su_real")
    A(f"  v_mov_b32 v{vList}, {DUMMY_X}")
    A(f"  s_mov_b32 s{sTot}, 0x7fffffff")
    A(f"  s_mov_b32 s{sT}, 0")
    A(f"  s_setpc_b64 s[30:31]")
    A("L_su_real:")
    A(f"  v_mov_b32 v{vList}, {DUMMY_X}")
    A(f"  ds_write_b32 v{vG}, v{vList}")
    A(f"  s_and_b32 s75, s{sCI}, 1")
    A(f"  s_lshl_b32 s77, s75, 2")
    A(f"  v_add_u32 v{vA}, s77, v{vFl}")
    A(f"  s_lshr_b32 s77, s{sCI}, 1")
    A(f"  s_add_u32 s77, s77, 1")
    A(f"  s_mul_i32 s77, s77, {NIW}")
    poll(vA, F_RDY, 77, "L_su_poll", vA2, 78, 2)
    A(f"  s_cmp_lt_u32 s{sCI}, {NCH}"); A(f"  s_cbranch_scc1 L_su_nolast")
    A(f"  ds_read_b32 v{vA2}, v{vFl} offset:{F_LAST}"); A(f"  s_waitcnt lgkmcnt(0)")
    A(f"  v_readfirstlane_b32 s77, v{vA2}"); A(f"  s_add_u32 s78, s{sCI}, 1"); A(f"  s_nop 2")
    A(f"  s_cmp_eq_u32 s77, s78"); A(f"  s_cselect_b32 s{sEnd}, s78, s{sEnd}")
    A("L_su_nolast:")
    A(f"  s_lshl_b32 s77, s75, 9")
    A(f"  s_mul_i32 s78, s35, {GPW*4}")
    A(f"  s_add_u32 s77, s77, s78")
    A(f"  s_add_u32 s77, s77, {CNT}")
    A(f"  v_lshrrev_b32 v{vA}, 2, v{vLA}")
    A(f"  v_add_u32 v{vA}, s77, v{vA}")
    A(f"  s_mov_b64 exec, 0x3ff")
    A(f"  v_mov_b32 v{T0}, 0")
    A(f"  s_mov_b64 exec, -1")
    A(f"  v_mov_b32 v{T0}, 0")
    A(f"  s_mov_b64 exec, 0x3ff")
    A(f"  ds_read_b32 v{T0}, v{vA}")
    A(f"  s_waitcnt lgkmcnt(0)")
    A(f"  ds_write_b32 v{vA}, v{vZero}")
    A(f"  s_mov_b64 exec, -1")
    A(f"  v_min_u32 v{T0}, {CAP}, v{T0}")
    A(f"  v_add_u32 v{T0}, 31, v{T0}")
    A(f"  v_lshrrev_b32 v{T0}, 5, v{T0}")
    A(f"  v_mov_b32 v{T1}, v{T0}")
    A(f"  s_mul_i32 s77, s75, {PB}")
    A(f"  s_mul_i32 s78, s35, {GPW*BS}")
    for sh in (1, 2, 4, 8):
        A(f"  s_nop 0") if sh > 1 else A(f"  s_add_u32 s77, s77, s78")
        A(f"  v_add_u32_dpp v{T1}, v{T1}, v{T1} row_shr:{sh} row_mask:0xf bank_mask:0xf bound_ctrl:0")
        A(f"  s_nop 0")
    A(f"  v_add_u32 v{T2}, s77, v{vBin}")
    A(f"  v_sub_u32 v{T3}, v{T1}, v{T0}")
    A(f"  v_lshl_add_u32 v{T3}, v{T3}, 2, s76")
    for i in range(4):
        A(f"  v_cmp_lt_u32 vcc, {i}, v{T0}")
        A(f"  s_and_saveexec_b64 s[78:79], vcc")
        A(f"  ds_write_b32 v{T3}, v{T2} offset:{4*i}")
        A(f"  s_mov_b64 exec, s[78:79]")
        if i < 3: A(f"  v_add_u32 v{T2}, 128, v{T2}")
    A(f"  ds_read_b32 v{vList}, v{vG}")
    for j in range(GPW):
        A(f"  v_readlane_b32 s{sNBn+j}, v{T0}, {j}")
    A(f"  v_readlane_b32 s77, v{T1}, {GPW-1}")
    A(f"  s_nop 2")
    A(f"  s_max_u32 s{sTot}, s77, {MINT}")
    A(f"  s_sub_u32 s77, s{sTot}, s77")
    A(f"  s_add_u32 s{sNBn+GPW-1}, s{sNBn+GPW-1}, s77")
    A(f"  s_mov_b32 s{sT}, 0")
    A(f"  s_waitcnt lgkmcnt(0)")
    A(f"  s_setpc_b64 s[30:31]")

def gen_gwave():
    A(f"  s_load_dwordx2 s[38:39], s[0:1], 72")
    PFL = int(os.environ.get("PFL", "0"))
    if PFL:
        A("  s_lshr_b32 s40, s2, 3"); A("  s_lshl_b32 s40, s40, 9"); A("  s_lshl_b32 s41, s35, 6"); A("  s_add_u32 s40, s40, s41")
        A("  v_add_u32 v16, s40, v1"); A("  v_lshlrev_b32 v16, 7, v16")
        for k in range((PFL + 16383) // 16384):
            A(f"  s_mov_b32 s42, {k*16384*128}")
            A(f"  buffer_load_dword v{76+k}, v16, s[8:11], s42 offen")
    lds_init()
    A(f"  v_and_b32 v{vLane4}, 31, v1")
    A(f"  v_lshlrev_b32 v{vLane4}, 2, v{vLane4}")
    A(f"  v_lshrrev_b32 v{vHalf16}, 5, v1")
    A(f"  v_lshlrev_b32 v{vHalf16}, 4, v{vHalf16}")
    A(f"  v_lshlrev_b32 v{vLA}, 4, v1")
    A(f"  v_mul_u32_u24 v{vBin}, {BS}, v1")
    A(f"  s_mov_b32 s{sM1}, {DUMMY_W:#x}")
    A(f"  s_lshl_b32 s40, s35, 10")
    A(f"  s_add_u32 s40, s40, {SEL}")
    A(f"  v_and_b32 v20, 31, v1")
    A(f"  v_lshl_add_u32 v{vSelW}, v20, 5, s40")
    A(f"  v_lshl_add_u32 v{vSelR}, v1, 3, s40")
    srd(28, 38, 512)
    A(f"  v_lshrrev_b32 v19, 4, v1")
    A(f"  v_and_b32 v18, 15, v1")
    A(f"  v_lshrrev_b32 v20, 1, v19")
    A(f"  v_lshlrev_b32 v20, 8, v20")
    A(f"  v_lshl_add_u32 v20, v18, 1, v20")
    for jj in range(8):
        A(f"  buffer_load_ushort v{DA+jj}, v20, s[28:31], 0 offen offset:{32*jj}")
    A(f"  v_mov_b32 v{vZero}, 0")
    A(f"  v_mov_b32 v{vFl}, {FLG}")
    A(f"  v_mov_b32 v{vOne1}, 1")
    A(f"  v_mov_b32 v{vS}, v{vSelW}")
    A(f"  v_and_b32 v21, 1, v19")
    A(f"  v_cmp_eq_u32 s[40:41], 0, v21")
    for u in range(U):
        for k in range(4):
            A(f"  v_mov_b32 v{XR(u)+k}, 0")
        A(f"  v_mov_b32 v{WR(u)}, {DUMMY_W:#x}")
        A(f"  v_mov_b32 v{CR(u)}, 0")
    for p in range(3):
        for k in range(4):
            A(f"  v_mov_b32 v{B2(p)+k}, 0")
    for j in range(GPW):
        for k in range(4):
            A(f"  v_mov_b32 v{ACC(j)+k}, 0")
    A(f"  s_waitcnt vmcnt(0)")
    for k in range(4):
        A(f"  v_lshl_or_b32 v{DA+k}, v{DA+1+2*k}, 16, v{DA+2*k}")
    for k in range(4):
        A(f"  v_cndmask_b32 v{B1A+k}, v{vZero}, v{DA+k}, s[40:41]")
        A(f"  v_cndmask_b32 v{B1B+k}, v{DA+k}, v{vZero}, s[40:41]")
    A("  s_barrier")
    if F0:
        A("  s_cmp_lg_u32 s35, 0"); A("  s_cbranch_scc1 L_g_nonon")
        A("  v_mov_b32 v76, s60"); A("  v_mov_b32 v77, s61")
        A(f"  ds_write_b64 v{vFl}, v[76:77] offset:24")
        A("L_g_nonon:")
    A(f"  s_mov_b32 s{sCI}, -1")
    A(f"  s_mov_b32 s{sCC}, 0")
    A(f"  s_mov_b32 s{sEnd}, {NCH}")
    A(f"  s_call_b64 s[30:31], L_setup")
    for k in range(0, GPW, 2):
        A(f"  s_mov_b64 s[{sNB+k}:{sNB+k+1}], s[{sNBn+k}:{sNBn+k+1}]")
    A(f"  s_add_u32 s{sLeft}, s{sNB}, {LEAD-1}")
    for j in range(GPW):
        for u in range(U):
            g_body(j, u)
    for j in range(GPW):
        for u in range(U):
            g_callstub(j, u)
    for j in range(0, GPW+1):
        for u in range(U):
            g_next(j, u)
    g_setup()
    A("L_g_end:")
    A("  s_waitcnt vmcnt(0) lgkmcnt(0)")
    A("  s_nop 7")
    A(f"  s_mul_i32 s76, s35, {GPW*BS}")
    A(f"  s_add_u32 s76, s76, {WB}")
    A(f"  v_add_u32 v{vA}, s76, v{vLA}")
    for j in range(GPW):
        A(f"  ds_write_b128 v{vA}, {vr(ACC(j))} offset:{(j//5)*PB + (j%5)*1024}")
    A(f"  s_lshl_b32 s76, s35, 2")
    A(f"  v_add_u32 v{vA}, s76, v{vFl}")
    A(f"  s_waitcnt lgkmcnt(0)")
    A(f"  s_mov_b64 exec, 1")
    A(f"  ds_write_b32 v{vA}, v{vOne1} offset:{F_FIN}")
    A(f"  s_mov_b64 exec, -1")
    A(f"  s_waitcnt lgkmcnt(0)")
    stamp_flush()

def gen_epilogue():
    A("  s_load_dwordx2 s[36:37], s[0:1], 24")
    A("  s_load_dwordx2 s[38:39], s[0:1], 40")
    A("  s_load_dwordx4 s[40:43], s[0:1], 56")
    A("  s_load_dwordx4 s[44:47], s[0:1], 80")
    A("  s_waitcnt lgkmcnt(0)")
    srd(12, 36, E*2); srd(16, 46, E*32); srd(20, 38, 16); srd(24, 40, 256); srd(28, 42, 256); srd(48, 44, 512)
    n, q = 2, 3
    A(f"  v_and_b32 v{n}, 15, v1"); A(f"  v_lshrrev_b32 v{q}, 4, v1")
    A(f"  v_lshlrev_b32 v4, 6, v{q}"); A(f"  v_lshl_add_u32 v4, v{n}, 1, v4")
    A("  buffer_load_ushort v96, v4, s[28:31], 0 offen"); A("  buffer_load_ushort v97, v4, s[28:31], 0 offen offset:32")
    A("  buffer_load_ushort v98, v4, s[24:27], 0 offen"); A("  buffer_load_ushort v99, v4, s[24:27], 0 offen offset:32")
    A(f"  v_lshlrev_b32 v4, 7, v{q}"); A(f"  v_lshl_add_u32 v4, v{n}, 1, v4")
    for k in range(4): A(f"  buffer_load_ushort v{100+k}, v4, s[48:51], 0 offen offset:{32*k}")
    A(f"  v_lshlrev_b32 v4, 2, v{q}")
    A("  buffer_load_ushort v104, v4, s[20:23], 0 offen"); A("  buffer_load_ushort v105, v4, s[20:23], 0 offen offset:2")
    A("  s_sub_u32 s52, s35, 8"); A(f"  s_mul_i32 s52, s52, {GPW*16}")
    A(f"  v_add_u32 v5, s52, v{n}")
    A("  s_mul_i32 s53, s3, 1250")
    for j in range(GPW):
        A(f"  v_add_u32 v6, s53, v5")
        if j: A(f"  v_add_u32 v6, {16*j}, v6")
        A(f"  v_lshlrev_b32 v7, 1, v6")
        A(f"  buffer_load_ushort v{16+8*j}, v7, s[12:15], 0 offen")
        A(f"  v_lshlrev_b32 v7, 5, v6")
        A(f"  v_lshl_add_u32 v7, v{q}, 3, v7")
        A(f"  buffer_load_dwordx2 v[{22+8*j}:{23+8*j}], v7, s[8:11], 0 offen")
    A(f"  s_waitcnt vmcnt({2*GPW})")
    A("  v_lshl_or_b32 v108, v97, 16, v96"); A("  v_lshl_or_b32 v112, v99, 16, v98")
    A("  v_lshl_or_b32 v116, v101, 16, v100"); A("  v_lshl_or_b32 v117, v103, 16, v102")
    A("  v_mov_b32 v118, v116"); A("  v_mov_b32 v119, v117")
    for r in (109, 110, 111, 113, 114, 115, 121, 122, 123): A(f"  v_mov_b32 v{r}, 0")
    A("  v_lshlrev_b32 v104, 16, v104"); A("  v_lshlrev_b32 v105, 16, v105")
    A("  s_mov_b32 s54, 0xffff0000"); A(f"  s_mov_b32 s55, {f2u(-10.0):#x}"); A(f"  s_mov_b32 s56, {f2u(LOG2E):#x}")
    A("  s_waitcnt vmcnt(0)")
    for j in range(GPW):
        b = 16 + 8*j
        A(f"  v_lshlrev_b32 v8, 16, v{b}")
        A(f"  v_sub_f32 v9, v8, v104"); A(f"  v_sub_f32 v10, v8, v105")
        for step, op in enumerate(["sq", "m10", "exp"]):
            A(f"  v_cvt_pk_bf16_f32 v11, v9, v10")
            A(f"  v_lshlrev_b32 v9, 16, v11"); A(f"  v_and_b32 v10, s54, v11")
            if op == "sq":
                A(f"  v_mul_f32 v9, v9, v9"); A(f"  v_mul_f32 v10, v10, v10")
            elif op == "m10":
                A(f"  v_mul_f32 v9, s55, v9"); A(f"  v_mul_f32 v10, s55, v10")
            else:
                A(f"  v_mul_f32 v9, s56, v9"); A(f"  v_mul_f32 v10, s56, v10")
                A(f"  v_exp_f32 v9, v9"); A(f"  v_exp_f32 v10, v10"); A(f"  s_nop 0")
        A(f"  v_cvt_pk_bf16_f32 v120, v9, v10")
        A(f"  s_nop 1")
        A(f"  v_mfma_f32_16x16x32_bf16 v[{b}:{b+3}], v[108:111], v[120:123], 0")
        A(f"  v_mfma_f32_16x16x32_bf16 v[96:99], v[112:115], v[120:123], 0")
        A(f"  s_nop 7")
        A(f"  v_cvt_pk_bf16_f32 v{b+4}, v96, v97")
        A(f"  v_cvt_pk_bf16_f32 v{b+5}, v98, v99")
    stampk(k=40)
    A("  s_sub_u32 s57, s35, 8"); A("  s_lshl_b32 s58, s57, 2")
    A(f"  v_mov_b32 v4, {FLG}"); A("  v_add_u32 v4, s58, v4")
    A("  s_mov_b32 s59, 1")
    poll(4, F_FIN, 59, "L_ep_poll", 6, 58, int(os.environ.get("ESLEEP", "2")))
    stampk(k=41)
    A(f"  s_mul_i32 s57, s57, {GPW*BS}"); A(f"  s_add_u32 s57, s57, {WB}")
    A("  v_lshlrev_b32 v4, 4, v1"); A("  v_add_u32 v4, s57, v4")
    A(f"  v_mov_b32 v124, {OOB:#x}"); A("  s_movk_i32 s57, 1250")
    for j in range(GPW):
        b = 16 + 8*j
        acc = 96 + 4*(j % 2)
        if j == 0:
            A(f"  ds_read_b128 v[96:99], v4 offset:0")
        if j + 1 < GPW:
            jn = j + 1
            A(f"  ds_read_b128 v[{96+4*(jn%2)}:{99+4*(jn%2)}], v4 offset:{(jn//5)*PB + (jn%5)*1024}")
            A(f"  s_waitcnt lgkmcnt(1)")
        else:
            A(f"  s_waitcnt lgkmcnt(0)")
        for k in range(4): A(f"  v_mul_f32 v{8+k}, v{acc+k}, v{b+k}")
        A(f"  v_cvt_pk_bf16_f32 v104, v8, v9"); A(f"  v_cvt_pk_bf16_f32 v105, v10, v11")
        A(f"  v_lshlrev_b32 v12, 16, v104"); A(f"  v_and_b32 v13, s54, v104")
        A(f"  v_lshlrev_b32 v14, 16, v105"); A(f"  v_and_b32 v125, s54, v105")
        A(f"  v_sub_f32 v8, v8, v12"); A(f"  v_sub_f32 v9, v9, v13"); A(f"  v_sub_f32 v10, v10, v14"); A(f"  v_sub_f32 v11, v11, v125")
        A(f"  v_cvt_pk_bf16_f32 v106, v8, v9"); A(f"  v_cvt_pk_bf16_f32 v107, v10, v11")
        A(f"  v_add_u32 v6, {16*j}, v5")
        A(f"  v_cmp_gt_u32 vcc, s57, v6")
        A(f"  v_mfma_f32_16x16x32_bf16 v[108:111], v[116:119], v[104:107], 0")
        A(f"  v_add_u32 v6, s53, v6"); A(f"  v_lshlrev_b32 v6, 5, v6"); A(f"  v_lshl_add_u32 v6, v{q}, 3, v6")
        A(f"  v_cndmask_b32 v6, v124, v6, vcc")
        A(f"  v_lshlrev_b32 v8, 16, v{b+4}"); A(f"  v_and_b32 v9, s54, v{b+4}"); A(f"  v_lshlrev_b32 v10, 16, v{b+5}"); A(f"  v_and_b32 v11, s54, v{b+5}")
        A(f"  v_lshlrev_b32 v12, 16, v{b+6}"); A(f"  v_and_b32 v13, s54, v{b+6}"); A(f"  v_lshlrev_b32 v14, 16, v{b+7}"); A(f"  v_and_b32 v125, s54, v{b+7}")
        A(f"  v_fma_f32 v12, v108, v8, v12"); A(f"  v_fma_f32 v13, v109, v9, v13"); A(f"  v_fma_f32 v14, v110, v10, v14"); A(f"  v_fma_f32 v125, v111, v11, v125")
        A(f"  v_cvt_pk_bf16_f32 v{b+4}, v12, v13"); A(f"  v_cvt_pk_bf16_f32 v{b+5}, v14, v125")
        A(f"  buffer_store_dwordx2 v[{b+4}:{b+5}], v6, s[16:19], 0 offen")

def gen_k2():
    k2_prologue()
    gen_gwave()
    A("L_k2_end:")
    A("  s_endpgm")
    gen_iwave()

if __name__ == "__main__":
    A(f"; @launch kernel=k1_kernel grid=(256,1,1) block=(1024,1,1) lds={gen.K1_LDS}")
    A(f"; @launch kernel=k2_kernel grid=(256,1,1) block=(1024,1,1) lds={K2_LDS}")
    A('.amdgcn_target "amdgcn-amd-amdhsa--gfx950"')
    A(".text")
    gen.STAMP = False
    gen_k1()
    gen_k2()
    A('.section .rodata,"a"')
    A(".p2align 6")
    desc_block("k1_kernel", 128)
    A(".p2align 6")
    desc_block("k2_kernel", 128, 100)
    lines = [l for l in out if l is not None]
    open(sys.argv[1], "w").write("\n".join(lines) + "\n")
```

```python
from gen import *
import gen, os, sys

CAP = 128
BS = 528
NGW = 8; GPW = 10; NIW = 8
PB = 80 * BS
WB = PB
SEL = 126976
LIST = SEL + NGW * 1024
CNT = LIST + NGW * 256
FLG = CNT + 1024
K2_LDS = FLG + 128
assert SEL >= 3 * PB and SEL % 1024 == 0 and CNT % 512 == 0
F_OVF, F_RDY, F_DONE, F_FIN, F_NDONE, F_LAST = 0, 4, 12, 32, 64, 68
DUMMY_X = 79 * BS
DUMMY_W = 0x00FFFFE0
OOB = 0x7FFFFF00
LOG2E = 1.4426950408889634
EXP = set(os.environ.get("EXP", "").split(","))
RAW_NT = os.environ.get("RAW_NT", "")
NCH = 8
F0 = False

def vr(b, n=4): return f"v[{b}:{b+n-1}]"
STAMP = os.environ.get("STAMP", "0") == "1"
def stamp_init():
    if not STAMP: return
    A("  s_memtime s[90:91]"); A("  s_memrealtime s[92:93]"); A("  s_waitcnt lgkmcnt(0)"); A("  v_mov_b32 v15, 0")
def stampk(k=None, sreg=None, add=0):
    if not STAMP: return
    A("  s_memtime s[94:95]"); A("  s_waitcnt lgkmcnt(0)"); A("  s_sub_u32 s94, s94, s90")
    if k is not None:
        A(f"  v_writelane_b32 v15, s94, {k}")
    else:
        A(f"  s_add_u32 s95, s{sreg}, {add}"); A("  s_mov_b32 m0, s95"); A("  v_writelane_b32 v15, s94, m0")
def stamp_flush():
    if not STAMP: return
    A("  s_memtime s[94:95]"); A("  s_waitcnt lgkmcnt(0)"); A("  s_sub_u32 s94, s94, s90"); A("  v_writelane_b32 v15, s94, 32")
    A("  s_memrealtime s[94:95]"); A("  s_waitcnt lgkmcnt(0)")
    A("  v_writelane_b32 v15, s92, 34"); A("  v_writelane_b32 v15, s94, 35")
    A("  s_load_dwordx2 s[44:45], s[0:1], 104"); A("  s_waitcnt lgkmcnt(0)")
    srd(48, 44, 256*16*256, 128 << 20)
    A("  s_lshl_b32 s44, s2, 4"); A("  s_add_u32 s44, s44, s35"); A("  s_lshl_b32 s44, s44, 8")
    A("  v_lshlrev_b32 v4, 2, v1"); A("  buffer_store_dword v15, v4, s[48:51], s44 offen"); A("  s_waitcnt vmcnt(0)")

def k2_prologue():
    A(".p2align 8"); A(".globl k2_kernel"); A(".type k2_kernel,@function"); A("k2_kernel:")
    A("  s_cmp_ge_u32 s2, 256"); A("  s_cbranch_scc1 L_k2_end")
    stamp_init()
    A("  s_load_dwordx2 s[4:5], s[0:1], 0")
    A("  s_load_dwordx2 s[6:7], s[0:1], 104")
    A("  s_and_b32 s3, s2, 7"); A("  s_lshl_b32 s3, s3, 5"); A("  s_lshr_b32 s36, s2, 3"); A("  s_add_u32 s3, s3, s36")
    A("  v_lshrrev_b32 v4, 6, v0"); A("  v_and_b32 v1, 63, v0"); A("  v_readfirstlane_b32 s35, v4")
    A("  s_waitcnt lgkmcnt(0)")
    srd(8, 4, E*32)
    srd(12, 6, NT*TILE_BYTES)
    srd(16, 6, NBIN*DESC_ROW, DESC_OFF)
    A("  s_cmp_ge_u32 s35, 8"); A("  s_cbranch_scc1 L_k2_iwave")

def lds_init():
    for r in (8, 9, 10, 11): A(f"  v_mov_b32 v{r}, 0")
    A("  v_lshlrev_b32 v5, 4, v0")
    def region(base, nbytes):
        n16 = nbytes // 16
        k = 0
        cur = None
        while k * 512 < n16:
            addr = base + k * 8192
            seg = addr // 65536
            if seg != cur:
                A(f"  v_add_u32 v6, {seg * 65536}, v5"); cur = seg
            off = addr - seg * 65536
            if (k + 1) * 512 <= n16:
                A(f"  ds_write_b128 v6, v[8:11] offset:{off}")
            else:
                A(f"  v_cmp_gt_u32 vcc, {n16 - k*512}, v0"); A("  s_and_saveexec_b64 s[40:41], vcc")
                A(f"  ds_write_b128 v6, v[8:11] offset:{off}"); A("  s_mov_b64 exec, s[40:41]")
            k += 1
    region(SEL, K2_LDS - SEL)
    region(0, PB)
    for r in (8, 9, 10, 11): A(f"  v_mov_b32 v{r}, {DUMMY_W:#x}")
    region(WB, 2 * PB)
    A("  s_waitcnt lgkmcnt(0)")

def poll(vaddr, off, sneed, label, vtmp, stmp, sleep=2):
    A(f"{label}:")
    A(f"  ds_read_b32 v{vtmp}, v{vaddr} offset:{off}")
    A(f"  s_waitcnt lgkmcnt(0)")
    A(f"  v_readfirstlane_b32 s{stmp}, v{vtmp}")
    A(f"  s_nop 3")
    A(f"  s_cmp_ge_u32 s{stmp}, s{sneed}")
    A(f"  s_cbranch_scc1 {label}_ok")
    A(f"  s_sleep {sleep}")
    A(f"  s_branch {label}")
    A(f"{label}_ok:")

def RR(st, i, k): return 16 + 32*st + 4*i + k
NSET = 4
def CA(st, r): return 80 + 2*st + r
def RK(st, r): return 88 + 2*st + r
def MK(st, r): return 64 + 4*st + 2*r
vCntB, vOne, vPerm, vL15, vTileJ, vOOB, vDescOff, vD0, vD1, vD2, vT0, vT1, vKB, vFlag = 96, 97, 98, 99, 100, 101, 102, 103, 104, 105, 106, 107, 108, 109

def ins_A(w, st):
    for r in range(2):
        A(f"  v_cmp_gt_i32 s[{MK(st,r)}:{MK(st,r)+1}], 0, v{w[r]}")
        A(f"  v_lshrrev_b32 v{CA(st,r)}, 22, v{w[r]}")
        A(f"  v_and_or_b32 v{CA(st,r)}, v{CA(st,r)}, s52, v{vCntB}")
    for r in range(2):
        A(f"  s_mov_b64 exec, s[{MK(st,r)}:{MK(st,r)+1}]")
        A(f"  ds_add_rtn_u32 v{RK(st,r)}, v{CA(st,r)}, v{vOne}")
    A(f"  s_mov_b64 exec, -1")

def ins_B(w, cw, st):
    for r in range(2):
        ca = CA(st,r); rk = RK(st,r)
        A(f"  s_mov_b64 exec, s[{MK(st,r)}:{MK(st,r)+1}]")
        A(f"  v_cmp_lt_u32 vcc, {CAP-1}, v{rk}")
        A(f"  v_min_u32 v{rk}, {CAP-1}, v{rk}")
        A(f"  v_mad_u32_u24 v{ca}, v{ca}, v{vKB}, s53")
        A(f"  s_or_b64 s[54:55], s[54:55], vcc")
        A(f"  v_lshl_add_u32 v{ca}, v{rk}, 2, v{ca}")
        A(f"  ds_write_b32 v{ca}, v{w[r]} offset:{WB}")
        A(f"  v_lshrrev_b32 v{rk}, 1, v{ca}")
        A(f"  ds_write_b16{'_d16_hi' if r else ''} v{rk}, v{cw}")
    A(f"  s_mov_b64 exec, -1")

def ins_set(st):
    ops = []
    def emitA(i):
        ins_A((RR(st,i,0), RR(st,i,1)), i % NSET); ops.extend([('a', i)]*2)
    def emitB(i):
        last = max(k for k, o in enumerate(ops) if o == ('a', i))
        A(f"  s_waitcnt lgkmcnt({min(len(ops) - 1 - last, 15)})")
        ins_B((RR(st,i,0), RR(st,i,1)), RR(st,i,2), i % NSET); ops.extend([('w', i)]*4)
    for i in range(NSET): emitA(i)
    for i in range(8):
        emitB(i)
        if i + NSET < 8: emitA(i + NSET)

def iw_T0(dst, c_sreg, add=0):
    A(f"  s_add_u32 s{dst}, s{c_sreg}, {add}")
    A(f"  s_and_b32 s{dst}, s{dst}, 1")
    A(f"  s_mul_i32 s{dst}, s{dst}, 250")
    A(f"  s_add_u32 s{dst}, s{dst}, s60")

def iw_issue_raw(st, desc, c_sreg, add):
    iw_T0(57, c_sreg, add)
    A(f"  s_mul_i32 s57, s57, {TILE_BYTES}")
    for i in range(8):
        A(f"  ds_bpermute_b32 v{RR(st,i,0)}, v{vPerm}, v{desc} offset:{16*i}")
    for i in range(8):
        d = RR(st,i,0)
        A(f"  s_waitcnt lgkmcnt({7-i})")
        A(f"  v_and_b32 v{vT0}, 0xffff, v{d}")
        A(f"  v_lshrrev_b32 v{vT1}, 16, v{d}")
        A(f"  v_add_u32 v{vT0}, v{vT0}, v{vL15}")
        A(f"  v_cmp_lt_u32 vcc, v{vT0}, v{vT1}")
        A(f"  v_mad_u32_u24 v{vT0}, v{vT0}, 12, v{vTileJ}")
        A(f"  s_nop 0")
        A(f"  v_cndmask_b32 v{vT0}, v{vOOB}, v{vT0}, vcc")
        if "sc1" in RAW_NT: A(f"  buffer_load_dwordx4 v[{d}:{d+3}], v{vT0}, s[12:15], s57 offen{RAW_NT}")
        else: A(f"  buffer_load_dwordx3 v[{d}:{d+2}], v{vT0}, s[12:15], s57 offen{RAW_NT}")
        if i < 7: A(f"  s_add_u32 s57, s57, {4*TILE_BYTES}")

def iw_desc_load(dst, c_sreg, add):
    A(f"  s_add_u32 s59, s{c_sreg}, {add}")
    A(f"  s_lshr_b32 s58, s59, 1")
    if os.environ.get("ROT", "0") == "1":
        A(f"  s_add_u32 s58, s58, s2"); A(f"  s_and_b32 s58, s58, 3")
    if os.environ.get("ROT", "0") == "2":
        A(f"  s_lshr_b32 s57, s2, 1"); A(f"  s_add_u32 s58, s58, s57"); A(f"  s_and_b32 s58, s58, 3")
    A(f"  s_lshl_b32 s58, s58, 8")
    A(f"  s_add_u32 s58, s58, s3")
    A(f"  s_lshl_b32 s58, s58, 9")
    A(f"  s_and_b32 s59, s59, 1")
    A(f"  s_mul_i32 s59, s59, 250")
    A(f"  s_add_u32 s59, s59, s60")
    A(f"  s_add_u32 s58, s58, s59")
    A(f"  s_lshl_b32 s58, s58, 2")
    A(f"  buffer_load_dword v{dst}, v{vDescOff}, s[16:19], s58 offen{RAW_NT}")

def iw_chunk(st):
    t = f"L_iw{st}"
    A(f"  s_lshr_b32 s87, s61, 1")
    A(f"  s_mul_i32 s87, s87, {NGW}")
    stampk(sreg=61, add=0)
    poll(vFlag, F_DONE + 4*st, 87, f"{t}_poll", vT0, 88, int(os.environ.get("ISLEEP", "4")))
    A(f"  v_mov_b32 v{vCntB}, {CNT + 512*st}")
    A(f"  s_mov_b32 s53, {(PB*st - (CNT + 512*st)*(BS//4)) & 0xffffffff:#x}")
    A(f"  s_waitcnt vmcnt(9)")
    stampk(sreg=61, add=8)
    ins_set(st)
    A(f"  v_and_b32 v{vT0}, 0xffff, v{vD0}")
    A(f"  v_lshrrev_b32 v{vT1}, 16, v{vD0}")
    A(f"  v_add_u32 v{vT0}, 16, v{vT0}")
    A(f"  v_cmp_lt_u32 s[80:81], v{vT0}, v{vT1}")
    iw_T0(86, 61)
    A(f"{t}_long:")
    A(f"  s_cmp_eq_u64 s[80:81], 0")
    A(f"  s_cbranch_scc1 {t}_long_done")
    A(f"  s_ff1_i32_b64 s82, s[80:81]")
    A(f"  s_bitset0_b64 s[80:81], s82")
    A(f"  v_readlane_b32 s83, v{vD0}, s82")
    A(f"  s_add_u32 s84, s86, s82")
    A(f"  s_mul_i32 s84, s84, {TILE_BYTES}")
    A(f"  s_lshr_b32 s85, s83, 16")
    A(f"  s_and_b32 s83, s83, 0xffff")
    A(f"  s_add_u32 s83, s83, 16")
    A(f"{t}_long_win:")
    A(f"  v_add_u32 v{vT0}, s83, v1")
    A(f"  v_cmp_gt_u32 vcc, s85, v{vT0}")
    A(f"  v_mul_u32_u24 v{vT0}, 12, v{vT0}")
    A(f"  s_nop 0")
    A(f"  v_cndmask_b32 v{vT0}, v{vOOB}, v{vT0}, vcc")
    L = RR(st,0,0)
    if "sc1" in RAW_NT: A(f"  buffer_load_dwordx4 v[{L}:{L+3}], v{vT0}, s[12:15], s84 offen{RAW_NT}")
    else: A(f"  buffer_load_dwordx3 v[{L}:{L+2}], v{vT0}, s[12:15], s84 offen")
    A(f"  s_waitcnt vmcnt(0)")
    ins_A((L, L+1), 0)
    A(f"  s_waitcnt lgkmcnt(0)")
    ins_B((L, L+1), L+2, 0)
    A(f"  s_add_u32 s83, s83, 64")
    A(f"  s_cmp_lt_u32 s83, s85")
    A(f"  s_cbranch_scc1 {t}_long_win")
    A(f"  s_branch {t}_long")
    A(f"{t}_long_done:")
    A(f"  s_cmp_eq_u64 s[54:55], 0")
    A(f"  s_cbranch_scc1 {t}_noovf")
    A(f"  ds_write_b32 v{vFlag}, v{vOne} offset:{F_OVF}")
    A(f"{t}_noovf:")
    A(f"  s_waitcnt lgkmcnt(0)")
    A(f"  s_mov_b64 exec, 1")
    A(f"  ds_add_u32 v{vFlag}, v{vOne} offset:{F_RDY + 4*st}")
    A(f"  s_mov_b64 exec, -1")
    stampk(sreg=61, add=16)
    A(f"  s_add_u32 s62, s61, 2")
    A(f"  s_cmp_ge_u32 s62, {NCH}")
    A(f"  s_cbranch_scc1 {t}_noraw")
    A(f"  s_waitcnt vmcnt(0)")
    iw_issue_raw(st, vD2, 61, 2)
    A(f"  s_add_u32 s62, s61, 3")
    A(f"  s_cmp_ge_u32 s62, {NCH}")
    A(f"  v_mov_b32 v{vD0}, v{vD1}")
    A(f"  v_mov_b32 v{vD1}, v{vD2}")
    A(f"  s_cbranch_scc1 {t}_nodesc")
    iw_desc_load(vD2, 61, 3)
    A(f"  s_branch {t}_nodesc")
    A(f"{t}_noraw:")
    A(f"  s_waitcnt vmcnt(0)")
    A(f"  v_mov_b32 v{vD0}, v{vD1}")
    A(f"{t}_nodesc:")
    A(f"  s_add_u32 s61, s61, 1")

def slow_parity():
    c0 = (0 - CNT*(BS//4)) & 0xffffffff
    c1 = (PB - (CNT + 512)*(BS//4)) & 0xffffffff
    A("  s_and_b32 s88, s61, 1"); A("  s_cmp_eq_u32 s88, 0")
    A(f"  s_cselect_b32 s53, {c0:#x}, s53") if False else None
    A(f"  s_mov_b32 s53, {c0:#x}"); A(f"  s_mov_b32 s89, {c1:#x}"); A("  s_cselect_b32 s53, s53, s89")
    A(f"  s_lshl_b32 s89, s88, 9"); A(f"  s_add_u32 s89, s89, {CNT}"); A(f"  v_mov_b32 v{vCntB}, s89")
    A(f"  s_lshl_b32 s89, s88, 2"); A(f"  v_add_u32 v{vT1}, s89, v{vFlag}")

def gen_iw_slow():
    A(f"  s_mov_b32 s87, {NIW * (NCH // 2)}")
    poll(vFlag, F_RDY + 4, 87, "L_sl_w", vT0, 88, 2)
    A(f"  ds_read_b32 v{vT0}, v{vFlag} offset:{F_OVF}"); A("  s_waitcnt lgkmcnt(0)")
    A(f"  v_readfirstlane_b32 s88, v{vT0}"); A("  s_nop 3"); A("  s_cmp_eq_u32 s88, 0"); A("  s_cbranch_scc1 L_iw_epi")
    A("  s_setprio 0")
    A("  s_mov_b32 s62, 0")
    A("L_sl_q:")
    iw_desc_load(vD0, 62, 0)
    iw_T0(86, 62)
    A("  s_mov_b32 s82, 0")
    A("  s_waitcnt vmcnt(0)")
    A("L_sl_tile:")
    A(f"  v_readlane_b32 s83, v{vD0}, s82")
    A("  s_add_u32 s84, s86, s82"); A(f"  s_mul_i32 s84, s84, {TILE_BYTES}")
    A("  s_lshr_b32 s85, s83, 16"); A("  s_and_b32 s83, s83, 0xffff")
    A("L_sl_win:")
    A("  s_cmp_ge_u32 s83, s85"); A("  s_cbranch_scc1 L_sl_next")
    slow_parity()
    A("  s_lshr_b32 s87, s61, 1"); A(f"  s_mul_i32 s87, s87, {NGW}")
    poll(vT1, F_DONE, 87, "L_sl_d", vT0, 88, 2)
    A(f"  v_add_u32 v{vT0}, s83, v1"); A(f"  v_cmp_gt_u32 vcc, s85, v{vT0}"); A("  v_cmp_gt_u32 s[80:81], 8, v1")
    A(f"  v_mul_u32_u24 v{vT0}, 12, v{vT0}"); A("  s_and_b64 vcc, vcc, s[80:81]"); A("  s_nop 1")
    A(f"  v_cndmask_b32 v{vT0}, v{vOOB}, v{vT0}, vcc")
    L = RR(0,0,0)
    A(f"  buffer_load_dwordx3 v[{L}:{L+2}], v{vT0}, s[12:15], s84 offen")
    A("  s_waitcnt vmcnt(0)")
    ins_A((L, L+1), 0); A("  s_waitcnt lgkmcnt(0)"); ins_B((L, L+1), L+2, 0)
    A("  s_waitcnt lgkmcnt(0)")
    A("  s_mov_b64 exec, 1"); A(f"  ds_add_u32 v{vT1}, v{vOne} offset:{F_RDY}"); A("  s_mov_b64 exec, -1")
    A("  s_add_u32 s61, s61, 1"); A("  s_add_u32 s83, s83, 8"); A("  s_branch L_sl_win")
    A("L_sl_next:")
    A("  s_add_u32 s82, s82, 1"); A("  s_cmp_lt_u32 s82, 32"); A("  s_cbranch_scc1 L_sl_tile")
    A("  s_add_u32 s62, s62, 1"); A(f"  s_cmp_lt_u32 s62, {NCH}"); A("  s_cbranch_scc1 L_sl_q")
    A("  s_mov_b32 s63, 1")
    A("L_sl_idle:")
    A(f"  ds_read_b32 v{vT0}, v{vFlag} offset:{F_LAST}"); A("  s_waitcnt lgkmcnt(0)")
    A(f"  v_readfirstlane_b32 s88, v{vT0}"); A("  s_nop 3")
    A("  s_cmp_eq_u32 s88, 0"); A("  s_cbranch_scc1 L_sl_cont")
    A("  s_cmp_ge_u32 s61, s88"); A("  s_cbranch_scc1 L_iw_epi")
    A("L_sl_cont:")
    slow_parity()
    A("  s_lshr_b32 s87, s61, 1"); A(f"  s_mul_i32 s87, s87, {NGW}")
    A(f"  ds_read_b32 v{vT0}, v{vT1} offset:{F_DONE}"); A("  s_waitcnt lgkmcnt(0)")
    A(f"  v_readfirstlane_b32 s88, v{vT0}"); A("  s_nop 3")
    A("  s_cmp_ge_u32 s88, s87"); A("  s_cbranch_scc1 L_sl_go")
    A("  s_sleep 2"); A("  s_branch L_sl_idle")
    A("L_sl_go:")
    A("  s_cmp_eq_u32 s63, 0"); A("  s_cbranch_scc1 L_sl_sig")
    A("  s_mov_b32 s63, 0")
    A("  s_mov_b64 exec, 1"); A(f"  ds_add_rtn_u32 v{vT0}, v{vFlag}, v{vOne} offset:{F_NDONE}"); A("  s_waitcnt lgkmcnt(0)")
    A(f"  v_readfirstlane_b32 s88, v{vT0}"); A("  s_mov_b64 exec, -1"); A("  s_nop 2")
    A(f"  s_cmp_lg_u32 s88, {NIW-1}"); A("  s_cbranch_scc1 L_sl_sig")
    A("  s_add_u32 s88, s61, 1"); A(f"  v_mov_b32 v{vT0}, s88"); A(f"  ds_write_b32 v{vFlag}, v{vT0} offset:{F_LAST}"); A("  s_waitcnt lgkmcnt(0)")
    A("L_sl_sig:")
    A("  s_mov_b64 exec, 1"); A(f"  ds_add_u32 v{vT1}, v{vOne} offset:{F_RDY}"); A("  s_mov_b64 exec, -1")
    A("  s_add_u32 s61, s61, 1"); A("  s_branch L_sl_idle")

def gen_iwave():
    A("L_k2_iwave:")
    A(f"  s_setprio {os.environ.get('IPRIO', '3')}")
    A("  s_sub_u32 s60, s35, 8")
    A("  s_lshl_b32 s60, s60, 5")
    A("  s_mov_b32 s52, 0x1fc")
    A("  s_mov_b64 s[54:55], 0")
    A(f"  v_mov_b32 v{vOOB}, {OOB:#x}")
    A(f"  v_add_u32 v{vDescOff}, s60, v1")
    A(f"  v_cmp_gt_u32 vcc, 250, v{vDescOff}")
    A(f"  v_cmp_gt_u32 s[40:41], 32, v1")
    A(f"  v_lshlrev_b32 v{vDescOff}, 2, v1")
    A(f"  s_and_b64 vcc, vcc, s[40:41]")
    A(f"  s_nop 1")
    A(f"  v_cndmask_b32 v{vDescOff}, v{vOOB}, v{vDescOff}, vcc")
    A("  s_mov_b32 s61, 0")
    if F0:
        A(f"  v_mov_b32 v{vFlag}, {FLG}")
        A("  s_barrier")
        A("  s_cmp_lg_u32 s35, 8"); A("  s_cbranch_scc1 L_i_lpoll")
        A("L_i_nw:")
        A(f"  ds_read_b64 v[16:17], v{vFlag} offset:24"); A("  s_waitcnt lgkmcnt(0)")
        A("  v_readfirstlane_b32 s28, v16"); A("  v_readfirstlane_b32 s29, v17"); A("  s_nop 3")
        A("  s_cmp_lg_u32 s28, 0"); A("  s_cbranch_scc1 L_i_nok")
        A("  s_cmp_eq_u32 s97, 0"); A("  s_cbranch_scc1 L_i_nok"); A("  s_sub_u32 s97, s97, 1")
        A("  s_sleep 2"); A("  s_branch L_i_nw")
        A("L_i_nok:")
        A("  s_and_b32 s62, s2, 7"); A("  s_lshl_b32 s62, s62, 13")
        A(f"  v_lshlrev_b32 v{vT1}, 3, v1")
        A("L_i_rpoll:")
        for k in range(8):
            if k == 7: A("  s_bfm_b64 exec, 52, 0")
            A(f"  buffer_load_dwordx2 v[{16+2*k}:{17+2*k}], v{vT1}, s[24:27], s62 offen offset:{512*k} sc1")
        A("  s_mov_b64 exec, -1"); A("  s_waitcnt vmcnt(0)"); A("  s_mov_b64 s[64:65], -1")
        for k in range(8):
            if k == 7: A("  s_bfm_b64 exec, 52, 0")
            A(f"  v_cmp_ne_u64 vcc, s[28:29], v[{16+2*k}:{17+2*k}]")
            A(f"  s_cmp_eq_u64 vcc, 0"); A(f"  s_cselect_b64 s[64:65], s[64:65], 0")
        A("  s_mov_b64 exec, -1")
        A("  s_cmp_lg_u64 s[64:65], 0"); A("  s_cbranch_scc1 L_i_rok")
        A("  s_cmp_eq_u32 s97, 0"); A("  s_cbranch_scc1 L_i_rok"); A("  s_sub_u32 s97, s97, 1")
        A(f"  s_sleep {os.environ.get('RSLEEP', '8')}"); A("  s_branch L_i_rpoll")
        A("L_i_rok:")
        A(f"  v_mov_b32 v{vT0}, 1"); A(f"  ds_write_b32 v{vFlag}, v{vT0} offset:20")
        A("  s_branch L_i_rdone")
        A("L_i_lpoll:")
        A("  s_mov_b32 s62, 1")
        poll(vFlag, 20, 62, "L_i_lp", vT0, 63, 2)
        A("L_i_rdone:")
        stampk(k=42)
    iw_desc_load(vD0, 61, 0)
    iw_desc_load(vD1, 61, 1)
    iw_desc_load(vD2, 61, 2)
    A(f"  v_mov_b32 v{vOne}, 1")
    A(f"  v_mov_b32 v{vKB}, {BS//4}")
    A(f"  v_lshrrev_b32 v{vPerm}, 4, v1")
    A(f"  v_mov_b32 v{vTileJ}, {TILE_BYTES}")
    A(f"  v_mul_lo_u32 v{vTileJ}, v{vTileJ}, v{vPerm}")
    A(f"  v_lshlrev_b32 v{vPerm}, 2, v{vPerm}")
    A(f"  v_and_b32 v{vL15}, 15, v1")
    A(f"  v_mov_b32 v{vFlag}, {FLG}")
    A("  s_waitcnt vmcnt(2)")
    iw_issue_raw(0, vD0, 61, 0)
    A("  s_waitcnt vmcnt(9)")
    out[-1] = "  s_waitcnt vmcnt(9)"
    iw_issue_raw(1, vD1, 61, 1)
    if not F0: A("  s_barrier")
    A("  s_waitcnt vmcnt(8)")
    A("L_iw_loop:")
    iw_chunk(0)
    iw_chunk(1)
    A(f"  s_cmp_lt_u32 s61, {NCH}")
    A("  s_cbranch_scc1 L_iw_loop")
    gen_iw_slow()
    A("L_iw_epi:")
    gen_epilogue()
    stamp_flush()
    A("  s_endpgm")

D = int(os.environ.get("GD", "2")); U = D + 1; LEAD = D + 2; MINT = D + 3
assert U % 3 == 0
B1A, B1B, DA, DB, A2 = 18, 22, 26, 30, 34
XR = lambda u: 38 + 4*(u % U)
WR = lambda u: 38 + 4*U + (u % U)
CR = lambda u: 38 + 5*U + (u % U)
B2 = lambda p: 38 + 6*U + 4*(p % 3)
assert 38 + 6*U + 12 <= 88
ACC = lambda j: 88 + 4*j
vLane4, vHalf16, vSelW, vSelR, vZero, vList, vG, vA, vA2, vS, vFl, vOne1, vBin, vLA = 2, 3, 4, 5, 6, 7, 8, 9, 10, 11, 12, 13, 14, 16
vF0 = DA
T0, T1, T2, T3 = DA, DA+1, DA+2, DA+3
sM1 = 44; sT = 45; sD = 46; sLeft = 47
sNB = 48
sTot = 58; sCI = 59; sCC = 60; sEnd = 61
sNBn = 64
sLo = 80

def g_body(j, u):
    A(f"L_g_{j}_{u}:")
    if os.environ.get("GPRIO", "") == "iter": A(f"  s_setprio {u % 3}")
    A(f"  s_waitcnt lgkmcnt(6)")
    A(f"  v_and_or_b32 v{vG}, v{WR(u+D)}, s{sM1}, v{vHalf16}")
    if "noload" not in EXP:
        A(f"  buffer_load_dwordx4 {vr(XR(u+D))}, v{vG}, s[8:11], 0 offen")
        A(f"  s_waitcnt vmcnt({D})")
    A(f"  v_mfma_f32_16x16x32_bf16 {vr(DA)}, {vr(XR(u))}, {vr(B1A)}, 0")
    A(f"  v_mfma_f32_16x16x32_bf16 {vr(DB)}, {vr(XR(u))}, {vr(B1B)}, 0")
    A(f"  v_readlane_b32 s{sD}, v{vList}, s{sT}")
    A(f"  s_add_u32 s{sT}, s{sT}, 1")
    A(f"  v_and_or_b32 v{vA2}, v{WR(u+2)}, 30, v{vSelW}")
    A(f"  v_add_u32 v{vA}, s{sD}, v{vLane4}")
    A(f"  ds_write_b16 v{vS}, v{vZero}")
    A(f"  ds_write_b16 v{vA2}, v{CR(u+2)}")
    A(f"  v_mov_b32 v{vS}, v{vA2}")
    A(f"  ds_read_b64_tr_b16 {vr(B2(u+2),2)}, v{vSelR}")
    A(f"  ds_read_b64_tr_b16 {vr(B2(u+2)+2,2)}, v{vSelR} offset:512")
    A(f"  ds_read_b32 v{WR(u+D+2)}, v{vA} offset:{WB}")
    A(f"  v_lshrrev_b32 v{vA}, 1, v{vA}")
    A(f"  ds_read_u16 v{CR(u+D+2)}, v{vA}")
    A(f"  v_cvt_pk_bf16_f32 v{A2}, v{DA}, v{DA+1}")
    A(f"  v_cvt_pk_bf16_f32 v{A2+1}, v{DA+2}, v{DA+3}")
    A(f"  v_cvt_pk_bf16_f32 v{A2+2}, v{DB}, v{DB+1}")
    A(f"  v_cvt_pk_bf16_f32 v{A2+3}, v{DB+2}, v{DB+3}")
    A(f"  s_cmp_eq_u32 s{sT}, s{sTot}")
    A(f"  s_cbranch_scc1 L_gc_{j}_{u}")
    A(f"L_gb_{j}_{u}:")
    A(f"  s_sub_u32 s{sLeft}, s{sLeft}, 1")
    A(f"  v_mfma_f32_16x16x32_bf16 {vr(ACC(j))}, {vr(A2)}, {vr(B2(u))}, {vr(ACC(j))}")
    A(f"  s_cbranch_scc1 L_gn_{j+1}_{(u+1)%U}")
    if u == U-1:
        A(f"  s_branch L_g_{j}_0")

def g_callstub(j, u):
    A(f"L_gc_{j}_{u}:")
    A(f"  s_call_b64 s[30:31], L_setup")
    A(f"  s_branch L_gb_{j}_{u}")

def g_next(j, u):
    A(f"L_gn_{j}_{u}:")
    if j == GPW:
        A(f"  s_add_u32 s{sCC}, s{sCC}, 1")
        stampk(sreg=sCC, add=0)
        A(f"  s_cmp_eq_u32 s{sCC}, s{sEnd}")
        A(f"  s_cbranch_scc1 L_g_end")
        A(f"  s_cmp_lg_u32 s{sCC}, {NCH}")
        A(f"  s_cbranch_scc1 L_gz_{u}")
        A(f"  s_nop 7")
        for jj in range(GPW):
            for k in range(4): A(f"  v_mov_b32 v{ACC(jj)+k}, 0")
        A(f"L_gz_{u}:")
        for k in range(0, GPW, 2):
            A(f"  s_mov_b64 s[{sNB+k}:{sNB+k+1}], s[{sNBn+k}:{sNBn+k+1}]")
        A(f"  s_branch L_gn_0_{u}")
        return
    A(f"  s_sub_u32 s{sLeft}, s{sNB+j}, 1")
    A(f"  s_cbranch_scc1 L_gn_{j+1}_{u}")
    A(f"  s_branch L_g_{j}_{u}")

def fill_own_bins(sreg_p):
    for k in range(4):
        A(f"  v_mov_b32 v{vF0+k}, {DUMMY_W:#x}")
        A(f"  v_mov_b32 v{vF0+4+k}, 0")
    A(f"  s_mul_i32 s76, s{sreg_p}, {PB}")
    A(f"  s_mul_i32 s77, s35, {GPW*BS}")
    A(f"  s_add_u32 s76, s76, s77")
    A(f"  v_add_u32 v{vA}, s76, v{vLA}")
    for k in range(5):
        A(f"  ds_write_b128 v{vA}, {vr(vF0)} offset:{WB + 1024*k}")
    A(f"  s_mov_b64 exec, 0x3ff")
    A(f"  ds_write_b128 v{vA}, {vr(vF0)} offset:{WB + 5120}")
    A(f"  s_mov_b64 exec, -1")
    A(f"  s_lshr_b32 s76, s76, 1")
    A(f"  v_add_u32 v{vA}, s76, v{vLA}")
    A(f"  ds_write_b128 v{vA}, {vr(vF0+4)}")
    A(f"  ds_write_b128 v{vA}, {vr(vF0+4)} offset:1024")
    A(f"  s_mov_b64 exec, 0x{(1<<37)-1:x}") if False else None
    A(f"  s_bfm_b64 exec, 37, 0")
    A(f"  ds_write_b128 v{vA}, {vr(vF0+4)} offset:2048")
    A(f"  s_mov_b64 exec, -1")

def g_setup():
    A("L_setup:")
    A(f"  s_waitcnt lgkmcnt(0)")
    stampk(sreg=sCI, add=17)
    A(f"  s_cmp_lt_i32 s{sCI}, 0")
    A(f"  s_cbranch_scc1 L_su_nosig")
    A(f"  s_and_b32 s75, s{sCI}, 1")
    fill_own_bins(75)
    A(f"  s_lshl_b32 s75, s75, 2")
    A(f"  v_add_u32 v{vA}, s75, v{vFl}")
    A(f"  s_waitcnt lgkmcnt(0)")
    A(f"  s_mov_b64 exec, 1")
    A(f"  ds_add_u32 v{vA}, v{vOne1} offset:{F_DONE}")
    A(f"  s_mov_b64 exec, -1")
    A("L_su_nosig:")
    A(f"  s_add_u32 s{sCI}, s{sCI}, 1")
    A(f"  v_lshrrev_b32 v{vG}, 2, v{vLA}")
    A(f"  s_lshl_b32 s76, s35, 8")
    A(f"  s_add_u32 s76, s76, {LIST}")
    A(f"  v_add_u32 v{vG}, s76, v{vG}")
    A(f"  s_cmp_lg_u32 s{sCI}, {NCH}")
    A(f"  s_cbranch_scc1 L_su_noovf")
    A(f"  ds_read_b32 v{vA2}, v{vFl} offset:{F_OVF}"); A(f"  s_waitcnt lgkmcnt(0)")
    A(f"  v_readfirstlane_b32 s77, v{vA2}"); A(f"  s_nop 3"); A(f"  s_cmp_eq_u32 s77, 0"); A(f"  s_cbranch_scc1 L_su_noovf")
    A(f"  s_mov_b32 s{sEnd}, 0x7fffffff")
    A("L_su_noovf:")
    A(f"  s_cmp_lt_u32 s{sCI}, s{sEnd}")
    A(f"  s_cbranch_scc1 L_su_real")
    A(f"  v_mov_b32 v{vList}, {DUMMY_X}")
    A(f"  s_mov_b32 s{sTot}, 0x7fffffff")
    A(f"  s_mov_b32 s{sT}, 0")
    A(f"  s_setpc_b64 s[30:31]")
    A("L_su_real:")
    A(f"  v_mov_b32 v{vList}, {DUMMY_X}")
    A(f"  ds_write_b32 v{vG}, v{vList}")
    A(f"  s_and_b32 s75, s{sCI}, 1")
    A(f"  s_lshl_b32 s77, s75, 2")
    A(f"  v_add_u32 v{vA}, s77, v{vFl}")
    A(f"  s_lshr_b32 s77, s{sCI}, 1")
    A(f"  s_add_u32 s77, s77, 1")
    A(f"  s_mul_i32 s77, s77, {NIW}")
    poll(vA, F_RDY, 77, "L_su_poll", vA2, 78, 2)
    A(f"  s_cmp_lt_u32 s{sCI}, {NCH}"); A(f"  s_cbranch_scc1 L_su_nolast")
    A(f"  ds_read_b32 v{vA2}, v{vFl} offset:{F_LAST}"); A(f"  s_waitcnt lgkmcnt(0)")
    A(f"  v_readfirstlane_b32 s77, v{vA2}"); A(f"  s_add_u32 s78, s{sCI}, 1"); A(f"  s_nop 2")
    A(f"  s_cmp_eq_u32 s77, s78"); A(f"  s_cselect_b32 s{sEnd}, s78, s{sEnd}")
    A("L_su_nolast:")
    A(f"  s_lshl_b32 s77, s75, 9")
    A(f"  s_mul_i32 s78, s35, {GPW*4}")
    A(f"  s_add_u32 s77, s77, s78")
    A(f"  s_add_u32 s77, s77, {CNT}")
    A(f"  v_lshrrev_b32 v{vA}, 2, v{vLA}")
    A(f"  v_add_u32 v{vA}, s77, v{vA}")
    A(f"  s_mov_b64 exec, 0x3ff")
    A(f"  v_mov_b32 v{T0}, 0")
    A(f"  s_mov_b64 exec, -1")
    A(f"  v_mov_b32 v{T0}, 0")
    A(f"  s_mov_b64 exec, 0x3ff")
    A(f"  ds_read_b32 v{T0}, v{vA}")
    A(f"  s_waitcnt lgkmcnt(0)")
    A(f"  ds_write_b32 v{vA}, v{vZero}")
    A(f"  s_mov_b64 exec, -1")
    A(f"  v_min_u32 v{T0}, {CAP}, v{T0}")
    A(f"  v_add_u32 v{T0}, 31, v{T0}")
    A(f"  v_lshrrev_b32 v{T0}, 5, v{T0}")
    A(f"  v_mov_b32 v{T1}, v{T0}")
    A(f"  s_mul_i32 s77, s75, {PB}")
    A(f"  s_mul_i32 s78, s35, {GPW*BS}")
    for sh in (1, 2, 4, 8):
        A(f"  s_nop 0") if sh > 1 else A(f"  s_add_u32 s77, s77, s78")
        A(f"  v_add_u32_dpp v{T1}, v{T1}, v{T1} row_shr:{sh} row_mask:0xf bank_mask:0xf bound_ctrl:0")
        A(f"  s_nop 0")
    A(f"  v_add_u32 v{T2}, s77, v{vBin}")
    A(f"  v_sub_u32 v{T3}, v{T1}, v{T0}")
    A(f"  v_lshl_add_u32 v{T3}, v{T3}, 2, s76")
    for i in range(4):
        A(f"  v_cmp_lt_u32 vcc, {i}, v{T0}")
        A(f"  s_and_saveexec_b64 s[78:79], vcc")
        A(f"  ds_write_b32 v{T3}, v{T2} offset:{4*i}")
        A(f"  s_mov_b64 exec, s[78:79]")
        if i < 3: A(f"  v_add_u32 v{T2}, 128, v{T2}")
    A(f"  ds_read_b32 v{vList}, v{vG}")
    for j in range(GPW):
        A(f"  v_readlane_b32 s{sNBn+j}, v{T0}, {j}")
    A(f"  v_readlane_b32 s77, v{T1}, {GPW-1}")
    A(f"  s_nop 2")
    A(f"  s_max_u32 s{sTot}, s77, {MINT}")
    A(f"  s_sub_u32 s77, s{sTot}, s77")
    A(f"  s_add_u32 s{sNBn+GPW-1}, s{sNBn+GPW-1}, s77")
    A(f"  s_mov_b32 s{sT}, 0")
    A(f"  s_waitcnt lgkmcnt(0)")
    A(f"  s_setpc_b64 s[30:31]")

def gen_gwave():
    A(f"  s_load_dwordx2 s[38:39], s[0:1], 72")
    PFL = int(os.environ.get("PFL", "0"))
    if PFL:
        A("  s_lshr_b32 s40, s2, 3"); A("  s_lshl_b32 s40, s40, 9"); A("  s_lshl_b32 s41, s35, 6"); A("  s_add_u32 s40, s40, s41")
        A("  v_add_u32 v16, s40, v1"); A("  v_lshlrev_b32 v16, 7, v16")
        for k in range((PFL + 16383) // 16384):
            A(f"  s_mov_b32 s42, {k*16384*128}")
            A(f"  buffer_load_dword v{76+k}, v16, s[8:11], s42 offen")
    lds_init()
    A(f"  v_and_b32 v{vLane4}, 31, v1")
    A(f"  v_lshlrev_b32 v{vLane4}, 2, v{vLane4}")
    A(f"  v_lshrrev_b32 v{vHalf16}, 5, v1")
    A(f"  v_lshlrev_b32 v{vHalf16}, 4, v{vHalf16}")
    A(f"  v_lshlrev_b32 v{vLA}, 4, v1")
    A(f"  v_mul_u32_u24 v{vBin}, {BS}, v1")
    A(f"  s_mov_b32 s{sM1}, {DUMMY_W:#x}")
    A(f"  s_lshl_b32 s40, s35, 10")
    A(f"  s_add_u32 s40, s40, {SEL}")
    A(f"  v_and_b32 v20, 31, v1")
    A(f"  v_lshl_add_u32 v{vSelW}, v20, 5, s40")
    A(f"  v_lshl_add_u32 v{vSelR}, v1, 3, s40")
    srd(28, 38, 512)
    A(f"  v_lshrrev_b32 v19, 4, v1")
    A(f"  v_and_b32 v18, 15, v1")
    A(f"  v_lshrrev_b32 v20, 1, v19")
    A(f"  v_lshlrev_b32 v20, 8, v20")
    A(f"  v_lshl_add_u32 v20, v18, 1, v20")
    for jj in range(8):
        A(f"  buffer_load_ushort v{DA+jj}, v20, s[28:31], 0 offen offset:{32*jj}")
    A(f"  v_mov_b32 v{vZero}, 0")
    A(f"  v_mov_b32 v{vFl}, {FLG}")
    A(f"  v_mov_b32 v{vOne1}, 1")
    A(f"  v_mov_b32 v{vS}, v{vSelW}")
    A(f"  v_and_b32 v21, 1, v19")
    A(f"  v_cmp_eq_u32 s[40:41], 0, v21")
    for u in range(U):
        for k in range(4):
            A(f"  v_mov_b32 v{XR(u)+k}, 0")
        A(f"  v_mov_b32 v{WR(u)}, {DUMMY_W:#x}")
        A(f"  v_mov_b32 v{CR(u)}, 0")
    for p in range(3):
        for k in range(4):
            A(f"  v_mov_b32 v{B2(p)+k}, 0")
    for j in range(GPW):
        for k in range(4):
            A(f"  v_mov_b32 v{ACC(j)+k}, 0")
    A(f"  s_waitcnt vmcnt(0)")
    for k in range(4):
        A(f"  v_lshl_or_b32 v{DA+k}, v{DA+1+2*k}, 16, v{DA+2*k}")
    for k in range(4):
        A(f"  v_cndmask_b32 v{B1A+k}, v{vZero}, v{DA+k}, s[40:41]")
        A(f"  v_cndmask_b32 v{B1B+k}, v{DA+k}, v{vZero}, s[40:41]")
    A("  s_barrier")
    if F0:
        A("  s_cmp_lg_u32 s35, 0"); A("  s_cbranch_scc1 L_g_nonon")
        A("  v_mov_b32 v76, s60"); A("  v_mov_b32 v77, s61")
        A(f"  ds_write_b64 v{vFl}, v[76:77] offset:24")
        A("L_g_nonon:")
    A(f"  s_mov_b32 s{sCI}, -1")
    A(f"  s_mov_b32 s{sCC}, 0")
    A(f"  s_mov_b32 s{sEnd}, {NCH}")
    A(f"  s_call_b64 s[30:31], L_setup")
    for k in range(0, GPW, 2):
        A(f"  s_mov_b64 s[{sNB+k}:{sNB+k+1}], s[{sNBn+k}:{sNBn+k+1}]")
    A(f"  s_add_u32 s{sLeft}, s{sNB}, {LEAD-1}")
    for j in range(GPW):
        for u in range(U):
            g_body(j, u)
    for j in range(GPW):
        for u in range(U):
            g_callstub(j, u)
    for j in range(0, GPW+1):
        for u in range(U):
            g_next(j, u)
    g_setup()
    A("L_g_end:")
    A("  s_waitcnt vmcnt(0) lgkmcnt(0)")
    A("  s_nop 7")
    A(f"  s_mul_i32 s76, s35, {GPW*BS}")
    A(f"  s_add_u32 s76, s76, {WB}")
    A(f"  v_add_u32 v{vA}, s76, v{vLA}")
    for j in range(GPW):
        A(f"  ds_write_b128 v{vA}, {vr(ACC(j))} offset:{(j//5)*PB + (j%5)*1024}")
    A(f"  s_lshl_b32 s76, s35, 2")
    A(f"  v_add_u32 v{vA}, s76, v{vFl}")
    A(f"  s_waitcnt lgkmcnt(0)")
    A(f"  s_mov_b64 exec, 1")
    A(f"  ds_write_b32 v{vA}, v{vOne1} offset:{F_FIN}")
    A(f"  s_mov_b64 exec, -1")
    A(f"  s_waitcnt lgkmcnt(0)")
    stamp_flush()

def gen_epilogue():
    A("  s_load_dwordx2 s[36:37], s[0:1], 24")
    A("  s_load_dwordx2 s[38:39], s[0:1], 40")
    A("  s_load_dwordx4 s[40:43], s[0:1], 56")
    A("  s_load_dwordx4 s[44:47], s[0:1], 80")
    A("  s_waitcnt lgkmcnt(0)")
    srd(12, 36, E*2); srd(16, 46, E*32); srd(20, 38, 16); srd(24, 40, 256); srd(28, 42, 256); srd(48, 44, 512)
    n, q = 2, 3
    A(f"  v_and_b32 v{n}, 15, v1"); A(f"  v_lshrrev_b32 v{q}, 4, v1")
    A(f"  v_lshlrev_b32 v4, 6, v{q}"); A(f"  v_lshl_add_u32 v4, v{n}, 1, v4")
    A("  buffer_load_ushort v96, v4, s[28:31], 0 offen"); A("  buffer_load_ushort v97, v4, s[28:31], 0 offen offset:32")
    A("  buffer_load_ushort v98, v4, s[24:27], 0 offen"); A("  buffer_load_ushort v99, v4, s[24:27], 0 offen offset:32")
    A(f"  v_lshlrev_b32 v4, 7, v{q}"); A(f"  v_lshl_add_u32 v4, v{n}, 1, v4")
    for k in range(4): A(f"  buffer_load_ushort v{100+k}, v4, s[48:51], 0 offen offset:{32*k}")
    A(f"  v_lshlrev_b32 v4, 2, v{q}")
    A("  buffer_load_ushort v104, v4, s[20:23], 0 offen"); A("  buffer_load_ushort v105, v4, s[20:23], 0 offen offset:2")
    A("  s_sub_u32 s52, s35, 8"); A(f"  s_mul_i32 s52, s52, {GPW*16}")
    A(f"  v_add_u32 v5, s52, v{n}")
    A("  s_mul_i32 s53, s3, 1250")
    for j in range(GPW):
        A(f"  v_add_u32 v6, s53, v5")
        if j: A(f"  v_add_u32 v6, {16*j}, v6")
        A(f"  v_lshlrev_b32 v7, 1, v6")
        A(f"  buffer_load_ushort v{16+8*j}, v7, s[12:15], 0 offen")
        A(f"  v_lshlrev_b32 v7, 5, v6")
        A(f"  v_lshl_add_u32 v7, v{q}, 3, v7")
        A(f"  buffer_load_dwordx2 v[{22+8*j}:{23+8*j}], v7, s[8:11], 0 offen")
    A(f"  s_waitcnt vmcnt({2*GPW})")
    A("  v_lshl_or_b32 v108, v97, 16, v96"); A("  v_lshl_or_b32 v112, v99, 16, v98")
    A("  v_lshl_or_b32 v116, v101, 16, v100"); A("  v_lshl_or_b32 v117, v103, 16, v102")
    A("  v_mov_b32 v118, v116"); A("  v_mov_b32 v119, v117")
    for r in (109, 110, 111, 113, 114, 115, 121, 122, 123): A(f"  v_mov_b32 v{r}, 0")
    A("  v_lshlrev_b32 v104, 16, v104"); A("  v_lshlrev_b32 v105, 16, v105")
    A("  s_mov_b32 s54, 0xffff0000"); A(f"  s_mov_b32 s55, {f2u(-10.0):#x}"); A(f"  s_mov_b32 s56, {f2u(LOG2E):#x}")
    A("  s_waitcnt vmcnt(0)")
    for j in range(GPW):
        b = 16 + 8*j
        A(f"  v_lshlrev_b32 v8, 16, v{b}")
        A(f"  v_sub_f32 v9, v8, v104"); A(f"  v_sub_f32 v10, v8, v105")
        for step, op in enumerate(["sq", "m10", "exp"]):
            A(f"  v_cvt_pk_bf16_f32 v11, v9, v10")
            A(f"  v_lshlrev_b32 v9, 16, v11"); A(f"  v_and_b32 v10, s54, v11")
            if op == "sq":
                A(f"  v_mul_f32 v9, v9, v9"); A(f"  v_mul_f32 v10, v10, v10")
            elif op == "m10":
                A(f"  v_mul_f32 v9, s55, v9"); A(f"  v_mul_f32 v10, s55, v10")
            else:
                A(f"  v_mul_f32 v9, s56, v9"); A(f"  v_mul_f32 v10, s56, v10")
                A(f"  v_exp_f32 v9, v9"); A(f"  v_exp_f32 v10, v10"); A(f"  s_nop 0")
        A(f"  v_cvt_pk_bf16_f32 v120, v9, v10")
        A(f"  s_nop 1")
        A(f"  v_mfma_f32_16x16x32_bf16 v[{b}:{b+3}], v[108:111], v[120:123], 0")
        A(f"  v_mfma_f32_16x16x32_bf16 v[96:99], v[112:115], v[120:123], 0")
        A(f"  s_nop 7")
        A(f"  v_cvt_pk_bf16_f32 v{b+4}, v96, v97")
        A(f"  v_cvt_pk_bf16_f32 v{b+5}, v98, v99")
    stampk(k=40)
    A("  s_sub_u32 s57, s35, 8"); A("  s_lshl_b32 s58, s57, 2")
    A(f"  v_mov_b32 v4, {FLG}"); A("  v_add_u32 v4, s58, v4")
    A("  s_mov_b32 s59, 1")
    poll(4, F_FIN, 59, "L_ep_poll", 6, 58, int(os.environ.get("ESLEEP", "2")))
    stampk(k=41)
    A(f"  s_mul_i32 s57, s57, {GPW*BS}"); A(f"  s_add_u32 s57, s57, {WB}")
    A("  v_lshlrev_b32 v4, 4, v1"); A("  v_add_u32 v4, s57, v4")
    A(f"  v_mov_b32 v124, {OOB:#x}"); A("  s_movk_i32 s57, 1250")
    for j in range(GPW):
        b = 16 + 8*j
        acc = 96 + 4*(j % 2)
        if j == 0:
            A(f"  ds_read_b128 v[96:99], v4 offset:0")
        if j + 1 < GPW:
            jn = j + 1
            A(f"  ds_read_b128 v[{96+4*(jn%2)}:{99+4*(jn%2)}], v4 offset:{(jn//5)*PB + (jn%5)*1024}")
            A(f"  s_waitcnt lgkmcnt(1)")
        else:
            A(f"  s_waitcnt lgkmcnt(0)")
        for k in range(4): A(f"  v_mul_f32 v{8+k}, v{acc+k}, v{b+k}")
        A(f"  v_cvt_pk_bf16_f32 v104, v8, v9"); A(f"  v_cvt_pk_bf16_f32 v105, v10, v11")
        A(f"  v_lshlrev_b32 v12, 16, v104"); A(f"  v_and_b32 v13, s54, v104")
        A(f"  v_lshlrev_b32 v14, 16, v105"); A(f"  v_and_b32 v125, s54, v105")
        A(f"  v_sub_f32 v8, v8, v12"); A(f"  v_sub_f32 v9, v9, v13"); A(f"  v_sub_f32 v10, v10, v14"); A(f"  v_sub_f32 v11, v11, v125")
        A(f"  v_cvt_pk_bf16_f32 v106, v8, v9"); A(f"  v_cvt_pk_bf16_f32 v107, v10, v11")
        A(f"  v_add_u32 v6, {16*j}, v5")
        A(f"  v_cmp_gt_u32 vcc, s57, v6")
        A(f"  v_mfma_f32_16x16x32_bf16 v[108:111], v[116:119], v[104:107], 0")
        A(f"  v_add_u32 v6, s53, v6"); A(f"  v_lshlrev_b32 v6, 5, v6"); A(f"  v_lshl_add_u32 v6, v{q}, 3, v6")
        A(f"  v_cndmask_b32 v6, v124, v6, vcc")
        A(f"  v_lshlrev_b32 v8, 16, v{b+4}"); A(f"  v_and_b32 v9, s54, v{b+4}"); A(f"  v_lshlrev_b32 v10, 16, v{b+5}"); A(f"  v_and_b32 v11, s54, v{b+5}")
        A(f"  v_lshlrev_b32 v12, 16, v{b+6}"); A(f"  v_and_b32 v13, s54, v{b+6}"); A(f"  v_lshlrev_b32 v14, 16, v{b+7}"); A(f"  v_and_b32 v125, s54, v{b+7}")
        A(f"  v_fma_f32 v12, v108, v8, v12"); A(f"  v_fma_f32 v13, v109, v9, v13"); A(f"  v_fma_f32 v14, v110, v10, v14"); A(f"  v_fma_f32 v125, v111, v11, v125")
        A(f"  v_cvt_pk_bf16_f32 v{b+4}, v12, v13"); A(f"  v_cvt_pk_bf16_f32 v{b+5}, v14, v125")
        A(f"  buffer_store_dwordx2 v[{b+4}:{b+5}], v6, s[16:19], 0 offen")

def gen_k2():
    k2_prologue()
    gen_gwave()
    A("L_k2_end:")
    A("  s_endpgm")
    gen_iwave()

if __name__ == "__main__":
    A(f"; @launch kernel=k1_kernel grid=(256,1,1) block=(1024,1,1) lds={gen.K1_LDS}")
    A(f"; @launch kernel=k2_kernel grid=(256,1,1) block=(1024,1,1) lds={K2_LDS}")
    A('.amdgcn_target "amdgcn-amd-amdhsa--gfx950"')
    A(".text")
    gen.STAMP = False
    gen_k1()
    gen_k2()
    A('.section .rodata,"a"')
    A(".p2align 6")
    desc_block("k1_kernel", 128)
    A(".p2align 6")
    desc_block("k2_kernel", 128, 100)
    lines = [l for l in out if l is not None]
    open(sys.argv[1], "w").write("\n".join(lines) + "\n")
```

```python
import struct, sys, os
import numpy as np

E = 320000; T = 10240000
TILE = 20480; NT = 500; NBIN = 1024
TILE_BYTES = 129024
DESC_OFF = NT * TILE_BYTES
DESC_ROW = 512 * 4
ROWS_PER_B = 1250

out = []
def A(s=""):
    out.append(s)
def f2u(x):
    return struct.unpack("<I", struct.pack("<f", x))[0]

def srd(base_s, ptr_lo, nbytes, off=0):
    if off:
        A(f"  s_add_u32 s{base_s}, s{ptr_lo}, {off}")
        A(f"  s_addc_u32 s{base_s+1}, s{ptr_lo+1}, 0")
    else:
        A(f"  s_mov_b32 s{base_s}, s{ptr_lo}")
        A(f"  s_mov_b32 s{base_s+1}, s{ptr_lo+1}")
    A(f"  s_mov_b32 s{base_s+2}, {nbytes}")
    A(f"  s_mov_b32 s{base_s+3}, 0x20000")

STAMP = False
stamp_idx = [0]
def stamp():
    if not STAMP: return
    i = stamp_idx[0]; stamp_idx[0] += 1
    A(f"  s_memtime s[{60+2*i}:{61+2*i}]")
    A(f"  s_waitcnt lgkmcnt(0)")
def rstamp(reg):
    if not STAMP: return
    A(f"  s_memrealtime s[{reg}:{reg+1}]")
    A(f"  s_waitcnt lgkmcnt(0)")
def stamp_flush(wgsel):
    if not STAMP: return
    n = stamp_idx[0]
    A(f"  s_cmp_lg_u32 s2, {wgsel}")
    A(f"  s_cbranch_scc1 L_nostamp")
    A(f"  s_cmp_lg_u32 s35, 0")
    A(f"  s_cbranch_scc1 L_nostamp")
    A(f"  s_load_dwordx2 s[44:45], s[0:1], 96")
    A(f"  s_waitcnt lgkmcnt(0)")
    srd(48, 44, 256)
    A(f"  v_mov_b32 v4, 0")
    for i in range(n):
        A(f"  s_sub_u32 s46, s{60+2*i}, s60")
        A(f"  v_mov_b32 v5, s46")
        A(f"  buffer_store_dword v5, v4, s[48:51], 0 offen offset:{4*i}")
    A(f"  s_sub_u32 s46, s94, s92")
    A(f"  v_mov_b32 v5, s46")
    A(f"  buffer_store_dword v5, v4, s[48:51], 0 offen offset:{4*n}")
    A(f"L_nostamp:")
K1_HIST = TILE_BYTES
K1_WT = K1_HIST + 4096
K1_LDS = K1_WT + 64

c_full = 0.15915494309189535
c_hi_u = f2u(c_full) & 0xFFFFFF00
c_hi = struct.unpack("<f", struct.pack("<I", c_hi_u))[0]
c_lo_u = f2u(c_full - c_hi)

def k1_loads(O, I, An, stau, nt=os.environ.get("K1_LD", " nt")):
    A(f"  s_mul_i32 s40, s{stau}, 81920")
    A(f"  s_mul_i32 s42, s{stau}, 40960")
    for c in range(5):
        A(f"  buffer_load_dwordx4 v[{O+4*c}:{O+4*c+3}], v1, s[8:11], s40 offen{nt}")
        A(f"  buffer_load_dwordx4 v[{I+4*c}:{I+4*c+3}], v1, s[12:15], s40 offen{nt}")
        A(f"  buffer_load_dwordx2 v[{An+2*c}:{An+2*c+1}], v2, s[16:19], s42 offen{nt}")
        if c < 4:
            A(f"  s_add_u32 s40, s40, 16384")
            A(f"  s_add_u32 s42, s42, 8192")

def k1_fields(O, I, An, c):
    for r in range(4):
        o = O + 4*c + r; i = I + 4*c + r
        A(f"  v_mul_hi_u32_u24 v12, s28, v{o}")
        A(f"  v_mul_hi_u32_u24 v13, s30, v{i}")
        A(f"  v_mad_i32_i24 v14, v12, s29, v{o}")
        A(f"  v_lshlrev_b32 v12, 2, v12")
        A(f"  v_lshl_or_b32 v{o}, v13, 10, v12")
        A(f"  v_lshl_or_b32 v{i}, v{i}, 5, s32")
        A(f"  v_lshlrev_b32 v15, 20, v14")
        A(f"  v_lshlrev_b32 v14, 1, v14")
        A(f"  v_and_or_b32 v{i}, v15, s37, v{i}")
        A(f"  v_and_or_b32 v{i}, v14, 30, v{i}")
        rk = 4 + (c % 2) * 4 + r
        A(f"  ds_add_rtn_u32 v{rk}, v{o}, v3 offset:{K1_HOFF}")
    for h in range(2):
        a = An + 2*c + h
        A(f"  v_lshlrev_b32 v12, 16, v{a}")
        A(f"  v_and_b32 v13, s38, v{a}")
        if os.environ.get("FREQ1", "0") != "1":
            A(f"  v_mul_f32 v12, s31, v12")
            A(f"  v_mul_f32 v13, s31, v13")
            A(f"  v_cvt_pk_bf16_f32 v14, v12, v13")
            A(f"  v_lshlrev_b32 v12, 16, v14")
            A(f"  v_and_b32 v13, s38, v14")
        A(f"  v_mul_f32 v14, s33, v12")
        A(f"  v_mul_f32 v15, s33, v13")
        A(f"  v_fract_f32 v14, v14")
        A(f"  v_fract_f32 v15, v15")
        A(f"  v_fma_f32 v14, v12, s34, v14")
        A(f"  v_fma_f32 v15, v13, s34, v15")
        A(f"  v_cos_f32 v14, v14")
        A(f"  v_cos_f32 v15, v15")
        A(f"  s_nop 0")
        A(f"  v_cvt_pk_bf16_f32 v{a}, v14, v15")

K1_HIST = 0
K1_WT = 4096
K1_STG = 4096 + 128
K1_LDS = K1_STG + TILE_BYTES
K1_HOFF = K1_HIST

def k1_pack(O, c):
    for r in range(4):
        o = O + 4*c + r; rk = 4 + (c % 2) * 4 + r
        A(f"  v_lshl_or_b32 v{o}, v{rk}, 12, v{o}")

def k1_tile(O, I, An, stau, vm_base, tag, after_first=None):
    BAFTER = int(os.environ.get("BAFTER", "0"))
    for c in range(5):
        if vm_base is not None:
            if after_first is not None and c <= BAFTER:
                A(f"  s_waitcnt vmcnt({15 - 3*(c+1)})")
                if c == BAFTER:
                    stamp()
                    after_first()
            else:
                A(f"  s_waitcnt vmcnt({vm_base + 15 - 3*(c+1)})")
        k1_fields(O, I, An, c)
        if c > 0:
            A(f"  s_waitcnt lgkmcnt(4)")
            k1_pack(O, c-1)
    A(f"  s_waitcnt lgkmcnt(0)")
    k1_pack(O, 4)
    stamp()
    A(f"  s_barrier")
    stamp()
    A(f"  ds_read_b32 v4, v16 offset:{K1_HIST}")
    A(f"  s_waitcnt lgkmcnt(0)")
    A(f"  v_add_u32 v5, 1, v4")
    A(f"  v_and_b32 v5, -2, v5")
    A(f"  v_mov_b32 v6, v5")
    A(f"  s_nop 1")
    for sh in (1, 2, 4, 8):
        A(f"  v_add_u32_dpp v6, v6, v6 row_shr:{sh} row_mask:0xf bank_mask:0xf bound_ctrl:0")
        A(f"  s_nop 1")
    A(f"  v_add_u32_dpp v6, v6, v6 row_bcast:15 row_mask:0xa bank_mask:0xf")
    A(f"  s_nop 1")
    A(f"  v_add_u32_dpp v6, v6, v6 row_bcast:31 row_mask:0xc bank_mask:0xf")
    A(f"  s_nop 1")
    A(f"  v_readlane_b32 s43, v6, 63")
    A(f"  s_lshl_b32 s44, s35, 2")
    A(f"  v_mov_b32 v7, s44")
    A(f"  s_nop 0")
    A(f"  v_mov_b32 v8, s43")
    A(f"  ds_write_b32 v7, v8 offset:{K1_WT}")
    A(f"  s_waitcnt lgkmcnt(0)")
    A(f"  s_barrier")
    A(f"  ds_read_b32 v7, v17 offset:{K1_WT}")
    A(f"  s_waitcnt lgkmcnt(0)")
    A(f"  s_nop 1")
    for sh in (1, 2, 4, 8):
        A(f"  v_add_u32_dpp v7, v7, v7 row_shr:{sh} row_mask:0xf bank_mask:0xf bound_ctrl:0")
        A(f"  s_nop 1")
    A(f"  s_sub_u32 s44, s35, 1")
    A(f"  s_max_i32 s44, s44, 0")
    A(f"  v_readlane_b32 s43, v7, s44")
    A(f"  s_cmp_eq_u32 s35, 0")
    A(f"  s_cselect_b32 s43, 0, s43")
    A(f"  v_sub_u32 v6, v6, v5")
    A(f"  s_nop 1")
    A(f"  v_add_u32 v6, s43, v6")
    A(f"  ds_write_b32 v16, v6 offset:{K1_HIST}")
    A(f"  v_add_u32 v7, v6, v5")
    A(f"  v_lshrrev_b32 v8, 1, v6")
    A(f"  v_lshrrev_b32 v7, 1, v7")
    A(f"  v_lshl_or_b32 v7, v7, 16, v8")
    A(f"  s_lshl_b32 s44, s{stau}, 2")
    A(f"  buffer_store_dword v7, v18, s[24:27], s44 offen{os.environ.get('DESC_ST', K1_ST)}")
    A(f"  v_and_b32 v8, 1, v4")
    A(f"  v_cmp_eq_u32 vcc, 1, v8")
    A(f"  v_add_u32 v8, v6, v4")
    A(f"  v_mul_u32_u24 v8, 6, v8")
    A(f"  v_mov_b32 v9, 0")
    A(f"  s_and_saveexec_b64 s[46:47], vcc")
    A(f"  ds_write_b32 v8, v9 offset:{K1_STG - 2}")
    A(f"  s_mov_b64 exec, s[46:47]")
    A(f"  s_waitcnt lgkmcnt(0)")
    A(f"  s_barrier")
    stamp()
    def rd(c):
        for r in range(4):
            o = O + 4*c + r; rk = 4 + (c % 2) * 4 + r
            A(f"  v_and_b32 v{rk}, s39, v{o}")
            A(f"  ds_read_b32 v{rk}, v{rk} offset:{K1_HIST}")
    rd(0)
    for c in range(5):
        if c < 4:
            rd(c+1)
        A(f"  s_waitcnt lgkmcnt({4 if c < 4 else 0})")
        for r in range(4):
            k = 4*c + r; o = O + k; i = I + k; rk = 4 + (c % 2) * 4 + r
            a = An + k // 2
            A(f"  v_lshrrev_b32 v12, 12, v{o}")
            A(f"  v_add_u32 v12, v12, v{rk}")
            A(f"  v_and_b32 v13, 1, v12")
            A(f"  v_mul_u32_u24 v12, 6, v12")
            A(f"  v_mad_i32_i24 v12, v13, -2, v12")
            A(f"  v_mad_i32_i24 v13, v13, -2, v12")
            A(f"  ds_write_b32 v12, v{i} offset:{K1_STG}")
            A(f"  ds_write_b16{'_d16_hi' if k % 2 else ''} v13, v{a} offset:{K1_STG + 8}")
    A(f"  s_waitcnt lgkmcnt(0)")
    A(f"  s_barrier")
    stamp()
    A(f"  v_mov_b32 v9, 0")
    A(f"  ds_write_b32 v16, v9 offset:{K1_HIST}")
    R = O
    assert I == O + 20
    for it in range(7):
        base = "v1" if it < 3 else "v19"
        off = K1_STG + it*16384 - (0 if it < 3 else 49152)
        A(f"  ds_read_b128 v[{R+4*it}:{R+4*it+3}], {base} offset:{off}")
    A(f"  s_cmp_lt_u32 s35, 14")
    A(f"  s_cbranch_scc0 L_k1_skip7_{tag}")
    A(f"  v_add_u32 v12, 65536, v19")
    A(f"  ds_read_b128 v[{R+28}:{R+31}], v12 offset:{K1_STG + 7*16384 - 49152 - 65536}")
    A(f"L_k1_skip7_{tag}:")
    A(f"  s_mul_i32 s44, s{stau}, {TILE_BYTES}")
    A(f"  s_waitcnt lgkmcnt(0)")
    A(f"  s_barrier")
    for it in range(7):
        A(f"  buffer_store_dwordx4 v[{R+4*it}:{R+4*it+3}], v1, s[20:23], s44 offen{K1_ST}")
        A(f"  s_add_u32 s44, s44, 16384")
    A(f"  s_cmp_lt_u32 s35, 14")
    A(f"  s_cbranch_scc0 L_k1_skip7s_{tag}")
    A(f"  buffer_store_dwordx4 v[{R+28}:{R+31}], v1, s[20:23], s44 offen{K1_ST}")
    A(f"L_k1_skip7s_{tag}:")
    stamp()

K1_ST = os.environ.get("K1_ST", "")

def gen_k1():
    A(".p2align 8")
    A(".globl k1_kernel")
    A(".type k1_kernel,@function")
    A("k1_kernel:")
    A("  s_cmp_ge_u32 s2, 256")
    A("  s_cbranch_scc1 L_k1_end")
    stamp()
    rstamp(92)
    A("  s_load_dwordx4 s[4:7], s[0:1], 8")
    A("  s_load_dwordx2 s[44:45], s[0:1], 32")
    A("  s_load_dwordx2 s[46:47], s[0:1], 48")
    A("  s_load_dwordx2 s[48:49], s[0:1], 104")
    A("  s_and_b32 s3, s2, 7")
    A("  s_lshl_b32 s3, s3, 5")
    A("  s_lshr_b32 s36, s2, 3")
    A("  s_add_u32 s3, s3, s36")
    A("  s_add_u32 s36, s3, 256")
    A("  v_lshlrev_b32 v1, 4, v0")
    A("  v_lshlrev_b32 v2, 3, v0")
    A("  v_mov_b32 v3, 1")
    A("  v_lshlrev_b32 v16, 2, v0")
    A("  v_and_b32 v17, 15, v0")
    A("  v_lshlrev_b32 v17, 2, v17")
    A("  v_lshlrev_b32 v18, 11, v0")
    A("  v_add_u32 v19, 49152, v1")
    A("  v_lshrrev_b32 v4, 6, v0")
    A("  s_nop 0")
    A("  v_readfirstlane_b32 s35, v4")
    A("  s_mov_b32 s28, 3435974")
    A("  s_mov_b32 s29, -1250")
    A("  s_mov_b32 s30, 53248")
    A("  s_mov_b32 s32, 0x80000000")
    A(f"  s_mov_b32 s33, {c_hi_u:#x}")
    A(f"  s_mov_b32 s34, {c_lo_u:#x}")
    A("  s_mov_b32 s37, 0x7f000000")
    A("  s_mov_b32 s38, 0xffff0000")
    A("  s_mov_b32 s39, 0xfff")
    A("  v_mov_b32 v9, 0")
    A(f"  ds_write_b32 v16, v9 offset:{K1_HIST}")
    A("  s_waitcnt lgkmcnt(0)")
    srd(12, 4, T*4)
    srd(8, 6, T*4)
    srd(16, 44, T*2)
    srd(20, 48, NT*TILE_BYTES)
    srd(24, 48, NBIN*DESC_ROW, DESC_OFF)
    A("  s_load_dword s31, s[46:47], 0")
    k1_loads(20, 40, 60, 3)
    A("  s_waitcnt lgkmcnt(0)")
    A("  s_lshl_b32 s31, s31, 16")
    A("  s_barrier")
    k1_tile(20, 40, 60, 3, 15, "a", after_first=lambda: k1_loads(70, 90, 110, 36))
    A("  s_cmp_ge_u32 s36, 500")
    A("  s_cbranch_scc1 L_k1_end")
    A("  s_waitcnt vmcnt(8)")
    stamp()
    k1_tile(70, 90, 110, 36, None, "b")
    A("  s_waitcnt vmcnt(0)")
    stamp()
    rstamp(94)
    stamp_flush(int(WGSEL))
    A("L_k1_end:")
    A("  s_endpgm")

def desc_block(name, vg, sg=96):
    A(f".amdhsa_kernel {name}")
    A(f"  .amdhsa_next_free_vgpr {vg}")
    A(f"  .amdhsa_next_free_sgpr {sg}")
    A(f"  .amdhsa_accum_offset {vg}")
    A("  .amdhsa_group_segment_fixed_size 0")
    A("  .amdhsa_kernarg_size 112")
    A("  .amdhsa_user_sgpr_count 2")
    A("  .amdhsa_user_sgpr_kernarg_segment_ptr 1")
    A("  .amdhsa_system_sgpr_workgroup_id_x 1")
    A("  .amdhsa_float_denorm_mode_32 3")
    A(".end_amdhsa_kernel")

import os
WGSEL = os.environ.get("WGSEL", "0")
if __name__ == "__main__":
    STAMP = os.environ.get("STAMP", "0") == "1"
    which = sys.argv[1] if len(sys.argv) > 1 else "k1"
    A(f"; @launch kernel=k1_kernel grid=(256,1,1) block=(1024,1,1) lds={K1_LDS}")
    A('.amdgcn_target "amdgcn-amd-amdhsa--gfx950"')
    A(".text")
    gen_k1()
    A('.section .rodata,"a"')
    A(".p2align 6")
    desc_block("k1_kernel", 128)
    open(sys.argv[2] if len(sys.argv) > 2 else "k.s", "w").write("\n".join(out) + "\n")
```

```python
import struct, sys, os
import numpy as np

E = 320000; T = 10240000
TILE = 20480; NT = 500; NBIN = 1024
TILE_BYTES = 129024
DESC_OFF = NT * TILE_BYTES
DESC_ROW = 512 * 4
ROWS_PER_B = 1250

out = []
def A(s=""):
    out.append(s)
def f2u(x):
    return struct.unpack("<I", struct.pack("<f", x))[0]

def srd(base_s, ptr_lo, nbytes, off=0):
    if off:
        A(f"  s_add_u32 s{base_s}, s{ptr_lo}, {off}")
        A(f"  s_addc_u32 s{base_s+1}, s{ptr_lo+1}, 0")
    else:
        A(f"  s_mov_b32 s{base_s}, s{ptr_lo}")
        A(f"  s_mov_b32 s{base_s+1}, s{ptr_lo+1}")
    A(f"  s_mov_b32 s{base_s+2}, {nbytes}")
    A(f"  s_mov_b32 s{base_s+3}, 0x20000")

STAMP = False
stamp_idx = [0]
def stamp():
    if not STAMP: return
    i = stamp_idx[0]; stamp_idx[0] += 1
    A(f"  s_memtime s[{60+2*i}:{61+2*i}]")
    A(f"  s_waitcnt lgkmcnt(0)")
def rstamp(reg):
    if not STAMP: return
    A(f"  s_memrealtime s[{reg}:{reg+1}]")
    A(f"  s_waitcnt lgkmcnt(0)")
def stamp_flush(wgsel):
    if not STAMP: return
    n = stamp_idx[0]
    A(f"  s_cmp_lg_u32 s2, {wgsel}")
    A(f"  s_cbranch_scc1 L_nostamp")
    A(f"  s_cmp_lg_u32 s35, 0")
    A(f"  s_cbranch_scc1 L_nostamp")
    A(f"  s_load_dwordx2 s[44:45], s[0:1], 96")
    A(f"  s_waitcnt lgkmcnt(0)")
    srd(48, 44, 256)
    A(f"  v_mov_b32 v4, 0")
    for i in range(n):
        A(f"  s_sub_u32 s46, s{60+2*i}, s60")
        A(f"  v_mov_b32 v5, s46")
        A(f"  buffer_store_dword v5, v4, s[48:51], 0 offen offset:{4*i}")
    A(f"  s_sub_u32 s46, s94, s92")
    A(f"  v_mov_b32 v5, s46")
    A(f"  buffer_store_dword v5, v4, s[48:51], 0 offen offset:{4*n}")
    A(f"L_nostamp:")
K1_HIST = TILE_BYTES
K1_WT = K1_HIST + 4096
K1_LDS = K1_WT + 64

c_full = 0.15915494309189535
c_hi_u = f2u(c_full) & 0xFFFFFF00
c_hi = struct.unpack("<f", struct.pack("<I", c_hi_u))[0]
c_lo_u = f2u(c_full - c_hi)

def k1_loads(O, I, An, stau, nt=os.environ.get("K1_LD", " nt")):
    A(f"  s_mul_i32 s40, s{stau}, 81920")
    A(f"  s_mul_i32 s42, s{stau}, 40960")
    for c in range(5):
        A(f"  buffer_load_dwordx4 v[{O+4*c}:{O+4*c+3}], v1, s[8:11], s40 offen{nt}")
        A(f"  buffer_load_dwordx4 v[{I+4*c}:{I+4*c+3}], v1, s[12:15], s40 offen{nt}")
        A(f"  buffer_load_dwordx2 v[{An+2*c}:{An+2*c+1}], v2, s[16:19], s42 offen{nt}")
        if c < 4:
            A(f"  s_add_u32 s40, s40, 16384")
            A(f"  s_add_u32 s42, s42, 8192")

def k1_fields(O, I, An, c):
    for r in range(4):
        o = O + 4*c + r; i = I + 4*c + r
        A(f"  v_mul_hi_u32_u24 v12, s28, v{o}")
        A(f"  v_mul_hi_u32_u24 v13, s30, v{i}")
        A(f"  v_mad_i32_i24 v14, v12, s29, v{o}")
        A(f"  v_lshlrev_b32 v12, 2, v12")
        A(f"  v_lshl_or_b32 v{o}, v13, 10, v12")
        A(f"  v_lshl_or_b32 v{i}, v{i}, 5, s32")
        A(f"  v_lshlrev_b32 v15, 20, v14")
        A(f"  v_lshlrev_b32 v14, 1, v14")
        A(f"  v_and_or_b32 v{i}, v15, s37, v{i}")
        A(f"  v_and_or_b32 v{i}, v14, 30, v{i}")
        rk = 4 + (c % 2) * 4 + r
        A(f"  ds_add_rtn_u32 v{rk}, v{o}, v3 offset:{K1_HOFF}")
    for h in range(2):
        a = An + 2*c + h
        A(f"  v_lshlrev_b32 v12, 16, v{a}")
        A(f"  v_and_b32 v13, s38, v{a}")
        if os.environ.get("FREQ1", "0") != "1":
            A(f"  v_mul_f32 v12, s31, v12")
            A(f"  v_mul_f32 v13, s31, v13")
            A(f"  v_cvt_pk_bf16_f32 v14, v12, v13")
            A(f"  v_lshlrev_b32 v12, 16, v14")
            A(f"  v_and_b32 v13, s38, v14")
        A(f"  v_mul_f32 v14, s33, v12")
        A(f"  v_mul_f32 v15, s33, v13")
        A(f"  v_fract_f32 v14, v14")
        A(f"  v_fract_f32 v15, v15")
        A(f"  v_fma_f32 v14, v12, s34, v14")
        A(f"  v_fma_f32 v15, v13, s34, v15")
        A(f"  v_cos_f32 v14, v14")
        A(f"  v_cos_f32 v15, v15")
        A(f"  s_nop 0")
        A(f"  v_cvt_pk_bf16_f32 v{a}, v14, v15")

K1_HIST = 0
K1_WT = 4096
K1_STG = 4096 + 128
K1_LDS = K1_STG + TILE_BYTES
K1_HOFF = K1_HIST

def k1_pack(O, c):
    for r in range(4):
        o = O + 4*c + r; rk = 4 + (c % 2) * 4 + r
        A(f"  v_lshl_or_b32 v{o}, v{rk}, 12, v{o}")

def k1_tile(O, I, An, stau, vm_base, tag, after_first=None):
    BAFTER = int(os.environ.get("BAFTER", "0"))
    for c in range(5):
        if vm_base is not None:
            if after_first is not None and c <= BAFTER:
                A(f"  s_waitcnt vmcnt({15 - 3*(c+1)})")
                if c == BAFTER:
                    stamp()
                    after_first()
            else:
                A(f"  s_waitcnt vmcnt({vm_base + 15 - 3*(c+1)})")
        k1_fields(O, I, An, c)
        if c > 0:
            A(f"  s_waitcnt lgkmcnt(4)")
            k1_pack(O, c-1)
    A(f"  s_waitcnt lgkmcnt(0)")
    k1_pack(O, 4)
    stamp()
    A(f"  s_barrier")
    stamp()
    A(f"  ds_read_b32 v4, v16 offset:{K1_HIST}")
    A(f"  s_waitcnt lgkmcnt(0)")
    A(f"  v_add_u32 v5, 1, v4")
    A(f"  v_and_b32 v5, -2, v5")
    A(f"  v_mov_b32 v6, v5")
    A(f"  s_nop 1")
    for sh in (1, 2, 4, 8):
        A(f"  v_add_u32_dpp v6, v6, v6 row_shr:{sh} row_mask:0xf bank_mask:0xf bound_ctrl:0")
        A(f"  s_nop 1")
    A(f"  v_add_u32_dpp v6, v6, v6 row_bcast:15 row_mask:0xa bank_mask:0xf")
    A(f"  s_nop 1")
    A(f"  v_add_u32_dpp v6, v6, v6 row_bcast:31 row_mask:0xc bank_mask:0xf")
    A(f"  s_nop 1")
    A(f"  v_readlane_b32 s43, v6, 63")
    A(f"  s_lshl_b32 s44, s35, 2")
    A(f"  v_mov_b32 v7, s44")
    A(f"  s_nop 0")
    A(f"  v_mov_b32 v8, s43")
    A(f"  ds_write_b32 v7, v8 offset:{K1_WT}")
    A(f"  s_waitcnt lgkmcnt(0)")
    A(f"  s_barrier")
    A(f"  ds_read_b32 v7, v17 offset:{K1_WT}")
    A(f"  s_waitcnt lgkmcnt(0)")
    A(f"  s_nop 1")
    for sh in (1, 2, 4, 8):
        A(f"  v_add_u32_dpp v7, v7, v7 row_shr:{sh} row_mask:0xf bank_mask:0xf bound_ctrl:0")
        A(f"  s_nop 1")
    A(f"  s_sub_u32 s44, s35, 1")
    A(f"  s_max_i32 s44, s44, 0")
    A(f"  v_readlane_b32 s43, v7, s44")
    A(f"  s_cmp_eq_u32 s35, 0")
    A(f"  s_cselect_b32 s43, 0, s43")
    A(f"  v_sub_u32 v6, v6, v5")
    A(f"  s_nop 1")
    A(f"  v_add_u32 v6, s43, v6")
    A(f"  ds_write_b32 v16, v6 offset:{K1_HIST}")
    A(f"  v_add_u32 v7, v6, v5")
    A(f"  v_lshrrev_b32 v8, 1, v6")
    A(f"  v_lshrrev_b32 v7, 1, v7")
    A(f"  v_lshl_or_b32 v7, v7, 16, v8")
    A(f"  s_lshl_b32 s44, s{stau}, 2")
    A(f"  buffer_store_dword v7, v18, s[24:27], s44 offen{os.environ.get('DESC_ST', K1_ST)}")
    A(f"  v_and_b32 v8, 1, v4")
    A(f"  v_cmp_eq_u32 vcc, 1, v8")
    A(f"  v_add_u32 v8, v6, v4")
    A(f"  v_mul_u32_u24 v8, 6, v8")
    A(f"  v_mov_b32 v9, 0")
    A(f"  s_and_saveexec_b64 s[46:47], vcc")
    A(f"  ds_write_b32 v8, v9 offset:{K1_STG - 2}")
    A(f"  s_mov_b64 exec, s[46:47]")
    A(f"  s_waitcnt lgkmcnt(0)")
    A(f"  s_barrier")
    stamp()
    def rd(c):
        for r in range(4):
            o = O + 4*c + r; rk = 4 + (c % 2) * 4 + r
            A(f"  v_and_b32 v{rk}, s39, v{o}")
            A(f"  ds_read_b32 v{rk}, v{rk} offset:{K1_HIST}")
    rd(0)
    for c in range(5):
        if c < 4:
            rd(c+1)
        A(f"  s_waitcnt lgkmcnt({4 if c < 4 else 0})")
        for r in range(4):
            k = 4*c + r; o = O + k; i = I + k; rk = 4 + (c % 2) * 4 + r
            a = An + k // 2
            A(f"  v_lshrrev_b32 v12, 12, v{o}")
            A(f"  v_add_u32 v12, v12, v{rk}")
            A(f"  v_and_b32 v13, 1, v12")
            A(f"  v_mul_u32_u24 v12, 6, v12")
            A(f"  v_mad_i32_i24 v12, v13, -2, v12")
            A(f"  v_mad_i32_i24 v13, v13, -2, v12")
            A(f"  ds_write_b32 v12, v{i} offset:{K1_STG}")
            A(f"  ds_write_b16{'_d16_hi' if k % 2 else ''} v13, v{a} offset:{K1_STG + 8}")
    A(f"  s_waitcnt lgkmcnt(0)")
    A(f"  s_barrier")
    stamp()
    A(f"  v_mov_b32 v9, 0")
    A(f"  ds_write_b32 v16, v9 offset:{K1_HIST}")
    R = O
    assert I == O + 20
    for it in range(7):
        base = "v1" if it < 3 else "v19"
        off = K1_STG + it*16384 - (0 if it < 3 else 49152)
        A(f"  ds_read_b128 v[{R+4*it}:{R+4*it+3}], {base} offset:{off}")
    A(f"  s_cmp_lt_u32 s35, 14")
    A(f"  s_cbranch_scc0 L_k1_skip7_{tag}")
    A(f"  v_add_u32 v12, 65536, v19")
    A(f"  ds_read_b128 v[{R+28}:{R+31}], v12 offset:{K1_STG + 7*16384 - 49152 - 65536}")
    A(f"L_k1_skip7_{tag}:")
    A(f"  s_mul_i32 s44, s{stau}, {TILE_BYTES}")
    A(f"  s_waitcnt lgkmcnt(0)")
    A(f"  s_barrier")
    for it in range(7):
        A(f"  buffer_store_dwordx4 v[{R+4*it}:{R+4*it+3}], v1, s[20:23], s44 offen{K1_ST}")
        A(f"  s_add_u32 s44, s44, 16384")
    A(f"  s_cmp_lt_u32 s35, 14")
    A(f"  s_cbranch_scc0 L_k1_skip7s_{tag}")
    A(f"  buffer_store_dwordx4 v[{R+28}:{R+31}], v1, s[20:23], s44 offen{K1_ST}")
    A(f"L_k1_skip7s_{tag}:")
    stamp()

K1_ST = os.environ.get("K1_ST", "")

def gen_k1():
    A(".p2align 8")
    A(".globl k1_kernel")
    A(".type k1_kernel,@function")
    A("k1_kernel:")
    A("  s_cmp_ge_u32 s2, 256")
    A("  s_cbranch_scc1 L_k1_end")
    stamp()
    rstamp(92)
    if os.environ.get("K1ALL"):
        A("  s_memrealtime s[92:93]"); A("  s_waitcnt lgkmcnt(0)")
    A("  s_load_dwordx4 s[4:7], s[0:1], 8")
    A("  s_load_dwordx2 s[44:45], s[0:1], 32")
    A("  s_load_dwordx2 s[46:47], s[0:1], 48")
    A("  s_load_dwordx2 s[48:49], s[0:1], 104")
    A("  s_and_b32 s3, s2, 7")
    A("  s_lshl_b32 s3, s3, 5")
    A("  s_lshr_b32 s36, s2, 3")
    A("  s_add_u32 s3, s3, s36")
    A("  s_add_u32 s36, s3, 256")
    A("  v_lshlrev_b32 v1, 4, v0")
    A("  v_lshlrev_b32 v2, 3, v0")
    A("  v_mov_b32 v3, 1")
    A("  v_lshlrev_b32 v16, 2, v0")
    A("  v_and_b32 v17, 15, v0")
    A("  v_lshlrev_b32 v17, 2, v17")
    A("  v_lshlrev_b32 v18, 11, v0")
    A("  v_add_u32 v19, 49152, v1")
    A("  v_lshrrev_b32 v4, 6, v0")
    A("  s_nop 0")
    A("  v_readfirstlane_b32 s35, v4")
    A("  s_mov_b32 s28, 3435974")
    A("  s_mov_b32 s29, -1250")
    A("  s_mov_b32 s30, 53248")
    A("  s_mov_b32 s32, 0x80000000")
    A(f"  s_mov_b32 s33, {c_hi_u:#x}")
    A(f"  s_mov_b32 s34, {c_lo_u:#x}")
    A("  s_mov_b32 s37, 0x7f000000")
    A("  s_mov_b32 s38, 0xffff0000")
    A("  s_mov_b32 s39, 0xfff")
    A("  v_mov_b32 v9, 0")
    A(f"  ds_write_b32 v16, v9 offset:{K1_HIST}")
    A("  s_waitcnt lgkmcnt(0)")
    srd(12, 4, T*4)
    srd(8, 6, T*4)
    srd(16, 44, T*2)
    srd(20, 48, NT*TILE_BYTES)
    srd(24, 48, NBIN*DESC_ROW, DESC_OFF)
    A("  s_load_dword s31, s[46:47], 0")
    k1_loads(20, 40, 60, 3)
    A("  s_waitcnt lgkmcnt(0)")
    A("  s_lshl_b32 s31, s31, 16")
    A("  s_barrier")
    k1_tile(20, 40, 60, 3, 15, "a", after_first=lambda: k1_loads(70, 90, 110, 36))
    A("  s_cmp_ge_u32 s36, 500")
    A("  s_cbranch_scc1 L_k1_end" if not os.environ.get("K1ALL") else "  s_cbranch_scc1 L_k1_fin")
    A("  s_waitcnt vmcnt(8)")
    stamp()
    k1_tile(70, 90, 110, 36, None, "b")
    A("  s_waitcnt vmcnt(0)")
    stamp()
    rstamp(94)
    stamp_flush(int(WGSEL))
    A("L_k1_fin:")
    if os.environ.get("K1ALL"):
        A("  s_waitcnt vmcnt(0)")
        A("  s_memrealtime s[94:95]"); A("  s_waitcnt lgkmcnt(0)")
        A("  s_cmp_lg_u32 s35, 0"); A("  s_cbranch_scc1 L_k1_end")
        srd(52, 48, 256*16*256, 128 << 20)
        A("  s_lshl_b32 s44, s2, 12"); A("  v_mov_b32 v4, 0"); A("  v_mov_b32 v5, s92"); A("  v_mov_b32 v6, s94")
        A("  buffer_store_dword v5, v4, s[52:55], s44 offen offset:248"); A("  buffer_store_dword v6, v4, s[52:55], s44 offen offset:252")
        A("  s_waitcnt vmcnt(0)")
    A("L_k1_end:")
    A("  s_endpgm")

def desc_block(name, vg, sg=96):
    A(f".amdhsa_kernel {name}")
    A(f"  .amdhsa_next_free_vgpr {vg}")
    A(f"  .amdhsa_next_free_sgpr {sg}")
    A(f"  .amdhsa_accum_offset {vg}")
    A("  .amdhsa_group_segment_fixed_size 0")
    A("  .amdhsa_kernarg_size 112")
    A("  .amdhsa_user_sgpr_count 2")
    A("  .amdhsa_user_sgpr_kernarg_segment_ptr 1")
    A("  .amdhsa_system_sgpr_workgroup_id_x 1")
    A("  .amdhsa_float_denorm_mode_32 3")
    A(".end_amdhsa_kernel")

import os
WGSEL = os.environ.get("WGSEL", "0")
if __name__ == "__main__":
    STAMP = os.environ.get("STAMP", "0") == "1"
    which = sys.argv[1] if len(sys.argv) > 1 else "k1"
    A(f"; @launch kernel=k1_kernel grid=(256,1,1) block=(1024,1,1) lds={K1_LDS}")
    A('.amdgcn_target "amdgcn-amd-amdhsa--gfx950"')
    A(".text")
    gen_k1()
    A('.section .rodata,"a"')
    A(".p2align 6")
    desc_block("k1_kernel", 128)
    open(sys.argv[2] if len(sys.argv) > 2 else "k.s", "w").write("\n".join(out) + "\n")
```

```python
import struct, sys, os
import numpy as np

E = 320000; T = 10240000
TILE = 20480; NT = 500; NBIN = 1024
TILE_BYTES = 129024
DESC_OFF = NT * TILE_BYTES
DESC_ROW = 512 * 4
ROWS_PER_B = 1250

out = []
def A(s=""):
    out.append(s)
def f2u(x):
    return struct.unpack("<I", struct.pack("<f", x))[0]

def srd(base_s, ptr_lo, nbytes, off=0):
    if off:
        A(f"  s_add_u32 s{base_s}, s{ptr_lo}, {off}")
        A(f"  s_addc_u32 s{base_s+1}, s{ptr_lo+1}, 0")
    else:
        A(f"  s_mov_b32 s{base_s}, s{ptr_lo}")
        A(f"  s_mov_b32 s{base_s+1}, s{ptr_lo+1}")
    A(f"  s_mov_b32 s{base_s+2}, {nbytes}")
    A(f"  s_mov_b32 s{base_s+3}, 0x20000")

STAMP = False
stamp_idx = [0]
def stamp():
    if not STAMP: return
    i = stamp_idx[0]; stamp_idx[0] += 1
    A(f"  s_memtime s[{60+2*i}:{61+2*i}]")
    A(f"  s_waitcnt lgkmcnt(0)")
def rstamp(reg):
    if not STAMP: return
    A(f"  s_memrealtime s[{reg}:{reg+1}]")
    A(f"  s_waitcnt lgkmcnt(0)")
def stamp_flush(wgsel):
    if not STAMP: return
    n = stamp_idx[0]
    A(f"  s_cmp_lg_u32 s2, {wgsel}")
    A(f"  s_cbranch_scc1 L_nostamp")
    A(f"  s_cmp_lg_u32 s35, 0")
    A(f"  s_cbranch_scc1 L_nostamp")
    A(f"  s_load_dwordx2 s[44:45], s[0:1], 96")
    A(f"  s_waitcnt lgkmcnt(0)")
    srd(48, 44, 256)
    A(f"  v_mov_b32 v4, 0")
    for i in range(n):
        A(f"  s_sub_u32 s46, s{60+2*i}, s60")
        A(f"  v_mov_b32 v5, s46")
        A(f"  buffer_store_dword v5, v4, s[48:51], 0 offen offset:{4*i}")
    A(f"  s_sub_u32 s46, s94, s92")
    A(f"  v_mov_b32 v5, s46")
    A(f"  buffer_store_dword v5, v4, s[48:51], 0 offen offset:{4*n}")
    A(f"L_nostamp:")
K1_HIST = TILE_BYTES
K1_WT = K1_HIST + 4096
K1_LDS = K1_WT + 64

c_full = 0.15915494309189535
c_hi_u = f2u(c_full) & 0xFFFFFF00
c_hi = struct.unpack("<f", struct.pack("<I", c_hi_u))[0]
c_lo_u = f2u(c_full - c_hi)

def k1_loads(O, I, An, stau, nt=os.environ.get("K1_LD", " nt")):
    A(f"  s_mul_i32 s40, s{stau}, 81920")
    A(f"  s_mul_i32 s42, s{stau}, 40960")
    for c in range(5):
        A(f"  buffer_load_dwordx4 v[{O+4*c}:{O+4*c+3}], v1, s[8:11], s40 offen{nt}")
        A(f"  buffer_load_dwordx4 v[{I+4*c}:{I+4*c+3}], v1, s[12:15], s40 offen{nt}")
        A(f"  buffer_load_dwordx2 v[{An+2*c}:{An+2*c+1}], v2, s[16:19], s42 offen{nt}")
        if c < 4:
            A(f"  s_add_u32 s40, s40, 16384")
            A(f"  s_add_u32 s42, s42, 8192")

def k1_fields(O, I, An, c):
    for r in range(4):
        o = O + 4*c + r; i = I + 4*c + r
        A(f"  v_mul_hi_u32_u24 v12, s28, v{o}")
        A(f"  v_mul_hi_u32_u24 v13, s30, v{i}")
        A(f"  v_mad_i32_i24 v14, v12, s29, v{o}")
        A(f"  v_lshlrev_b32 v12, 2, v12")
        A(f"  v_lshl_or_b32 v{o}, v13, 10, v12")
        A(f"  v_lshl_or_b32 v{i}, v{i}, 5, s32")
        A(f"  v_lshlrev_b32 v15, 20, v14")
        A(f"  v_lshlrev_b32 v14, 1, v14")
        A(f"  v_and_or_b32 v{i}, v15, s37, v{i}")
        A(f"  v_and_or_b32 v{i}, v14, 30, v{i}")
        rk = 4 + (c % 2) * 4 + r
        A(f"  ds_add_rtn_u32 v{rk}, v{o}, v3 offset:{K1_HOFF}")
    for h in range(2):
        a = An + 2*c + h
        A(f"  v_lshlrev_b32 v12, 16, v{a}")
        A(f"  v_and_b32 v13, s38, v{a}")
        if os.environ.get("FREQ1", "0") != "1":
            A(f"  v_mul_f32 v12, s31, v12")
            A(f"  v_mul_f32 v13, s31, v13")
            A(f"  v_cvt_pk_bf16_f32 v14, v12, v13")
            A(f"  v_lshlrev_b32 v12, 16, v14")
            A(f"  v_and_b32 v13, s38, v14")
        A(f"  v_mul_f32 v14, s33, v12")
        A(f"  v_mul_f32 v15, s33, v13")
        A(f"  v_fract_f32 v14, v14")
        A(f"  v_fract_f32 v15, v15")
        A(f"  v_fma_f32 v14, v12, s34, v14")
        A(f"  v_fma_f32 v15, v13, s34, v15")
        A(f"  v_cos_f32 v14, v14")
        A(f"  v_cos_f32 v15, v15")
        A(f"  s_nop 0")
        A(f"  v_cvt_pk_bf16_f32 v{a}, v14, v15")

K1_HIST = 0
K1_WT = 4096
K1_STG = 4096 + 128
K1_LDS = K1_STG + TILE_BYTES
K1_HOFF = K1_HIST

def k1_pack(O, c):
    for r in range(4):
        o = O + 4*c + r; rk = 4 + (c % 2) * 4 + r
        A(f"  v_lshl_or_b32 v{o}, v{rk}, 12, v{o}")

def k1_tile(O, I, An, stau, vm_base, tag, after_first=None):
    BAFTER = int(os.environ.get("BAFTER", "0"))
    for c in range(5):
        if vm_base is not None:
            if after_first is not None and c <= BAFTER:
                A(f"  s_waitcnt vmcnt({15 - 3*(c+1)})")
                if c == BAFTER:
                    stamp()
                    after_first()
            else:
                A(f"  s_waitcnt vmcnt({vm_base + 15 - 3*(c+1)})")
        k1_fields(O, I, An, c)
        if c > 0:
            A(f"  s_waitcnt lgkmcnt(4)")
            k1_pack(O, c-1)
    A(f"  s_waitcnt lgkmcnt(0)")
    k1_pack(O, 4)
    stamp()
    A(f"  s_barrier")
    stamp()
    A(f"  ds_read_b32 v4, v16 offset:{K1_HIST}")
    A(f"  s_waitcnt lgkmcnt(0)")
    A(f"  v_add_u32 v5, 1, v4")
    A(f"  v_and_b32 v5, -2, v5")
    A(f"  v_mov_b32 v6, v5")
    A(f"  s_nop 1")
    for sh in (1, 2, 4, 8):
        A(f"  v_add_u32_dpp v6, v6, v6 row_shr:{sh} row_mask:0xf bank_mask:0xf bound_ctrl:0")
        A(f"  s_nop 1")
    A(f"  v_add_u32_dpp v6, v6, v6 row_bcast:15 row_mask:0xa bank_mask:0xf")
    A(f"  s_nop 1")
    A(f"  v_add_u32_dpp v6, v6, v6 row_bcast:31 row_mask:0xc bank_mask:0xf")
    A(f"  s_nop 1")
    A(f"  v_readlane_b32 s43, v6, 63")
    A(f"  s_lshl_b32 s44, s35, 2")
    A(f"  v_mov_b32 v7, s44")
    A(f"  s_nop 0")
    A(f"  v_mov_b32 v8, s43")
    A(f"  ds_write_b32 v7, v8 offset:{K1_WT}")
    A(f"  s_waitcnt lgkmcnt(0)")
    A(f"  s_barrier")
    A(f"  ds_read_b32 v7, v17 offset:{K1_WT}")
    A(f"  s_waitcnt lgkmcnt(0)")
    A(f"  s_nop 1")
    for sh in (1, 2, 4, 8):
        A(f"  v_add_u32_dpp v7, v7, v7 row_shr:{sh} row_mask:0xf bank_mask:0xf bound_ctrl:0")
        A(f"  s_nop 1")
    A(f"  s_sub_u32 s44, s35, 1")
    A(f"  s_max_i32 s44, s44, 0")
    A(f"  v_readlane_b32 s43, v7, s44")
    A(f"  s_cmp_eq_u32 s35, 0")
    A(f"  s_cselect_b32 s43, 0, s43")
    A(f"  v_sub_u32 v6, v6, v5")
    A(f"  s_nop 1")
    A(f"  v_add_u32 v6, s43, v6")
    A(f"  ds_write_b32 v16, v6 offset:{K1_HIST}")
    A(f"  v_add_u32 v7, v6, v5")
    A(f"  v_lshrrev_b32 v8, 1, v6")
    A(f"  v_lshrrev_b32 v7, 1, v7")
    A(f"  v_lshl_or_b32 v7, v7, 16, v8")
    A(f"  s_lshl_b32 s44, s{stau}, 2")
    A(f"  buffer_store_dword v7, v18, s[24:27], s44 offen{os.environ.get('DESC_ST', K1_ST)}")
    A(f"  v_and_b32 v8, 1, v4")
    A(f"  v_cmp_eq_u32 vcc, 1, v8")
    A(f"  v_add_u32 v8, v6, v4")
    A(f"  v_mul_u32_u24 v8, 6, v8")
    A(f"  v_mov_b32 v9, 0")
    A(f"  s_and_saveexec_b64 s[46:47], vcc")
    A(f"  ds_write_b32 v8, v9 offset:{K1_STG - 2}")
    A(f"  s_mov_b64 exec, s[46:47]")
    A(f"  s_waitcnt lgkmcnt(0)")
    A(f"  s_barrier")
    stamp()
    def rd(c):
        for r in range(4):
            o = O + 4*c + r; rk = 4 + (c % 2) * 4 + r
            A(f"  v_and_b32 v{rk}, s39, v{o}")
            A(f"  ds_read_b32 v{rk}, v{rk} offset:{K1_HIST}")
    rd(0)
    for c in range(5):
        if c < 4:
            rd(c+1)
        A(f"  s_waitcnt lgkmcnt({4 if c < 4 else 0})")
        for r in range(4):
            k = 4*c + r; o = O + k; i = I + k; rk = 4 + (c % 2) * 4 + r
            a = An + k // 2
            A(f"  v_lshrrev_b32 v12, 12, v{o}")
            A(f"  v_add_u32 v12, v12, v{rk}")
            A(f"  v_and_b32 v13, 1, v12")
            A(f"  v_mul_u32_u24 v12, 6, v12")
            A(f"  v_mad_i32_i24 v12, v13, -2, v12")
            A(f"  v_mad_i32_i24 v13, v13, -2, v12")
            A(f"  ds_write_b32 v12, v{i} offset:{K1_STG}")
            A(f"  ds_write_b16{'_d16_hi' if k % 2 else ''} v13, v{a} offset:{K1_STG + 8}")
    A(f"  s_waitcnt lgkmcnt(0)")
    A(f"  s_barrier")
    stamp()
    A(f"  v_mov_b32 v9, 0")
    A(f"  ds_write_b32 v16, v9 offset:{K1_HIST}")
    R = O
    assert I == O + 20
    for it in range(7):
        base = "v1" if it < 3 else "v19"
        off = K1_STG + it*16384 - (0 if it < 3 else 49152)
        A(f"  ds_read_b128 v[{R+4*it}:{R+4*it+3}], {base} offset:{off}")
    A(f"  s_cmp_lt_u32 s35, 14")
    A(f"  s_cbranch_scc0 L_k1_skip7_{tag}")
    A(f"  v_add_u32 v12, 65536, v19")
    A(f"  ds_read_b128 v[{R+28}:{R+31}], v12 offset:{K1_STG + 7*16384 - 49152 - 65536}")
    A(f"L_k1_skip7_{tag}:")
    A(f"  s_mul_i32 s44, s{stau}, {TILE_BYTES}")
    A(f"  s_waitcnt lgkmcnt(0)")
    A(f"  s_barrier")
    for it in range(7):
        A(f"  buffer_store_dwordx4 v[{R+4*it}:{R+4*it+3}], v1, s[20:23], s44 offen{os.environ.get('K1_ST_'+tag, K1_ST)}")
        A(f"  s_add_u32 s44, s44, 16384")
    A(f"  s_cmp_lt_u32 s35, 14")
    A(f"  s_cbranch_scc0 L_k1_skip7s_{tag}")
    A(f"  buffer_store_dwordx4 v[{R+28}:{R+31}], v1, s[20:23], s44 offen{os.environ.get('K1_ST_'+tag, K1_ST)}")
    A(f"L_k1_skip7s_{tag}:")
    stamp()

K1_ST = os.environ.get("K1_ST", "")

def gen_k1():
    A(".p2align 8")
    A(".globl k1_kernel")
    A(".type k1_kernel,@function")
    A("k1_kernel:")
    A("  s_cmp_ge_u32 s2, 256")
    A("  s_cbranch_scc1 L_k1_end")
    stamp()
    rstamp(92)
    if os.environ.get("K1ALL"):
        A("  s_memrealtime s[92:93]"); A("  s_waitcnt lgkmcnt(0)")
    A("  s_load_dwordx4 s[4:7], s[0:1], 8")
    A("  s_load_dwordx2 s[44:45], s[0:1], 32")
    A("  s_load_dwordx2 s[46:47], s[0:1], 48")
    A("  s_load_dwordx2 s[48:49], s[0:1], 104")
    A("  s_and_b32 s3, s2, 7")
    A("  s_lshl_b32 s3, s3, 5")
    A("  s_lshr_b32 s36, s2, 3")
    A("  s_add_u32 s3, s3, s36")
    A("  s_add_u32 s36, s3, 256")
    A("  v_lshlrev_b32 v1, 4, v0")
    A("  v_lshlrev_b32 v2, 3, v0")
    A("  v_mov_b32 v3, 1")
    A("  v_lshlrev_b32 v16, 2, v0")
    A("  v_and_b32 v17, 15, v0")
    A("  v_lshlrev_b32 v17, 2, v17")
    A("  v_lshlrev_b32 v18, 11, v0")
    A("  v_add_u32 v19, 49152, v1")
    A("  v_lshrrev_b32 v4, 6, v0")
    A("  s_nop 0")
    A("  v_readfirstlane_b32 s35, v4")
    A("  s_mov_b32 s28, 3435974")
    A("  s_mov_b32 s29, -1250")
    A("  s_mov_b32 s30, 53248")
    A("  s_mov_b32 s32, 0x80000000")
    A(f"  s_mov_b32 s33, {c_hi_u:#x}")
    A(f"  s_mov_b32 s34, {c_lo_u:#x}")
    A("  s_mov_b32 s37, 0x7f000000")
    A("  s_mov_b32 s38, 0xffff0000")
    A("  s_mov_b32 s39, 0xfff")
    A("  v_mov_b32 v9, 0")
    A(f"  ds_write_b32 v16, v9 offset:{K1_HIST}")
    A("  s_waitcnt lgkmcnt(0)")
    srd(12, 4, T*4)
    srd(8, 6, T*4)
    srd(16, 44, T*2)
    srd(20, 48, NT*TILE_BYTES)
    srd(24, 48, NBIN*DESC_ROW, DESC_OFF)
    A("  s_load_dword s31, s[46:47], 0")
    k1_loads(20, 40, 60, 3)
    A("  s_waitcnt lgkmcnt(0)")
    A("  s_lshl_b32 s31, s31, 16")
    A("  s_barrier")
    k1_tile(20, 40, 60, 3, 15, "a", after_first=lambda: k1_loads(70, 90, 110, 36))
    A("  s_cmp_ge_u32 s36, 500")
    A("  s_cbranch_scc1 L_k1_fin")
    A("  s_waitcnt vmcnt(8)")
    stamp()
    k1_tile(70, 90, 110, 36, None, "b")
    A("  s_waitcnt vmcnt(0)")
    stamp()
    rstamp(94)
    stamp_flush(int(WGSEL))
    A("L_k1_fin:")
    if os.environ.get("K1PF"):
        A("  s_load_dwordx2 s[44:45], s[0:1], 0"); A("  s_waitcnt lgkmcnt(0)")
        srd(52, 44, E*32)
        A("  s_and_b32 s40, s2, 3"); A("  s_mul_i32 s40, s40, 20165")
        A("  s_lshr_b32 s41, s2, 3"); A("  s_mul_i32 s41, s41, 640"); A("  s_add_u32 s40, s40, s41")
        A("  v_add_u32 v4, s40, v0"); A("  v_lshlrev_b32 v4, 7, v4")
        A("  v_cmp_gt_u32 vcc, 640, v0"); A("  s_and_saveexec_b64 s[46:47], vcc"); A("  s_cbranch_execz L_k1_nopf")
        A("  buffer_load_dword v5, v4, s[52:55], 0 offen")
        A("  s_waitcnt vmcnt(0)")
        A("L_k1_nopf:")
        A("  s_mov_b64 exec, s[46:47]")
    if os.environ.get("K1ALL"):
        A("  s_waitcnt vmcnt(0)")
        A("  s_memrealtime s[94:95]"); A("  s_waitcnt lgkmcnt(0)")
        A("  s_cmp_lg_u32 s35, 0"); A("  s_cbranch_scc1 L_k1_end")
        srd(52, 48, 256*16*256, 128 << 20)
        A("  s_lshl_b32 s44, s2, 12"); A("  v_mov_b32 v4, 0"); A("  v_mov_b32 v5, s92"); A("  v_mov_b32 v6, s94")
        A("  buffer_store_dword v5, v4, s[52:55], s44 offen offset:248"); A("  buffer_store_dword v6, v4, s[52:55], s44 offen offset:252")
        A("  s_waitcnt vmcnt(0)")
    A("L_k1_end:")
    A("  s_endpgm")

def desc_block(name, vg, sg=96):
    A(f".amdhsa_kernel {name}")
    A(f"  .amdhsa_next_free_vgpr {vg}")
    A(f"  .amdhsa_next_free_sgpr {sg}")
    A(f"  .amdhsa_accum_offset {vg}")
    A("  .amdhsa_group_segment_fixed_size 0")
    A("  .amdhsa_kernarg_size 112")
    A("  .amdhsa_user_sgpr_count 2")
    A("  .amdhsa_user_sgpr_kernarg_segment_ptr 1")
    A("  .amdhsa_system_sgpr_workgroup_id_x 1")
    A("  .amdhsa_float_denorm_mode_32 3")
    A(".end_amdhsa_kernel")

import os
WGSEL = os.environ.get("WGSEL", "0")
if __name__ == "__main__":
    STAMP = os.environ.get("STAMP", "0") == "1"
    which = sys.argv[1] if len(sys.argv) > 1 else "k1"
    A(f"; @launch kernel=k1_kernel grid=(256,1,1) block=(1024,1,1) lds={K1_LDS}")
    A('.amdgcn_target "amdgcn-amd-amdhsa--gfx950"')
    A(".text")
    gen_k1()
    A('.section .rodata,"a"')
    A(".p2align 6")
    desc_block("k1_kernel", 128)
    open(sys.argv[2] if len(sys.argv) > 2 else "k.s", "w").write("\n".join(out) + "\n")
```

```python
from gen import *
import gen, os, sys

CAP = 128
BS = 528
NGW = 8; GPW = 10; NIW = 8
PB = 80 * BS
WB = PB
SEL = 126976
LIST = SEL + NGW * 1024
CNT = LIST + NGW * 256
FLG = CNT + 1024
K2_LDS = FLG + 128
assert SEL >= 3 * PB and SEL % 1024 == 0 and CNT % 512 == 0
F_OVF, F_RDY, F_DONE, F_FIN, F_NDONE, F_LAST = 0, 4, 12, 32, 64, 68
DUMMY_X = 79 * BS
DUMMY_W = 0x00FFFFE0
OOB = 0x7FFFFF00
LOG2E = 1.4426950408889634
EXP = set(os.environ.get("EXP", "").split(","))
RAW_NT = os.environ.get("RAW_NT", "")
NCH = 8
F0 = False

def vr(b, n=4): return f"v[{b}:{b+n-1}]"
STAMP = os.environ.get("STAMP", "0") == "1"
def stamp_init():
    if not STAMP: return
    A("  s_memtime s[90:91]"); A("  s_memrealtime s[92:93]"); A("  s_waitcnt lgkmcnt(0)"); A("  v_mov_b32 v15, 0")
def stampk(k=None, sreg=None, add=0):
    if not STAMP: return
    A("  s_memtime s[94:95]"); A("  s_waitcnt lgkmcnt(0)"); A("  s_sub_u32 s94, s94, s90")
    if k is not None:
        A(f"  v_writelane_b32 v15, s94, {k}")
    else:
        A(f"  s_add_u32 s95, s{sreg}, {add}"); A("  s_mov_b32 m0, s95"); A("  v_writelane_b32 v15, s94, m0")
def stamp_flush():
    if not STAMP: return
    A("  s_memtime s[94:95]"); A("  s_waitcnt lgkmcnt(0)"); A("  s_sub_u32 s94, s94, s90"); A("  v_writelane_b32 v15, s94, 32")
    A("  s_memrealtime s[94:95]"); A("  s_waitcnt lgkmcnt(0)")
    A("  v_writelane_b32 v15, s92, 34"); A("  v_writelane_b32 v15, s94, 35")
    A("  s_load_dwordx2 s[44:45], s[0:1], 104"); A("  s_waitcnt lgkmcnt(0)")
    srd(48, 44, 256*16*256, 128 << 20)
    A("  s_lshl_b32 s44, s2, 4"); A("  s_add_u32 s44, s44, s35"); A("  s_lshl_b32 s44, s44, 8")
    A("  v_lshlrev_b32 v4, 2, v1"); A("  buffer_store_dword v15, v4, s[48:51], s44 offen"); A("  s_waitcnt vmcnt(0)")

def k2_prologue():
    A(".p2align 8"); A(".globl k2_kernel"); A(".type k2_kernel,@function"); A("k2_kernel:")
    A("  s_cmp_ge_u32 s2, 256"); A("  s_cbranch_scc1 L_k2_end")
    stamp_init()
    A("  s_load_dwordx2 s[4:5], s[0:1], 0")
    A("  s_load_dwordx2 s[6:7], s[0:1], 104")
    A("  s_and_b32 s3, s2, 7"); A("  s_lshl_b32 s3, s3, 5"); A("  s_lshr_b32 s36, s2, 3"); A("  s_add_u32 s3, s3, s36")
    A("  v_lshrrev_b32 v4, 6, v0"); A("  v_and_b32 v1, 63, v0"); A("  v_readfirstlane_b32 s35, v4")
    A("  s_waitcnt lgkmcnt(0)")
    srd(8, 4, E*32)
    srd(12, 6, NT*TILE_BYTES)
    srd(16, 6, NBIN*DESC_ROW, DESC_OFF)
    A("  s_cmp_ge_u32 s35, 8"); A("  s_cbranch_scc1 L_k2_iwave")

def lds_init():
    for r in (8, 9, 10, 11): A(f"  v_mov_b32 v{r}, 0")
    A("  v_lshlrev_b32 v5, 4, v0")
    def region(base, nbytes):
        n16 = nbytes // 16
        k = 0
        cur = None
        while k * 512 < n16:
            addr = base + k * 8192
            seg = addr // 65536
            if seg != cur:
                A(f"  v_add_u32 v6, {seg * 65536}, v5"); cur = seg
            off = addr - seg * 65536
            if (k + 1) * 512 <= n16:
                A(f"  ds_write_b128 v6, v[8:11] offset:{off}")
            else:
                A(f"  v_cmp_gt_u32 vcc, {n16 - k*512}, v0"); A("  s_and_saveexec_b64 s[40:41], vcc")
                A(f"  ds_write_b128 v6, v[8:11] offset:{off}"); A("  s_mov_b64 exec, s[40:41]")
            k += 1
    region(SEL, K2_LDS - SEL)
    region(0, PB)
    for r in (8, 9, 10, 11): A(f"  v_mov_b32 v{r}, {DUMMY_W:#x}")
    region(WB, 2 * PB)
    A("  s_waitcnt lgkmcnt(0)")

def poll(vaddr, off, sneed, label, vtmp, stmp, sleep=2):
    A(f"{label}:")
    A(f"  ds_read_b32 v{vtmp}, v{vaddr} offset:{off}")
    A(f"  s_waitcnt lgkmcnt(0)")
    A(f"  v_readfirstlane_b32 s{stmp}, v{vtmp}")
    A(f"  s_nop 3")
    A(f"  s_cmp_ge_u32 s{stmp}, s{sneed}")
    A(f"  s_cbranch_scc1 {label}_ok")
    A(f"  s_sleep {sleep}")
    A(f"  s_branch {label}")
    A(f"{label}_ok:")

def RR(st, i, k): return 16 + 32*st + 4*i + k
NSET = 4
def CA(st, r): return 80 + 2*st + r
def RK(st, r): return 88 + 2*st + r
def MK(st, r): return 64 + 4*st + 2*r
vCntB, vOne, vPerm, vL15, vTileJ, vOOB, vDescOff, vD0, vD1, vD2, vT0, vT1, vKB, vFlag = 96, 97, 98, 99, 100, 101, 102, 103, 104, 105, 106, 107, 108, 109

def ins_A(w, st):
    for r in range(2):
        A(f"  v_cmp_gt_i32 s[{MK(st,r)}:{MK(st,r)+1}], 0, v{w[r]}")
        A(f"  v_lshrrev_b32 v{CA(st,r)}, 22, v{w[r]}")
        A(f"  v_and_or_b32 v{CA(st,r)}, v{CA(st,r)}, s52, v{vCntB}")
    for r in range(2):
        A(f"  s_mov_b64 exec, s[{MK(st,r)}:{MK(st,r)+1}]")
        A(f"  ds_add_rtn_u32 v{RK(st,r)}, v{CA(st,r)}, v{vOne}")
    A(f"  s_mov_b64 exec, -1")

def ins_B(w, cw, st):
    for r in range(2):
        ca = CA(st,r); rk = RK(st,r)
        A(f"  s_mov_b64 exec, s[{MK(st,r)}:{MK(st,r)+1}]")
        A(f"  v_cmp_lt_u32 vcc, {CAP-1}, v{rk}")
        A(f"  v_min_u32 v{rk}, {CAP-1}, v{rk}")
        A(f"  v_mad_u32_u24 v{ca}, v{ca}, v{vKB}, s53")
        A(f"  s_or_b64 s[54:55], s[54:55], vcc")
        A(f"  v_lshl_add_u32 v{ca}, v{rk}, 2, v{ca}")
        A(f"  ds_write_b32 v{ca}, v{w[r]} offset:{WB}")
        A(f"  v_lshrrev_b32 v{rk}, 1, v{ca}")
        A(f"  ds_write_b16{'_d16_hi' if r else ''} v{rk}, v{cw}")
    A(f"  s_mov_b64 exec, -1")

def ins_set(st):
    ops = []
    def emitA(i):
        ins_A((RR(st,i,0), RR(st,i,1)), i % NSET); ops.extend([('a', i)]*2)
    def emitB(i):
        last = max(k for k, o in enumerate(ops) if o == ('a', i))
        A(f"  s_waitcnt lgkmcnt({min(len(ops) - 1 - last, 15)})")
        ins_B((RR(st,i,0), RR(st,i,1)), RR(st,i,2), i % NSET); ops.extend([('w', i)]*4)
    for i in range(NSET): emitA(i)
    for i in range(8):
        emitB(i)
        if i + NSET < 8: emitA(i + NSET)

def iw_T0(dst, c_sreg, add=0):
    A(f"  s_add_u32 s{dst}, s{c_sreg}, {add}")
    A(f"  s_and_b32 s{dst}, s{dst}, 1")
    A(f"  s_mul_i32 s{dst}, s{dst}, 250")
    A(f"  s_add_u32 s{dst}, s{dst}, s60")

def iw_issue_raw(st, desc, c_sreg, add):
    iw_T0(57, c_sreg, add)
    A(f"  s_mul_i32 s57, s57, {TILE_BYTES}")
    for i in range(8):
        A(f"  ds_bpermute_b32 v{RR(st,i,0)}, v{vPerm}, v{desc} offset:{16*i}")
    for i in range(8):
        d = RR(st,i,0)
        A(f"  s_waitcnt lgkmcnt({7-i})")
        A(f"  v_and_b32 v{vT0}, 0xffff, v{d}")
        A(f"  v_lshrrev_b32 v{vT1}, 16, v{d}")
        A(f"  v_add_u32 v{vT0}, v{vT0}, v{vL15}")
        A(f"  v_cmp_lt_u32 vcc, v{vT0}, v{vT1}")
        A(f"  v_mad_u32_u24 v{vT0}, v{vT0}, 12, v{vTileJ}")
        A(f"  s_nop 0")
        A(f"  v_cndmask_b32 v{vT0}, v{vOOB}, v{vT0}, vcc")
        if "sc1" in RAW_NT: A(f"  buffer_load_dwordx4 v[{d}:{d+3}], v{vT0}, s[12:15], s57 offen{RAW_NT}")
        else: A(f"  buffer_load_dwordx3 v[{d}:{d+2}], v{vT0}, s[12:15], s57 offen{RAW_NT}")
        if i < 7: A(f"  s_add_u32 s57, s57, {4*TILE_BYTES}")

def iw_desc_load(dst, c_sreg, add):
    A(f"  s_add_u32 s59, s{c_sreg}, {add}")
    A(f"  s_lshr_b32 s58, s59, 1")
    if os.environ.get("ROT", "0") == "1":
        A(f"  s_add_u32 s58, s58, s2"); A(f"  s_and_b32 s58, s58, 3")
    if os.environ.get("ROT", "0") == "2":
        A(f"  s_lshr_b32 s57, s2, 1"); A(f"  s_add_u32 s58, s58, s57"); A(f"  s_and_b32 s58, s58, 3")
    A(f"  s_lshl_b32 s58, s58, 8")
    A(f"  s_add_u32 s58, s58, s3")
    A(f"  s_lshl_b32 s58, s58, 9")
    A(f"  s_and_b32 s59, s59, 1")
    A(f"  s_mul_i32 s59, s59, 250")
    A(f"  s_add_u32 s59, s59, s60")
    A(f"  s_add_u32 s58, s58, s59")
    A(f"  s_lshl_b32 s58, s58, 2")
    A(f"  buffer_load_dword v{dst}, v{vDescOff}, s[16:19], s58 offen{RAW_NT}")

def iw_chunk(st):
    t = f"L_iw{st}"
    A(f"  s_lshr_b32 s87, s61, 1")
    A(f"  s_mul_i32 s87, s87, {NGW}")
    stampk(sreg=61, add=0)
    poll(vFlag, F_DONE + 4*st, 87, f"{t}_poll", vT0, 88, int(os.environ.get("ISLEEP", "4")))
    A(f"  v_mov_b32 v{vCntB}, {CNT + 512*st}")
    A(f"  s_mov_b32 s53, {(PB*st - (CNT + 512*st)*(BS//4)) & 0xffffffff:#x}")
    A(f"  s_waitcnt vmcnt(9)")
    stampk(sreg=61, add=8)
    ins_set(st)
    A(f"  v_and_b32 v{vT0}, 0xffff, v{vD0}")
    A(f"  v_lshrrev_b32 v{vT1}, 16, v{vD0}")
    A(f"  v_add_u32 v{vT0}, 16, v{vT0}")
    A(f"  v_cmp_lt_u32 s[80:81], v{vT0}, v{vT1}")
    iw_T0(86, 61)
    A(f"{t}_long:")
    A(f"  s_cmp_eq_u64 s[80:81], 0")
    A(f"  s_cbranch_scc1 {t}_long_done")
    A(f"  s_ff1_i32_b64 s82, s[80:81]")
    A(f"  s_bitset0_b64 s[80:81], s82")
    A(f"  v_readlane_b32 s83, v{vD0}, s82")
    A(f"  s_add_u32 s84, s86, s82")
    A(f"  s_mul_i32 s84, s84, {TILE_BYTES}")
    A(f"  s_lshr_b32 s85, s83, 16")
    A(f"  s_and_b32 s83, s83, 0xffff")
    A(f"  s_add_u32 s83, s83, 16")
    A(f"{t}_long_win:")
    A(f"  v_add_u32 v{vT0}, s83, v1")
    A(f"  v_cmp_gt_u32 vcc, s85, v{vT0}")
    A(f"  v_mul_u32_u24 v{vT0}, 12, v{vT0}")
    A(f"  s_nop 0")
    A(f"  v_cndmask_b32 v{vT0}, v{vOOB}, v{vT0}, vcc")
    L = RR(st,0,0)
    if "sc1" in RAW_NT: A(f"  buffer_load_dwordx4 v[{L}:{L+3}], v{vT0}, s[12:15], s84 offen{RAW_NT}")
    else: A(f"  buffer_load_dwordx3 v[{L}:{L+2}], v{vT0}, s[12:15], s84 offen")
    A(f"  s_waitcnt vmcnt(0)")
    ins_A((L, L+1), 0)
    A(f"  s_waitcnt lgkmcnt(0)")
    ins_B((L, L+1), L+2, 0)
    A(f"  s_add_u32 s83, s83, 64")
    A(f"  s_cmp_lt_u32 s83, s85")
    A(f"  s_cbranch_scc1 {t}_long_win")
    A(f"  s_branch {t}_long")
    A(f"{t}_long_done:")
    A(f"  s_cmp_eq_u64 s[54:55], 0")
    A(f"  s_cbranch_scc1 {t}_noovf")
    A(f"  ds_write_b32 v{vFlag}, v{vOne} offset:{F_OVF}")
    A(f"{t}_noovf:")
    A(f"  s_waitcnt lgkmcnt(0)")
    A(f"  s_mov_b64 exec, 1")
    A(f"  ds_add_u32 v{vFlag}, v{vOne} offset:{F_RDY + 4*st}")
    A(f"  s_mov_b64 exec, -1")
    stampk(sreg=61, add=16)
    A(f"  s_add_u32 s62, s61, 2")
    A(f"  s_cmp_ge_u32 s62, {NCH}")
    A(f"  s_cbranch_scc1 {t}_noraw")
    A(f"  s_waitcnt vmcnt(0)")
    iw_issue_raw(st, vD2, 61, 2)
    A(f"  s_add_u32 s62, s61, 3")
    A(f"  s_cmp_ge_u32 s62, {NCH}")
    A(f"  v_mov_b32 v{vD0}, v{vD1}")
    A(f"  v_mov_b32 v{vD1}, v{vD2}")
    A(f"  s_cbranch_scc1 {t}_nodesc")
    iw_desc_load(vD2, 61, 3)
    A(f"  s_branch {t}_nodesc")
    A(f"{t}_noraw:")
    A(f"  s_waitcnt vmcnt(0)")
    A(f"  v_mov_b32 v{vD0}, v{vD1}")
    A(f"{t}_nodesc:")
    A(f"  s_add_u32 s61, s61, 1")

def slow_parity():
    c0 = (0 - CNT*(BS//4)) & 0xffffffff
    c1 = (PB - (CNT + 512)*(BS//4)) & 0xffffffff
    A("  s_and_b32 s88, s61, 1"); A("  s_cmp_eq_u32 s88, 0")
    A(f"  s_cselect_b32 s53, {c0:#x}, s53") if False else None
    A(f"  s_mov_b32 s53, {c0:#x}"); A(f"  s_mov_b32 s89, {c1:#x}"); A("  s_cselect_b32 s53, s53, s89")
    A(f"  s_lshl_b32 s89, s88, 9"); A(f"  s_add_u32 s89, s89, {CNT}"); A(f"  v_mov_b32 v{vCntB}, s89")
    A(f"  s_lshl_b32 s89, s88, 2"); A(f"  v_add_u32 v{vT1}, s89, v{vFlag}")

def gen_iw_slow():
    A(f"  s_mov_b32 s87, {NIW * (NCH // 2)}")
    poll(vFlag, F_RDY + 4, 87, "L_sl_w", vT0, 88, 2)
    A(f"  ds_read_b32 v{vT0}, v{vFlag} offset:{F_OVF}"); A("  s_waitcnt lgkmcnt(0)")
    A(f"  v_readfirstlane_b32 s88, v{vT0}"); A("  s_nop 3"); A("  s_cmp_eq_u32 s88, 0"); A("  s_cbranch_scc1 L_iw_epi")
    A("  s_setprio 0")
    A("  s_mov_b32 s62, 0")
    A("L_sl_q:")
    iw_desc_load(vD0, 62, 0)
    iw_T0(86, 62)
    A("  s_mov_b32 s82, 0")
    A("  s_waitcnt vmcnt(0)")
    A("L_sl_tile:")
    A(f"  v_readlane_b32 s83, v{vD0}, s82")
    A("  s_add_u32 s84, s86, s82"); A(f"  s_mul_i32 s84, s84, {TILE_BYTES}")
    A("  s_lshr_b32 s85, s83, 16"); A("  s_and_b32 s83, s83, 0xffff")
    A("L_sl_win:")
    A("  s_cmp_ge_u32 s83, s85"); A("  s_cbranch_scc1 L_sl_next")
    slow_parity()
    A("  s_lshr_b32 s87, s61, 1"); A(f"  s_mul_i32 s87, s87, {NGW}")
    poll(vT1, F_DONE, 87, "L_sl_d", vT0, 88, 2)
    A(f"  v_add_u32 v{vT0}, s83, v1"); A(f"  v_cmp_gt_u32 vcc, s85, v{vT0}"); A("  v_cmp_gt_u32 s[80:81], 8, v1")
    A(f"  v_mul_u32_u24 v{vT0}, 12, v{vT0}"); A("  s_and_b64 vcc, vcc, s[80:81]"); A("  s_nop 1")
    A(f"  v_cndmask_b32 v{vT0}, v{vOOB}, v{vT0}, vcc")
    L = RR(0,0,0)
    A(f"  buffer_load_dwordx3 v[{L}:{L+2}], v{vT0}, s[12:15], s84 offen")
    A("  s_waitcnt vmcnt(0)")
    ins_A((L, L+1), 0); A("  s_waitcnt lgkmcnt(0)"); ins_B((L, L+1), L+2, 0)
    A("  s_waitcnt lgkmcnt(0)")
    A("  s_mov_b64 exec, 1"); A(f"  ds_add_u32 v{vT1}, v{vOne} offset:{F_RDY}"); A("  s_mov_b64 exec, -1")
    A("  s_add_u32 s61, s61, 1"); A("  s_add_u32 s83, s83, 8"); A("  s_branch L_sl_win")
    A("L_sl_next:")
    A("  s_add_u32 s82, s82, 1"); A("  s_cmp_lt_u32 s82, 32"); A("  s_cbranch_scc1 L_sl_tile")
    A("  s_add_u32 s62, s62, 1"); A(f"  s_cmp_lt_u32 s62, {NCH}"); A("  s_cbranch_scc1 L_sl_q")
    A("  s_mov_b32 s63, 1")
    A("L_sl_idle:")
    A(f"  ds_read_b32 v{vT0}, v{vFlag} offset:{F_LAST}"); A("  s_waitcnt lgkmcnt(0)")
    A(f"  v_readfirstlane_b32 s88, v{vT0}"); A("  s_nop 3")
    A("  s_cmp_eq_u32 s88, 0"); A("  s_cbranch_scc1 L_sl_cont")
    A("  s_cmp_ge_u32 s61, s88"); A("  s_cbranch_scc1 L_iw_epi")
    A("L_sl_cont:")
    slow_parity()
    A("  s_lshr_b32 s87, s61, 1"); A(f"  s_mul_i32 s87, s87, {NGW}")
    A(f"  ds_read_b32 v{vT0}, v{vT1} offset:{F_DONE}"); A("  s_waitcnt lgkmcnt(0)")
    A(f"  v_readfirstlane_b32 s88, v{vT0}"); A("  s_nop 3")
    A("  s_cmp_ge_u32 s88, s87"); A("  s_cbranch_scc1 L_sl_go")
    A("  s_sleep 2"); A("  s_branch L_sl_idle")
    A("L_sl_go:")
    A("  s_cmp_eq_u32 s63, 0"); A("  s_cbranch_scc1 L_sl_sig")
    A("  s_mov_b32 s63, 0")
    A("  s_mov_b64 exec, 1"); A(f"  ds_add_rtn_u32 v{vT0}, v{vFlag}, v{vOne} offset:{F_NDONE}"); A("  s_waitcnt lgkmcnt(0)")
    A(f"  v_readfirstlane_b32 s88, v{vT0}"); A("  s_mov_b64 exec, -1"); A("  s_nop 2")
    A(f"  s_cmp_lg_u32 s88, {NIW-1}"); A("  s_cbranch_scc1 L_sl_sig")
    A("  s_add_u32 s88, s61, 1"); A(f"  v_mov_b32 v{vT0}, s88"); A(f"  ds_write_b32 v{vFlag}, v{vT0} offset:{F_LAST}"); A("  s_waitcnt lgkmcnt(0)")
    A("L_sl_sig:")
    A("  s_mov_b64 exec, 1"); A(f"  ds_add_u32 v{vT1}, v{vOne} offset:{F_RDY}"); A("  s_mov_b64 exec, -1")
    A("  s_add_u32 s61, s61, 1"); A("  s_branch L_sl_idle")

def gen_iwave():
    A("L_k2_iwave:")
    A(f"  s_setprio {os.environ.get('IPRIO', '3')}")
    A("  s_sub_u32 s60, s35, 8")
    A("  s_lshl_b32 s60, s60, 5")
    A("  s_mov_b32 s52, 0x1fc")
    A("  s_mov_b64 s[54:55], 0")
    A(f"  v_mov_b32 v{vOOB}, {OOB:#x}")
    A(f"  v_add_u32 v{vDescOff}, s60, v1")
    A(f"  v_cmp_gt_u32 vcc, 250, v{vDescOff}")
    A(f"  v_cmp_gt_u32 s[40:41], 32, v1")
    A(f"  v_lshlrev_b32 v{vDescOff}, 2, v1")
    A(f"  s_and_b64 vcc, vcc, s[40:41]")
    A(f"  s_nop 1")
    A(f"  v_cndmask_b32 v{vDescOff}, v{vOOB}, v{vDescOff}, vcc")
    A("  s_mov_b32 s61, 0")
    if F0:
        A(f"  v_mov_b32 v{vFlag}, {FLG}")
        A("  s_barrier")
        A("  s_cmp_lg_u32 s35, 8"); A("  s_cbranch_scc1 L_i_lpoll")
        A("L_i_nw:")
        A(f"  ds_read_b64 v[16:17], v{vFlag} offset:24"); A("  s_waitcnt lgkmcnt(0)")
        A("  v_readfirstlane_b32 s28, v16"); A("  v_readfirstlane_b32 s29, v17"); A("  s_nop 3")
        A("  s_cmp_lg_u32 s28, 0"); A("  s_cbranch_scc1 L_i_nok")
        A("  s_cmp_eq_u32 s97, 0"); A("  s_cbranch_scc1 L_i_nok"); A("  s_sub_u32 s97, s97, 1")
        A("  s_sleep 2"); A("  s_branch L_i_nw")
        A("L_i_nok:")
        A("  s_and_b32 s62, s2, 7"); A("  s_lshl_b32 s62, s62, 13")
        A(f"  v_lshlrev_b32 v{vT1}, 3, v1")
        A("L_i_rpoll:")
        for k in range(8):
            if k == 7: A("  s_bfm_b64 exec, 52, 0")
            A(f"  buffer_load_dwordx2 v[{16+2*k}:{17+2*k}], v{vT1}, s[24:27], s62 offen offset:{512*k} sc1")
        A("  s_mov_b64 exec, -1"); A("  s_waitcnt vmcnt(0)"); A("  s_mov_b64 s[64:65], -1")
        for k in range(8):
            if k == 7: A("  s_bfm_b64 exec, 52, 0")
            A(f"  v_cmp_ne_u64 vcc, s[28:29], v[{16+2*k}:{17+2*k}]")
            A(f"  s_cmp_eq_u64 vcc, 0"); A(f"  s_cselect_b64 s[64:65], s[64:65], 0")
        A("  s_mov_b64 exec, -1")
        A("  s_cmp_lg_u64 s[64:65], 0"); A("  s_cbranch_scc1 L_i_rok")
        A("  s_cmp_eq_u32 s97, 0"); A("  s_cbranch_scc1 L_i_rok"); A("  s_sub_u32 s97, s97, 1")
        A(f"  s_sleep {os.environ.get('RSLEEP', '8')}"); A("  s_branch L_i_rpoll")
        A("L_i_rok:")
        A(f"  v_mov_b32 v{vT0}, 1"); A(f"  ds_write_b32 v{vFlag}, v{vT0} offset:20")
        A("  s_branch L_i_rdone")
        A("L_i_lpoll:")
        A("  s_mov_b32 s62, 1")
        poll(vFlag, 20, 62, "L_i_lp", vT0, 63, 2)
        A("L_i_rdone:")
        stampk(k=42)
    iw_desc_load(vD0, 61, 0)
    iw_desc_load(vD1, 61, 1)
    iw_desc_load(vD2, 61, 2)
    A(f"  v_mov_b32 v{vOne}, 1")
    A(f"  v_mov_b32 v{vKB}, {BS//4}")
    A(f"  v_lshrrev_b32 v{vPerm}, 4, v1")
    A(f"  v_mov_b32 v{vTileJ}, {TILE_BYTES}")
    A(f"  v_mul_lo_u32 v{vTileJ}, v{vTileJ}, v{vPerm}")
    A(f"  v_lshlrev_b32 v{vPerm}, 2, v{vPerm}")
    A(f"  v_and_b32 v{vL15}, 15, v1")
    A(f"  v_mov_b32 v{vFlag}, {FLG}")
    A("  s_waitcnt vmcnt(2)")
    iw_issue_raw(0, vD0, 61, 0)
    A("  s_waitcnt vmcnt(9)")
    out[-1] = "  s_waitcnt vmcnt(9)"
    iw_issue_raw(1, vD1, 61, 1)
    if not F0: A("  s_barrier")
    A("  s_waitcnt vmcnt(8)")
    A("L_iw_loop:")
    iw_chunk(0)
    iw_chunk(1)
    A(f"  s_cmp_lt_u32 s61, {NCH}")
    A("  s_cbranch_scc1 L_iw_loop")
    gen_iw_slow()
    A("L_iw_epi:")
    gen_epilogue()
    stamp_flush()
    A("  s_endpgm")

D = int(os.environ.get("GD", "2")); U = D + 1; LEAD = D + 2; MINT = D + 3
assert U % 3 == 0
B1A, B1B, DA, DB, A2 = 18, 22, 26, 30, 34
XR = lambda u: 38 + 4*(u % U)
WR = lambda u: 38 + 4*U + (u % U)
CR = lambda u: 38 + 5*U + (u % U)
B2 = lambda p: 38 + 6*U + 4*(p % 3)
assert 38 + 6*U + 12 <= 88
ACC = lambda j: 88 + 4*j
vLane4, vHalf16, vSelW, vSelR, vZero, vList, vG, vA, vA2, vS, vFl, vOne1, vBin, vLA = 2, 3, 4, 5, 6, 7, 8, 9, 10, 11, 12, 13, 14, 16
vF0 = DA
T0, T1, T2, T3 = DA, DA+1, DA+2, DA+3
sM1 = 44; sT = 45; sD = 46; sLeft = 47
sNB = 48
sTot = 58; sCI = 59; sCC = 60; sEnd = 61
sNBn = 64
sLo = 80

def g_body(j, u):
    A(f"L_g_{j}_{u}:")
    if os.environ.get("GPRIO", "") == "iter": A(f"  s_setprio {u % 3}")
    if os.environ.get("GPRIO", "") == "iter1": A(f"  s_setprio {1 + u % 3}")
    if os.environ.get("GPRIO", "") == "iter2": A(f"  s_setprio {(u + j) % 4}")
    if os.environ.get("GPRIO", "") == "iter3": A(f"  s_setprio {[1, 3, 2][u % 3]}" )
    A(f"  s_waitcnt lgkmcnt(6)")
    A(f"  v_and_or_b32 v{vG}, v{WR(u+D)}, s{sM1}, v{vHalf16}")
    if "noload" not in EXP:
        A(f"  buffer_load_dwordx4 {vr(XR(u+D))}, v{vG}, s[8:11], 0 offen")
        A(f"  s_waitcnt vmcnt({D})")
    A(f"  v_mfma_f32_16x16x32_bf16 {vr(DA)}, {vr(XR(u))}, {vr(B1A)}, 0")
    A(f"  v_mfma_f32_16x16x32_bf16 {vr(DB)}, {vr(XR(u))}, {vr(B1B)}, 0")
    A(f"  v_readlane_b32 s{sD}, v{vList}, s{sT}")
    A(f"  s_add_u32 s{sT}, s{sT}, 1")
    A(f"  v_and_or_b32 v{vA2}, v{WR(u+2)}, 30, v{vSelW}")
    A(f"  v_add_u32 v{vA}, s{sD}, v{vLane4}")
    A(f"  ds_write_b16 v{vS}, v{vZero}")
    A(f"  ds_write_b16 v{vA2}, v{CR(u+2)}")
    A(f"  v_mov_b32 v{vS}, v{vA2}")
    A(f"  ds_read_b64_tr_b16 {vr(B2(u+2),2)}, v{vSelR}")
    A(f"  ds_read_b64_tr_b16 {vr(B2(u+2)+2,2)}, v{vSelR} offset:512")
    A(f"  ds_read_b32 v{WR(u+D+2)}, v{vA} offset:{WB}")
    A(f"  v_lshrrev_b32 v{vA}, 1, v{vA}")
    A(f"  ds_read_u16 v{CR(u+D+2)}, v{vA}")
    A(f"  v_cvt_pk_bf16_f32 v{A2}, v{DA}, v{DA+1}")
    A(f"  v_cvt_pk_bf16_f32 v{A2+1}, v{DA+2}, v{DA+3}")
    A(f"  v_cvt_pk_bf16_f32 v{A2+2}, v{DB}, v{DB+1}")
    A(f"  v_cvt_pk_bf16_f32 v{A2+3}, v{DB+2}, v{DB+3}")
    A(f"  s_cmp_eq_u32 s{sT}, s{sTot}")
    A(f"  s_cbranch_scc1 L_gc_{j}_{u}")
    A(f"L_gb_{j}_{u}:")
    A(f"  s_sub_u32 s{sLeft}, s{sLeft}, 1")
    A(f"  v_mfma_f32_16x16x32_bf16 {vr(ACC(j))}, {vr(A2)}, {vr(B2(u))}, {vr(ACC(j))}")
    A(f"  s_cbranch_scc1 L_gn_{j+1}_{(u+1)%U}")
    if u == U-1:
        A(f"  s_branch L_g_{j}_0")

def g_callstub(j, u):
    A(f"L_gc_{j}_{u}:")
    A(f"  s_call_b64 s[30:31], L_setup")
    A(f"  s_branch L_gb_{j}_{u}")

def g_next(j, u):
    A(f"L_gn_{j}_{u}:")
    if j == GPW:
        A(f"  s_add_u32 s{sCC}, s{sCC}, 1")
        stampk(sreg=sCC, add=0)
        A(f"  s_cmp_eq_u32 s{sCC}, s{sEnd}")
        A(f"  s_cbranch_scc1 L_g_end")
        A(f"  s_cmp_lg_u32 s{sCC}, {NCH}")
        A(f"  s_cbranch_scc1 L_gz_{u}")
        A(f"  s_nop 7")
        for jj in range(GPW):
            for k in range(4): A(f"  v_mov_b32 v{ACC(jj)+k}, 0")
        A(f"L_gz_{u}:")
        for k in range(0, GPW, 2):
            A(f"  s_mov_b64 s[{sNB+k}:{sNB+k+1}], s[{sNBn+k}:{sNBn+k+1}]")
        A(f"  s_branch L_gn_0_{u}")
        return
    A(f"  s_sub_u32 s{sLeft}, s{sNB+j}, 1")
    A(f"  s_cbranch_scc1 L_gn_{j+1}_{u}")
    A(f"  s_branch L_g_{j}_{u}")

def fill_own_bins(sreg_p):
    for k in range(4):
        A(f"  v_mov_b32 v{vF0+k}, {DUMMY_W:#x}")
        A(f"  v_mov_b32 v{vF0+4+k}, 0")
    A(f"  s_mul_i32 s76, s{sreg_p}, {PB}")
    A(f"  s_mul_i32 s77, s35, {GPW*BS}")
    A(f"  s_add_u32 s76, s76, s77")
    A(f"  v_add_u32 v{vA}, s76, v{vLA}")
    for k in range(5):
        A(f"  ds_write_b128 v{vA}, {vr(vF0)} offset:{WB + 1024*k}")
    A(f"  s_mov_b64 exec, 0x3ff")
    A(f"  ds_write_b128 v{vA}, {vr(vF0)} offset:{WB + 5120}")
    A(f"  s_mov_b64 exec, -1")
    A(f"  s_lshr_b32 s76, s76, 1")
    A(f"  v_add_u32 v{vA}, s76, v{vLA}")
    A(f"  ds_write_b128 v{vA}, {vr(vF0+4)}")
    A(f"  ds_write_b128 v{vA}, {vr(vF0+4)} offset:1024")
    A(f"  s_mov_b64 exec, 0x{(1<<37)-1:x}") if False else None
    A(f"  s_bfm_b64 exec, 37, 0")
    A(f"  ds_write_b128 v{vA}, {vr(vF0+4)} offset:2048")
    A(f"  s_mov_b64 exec, -1")

def g_setup():
    A("L_setup:")
    A(f"  s_waitcnt lgkmcnt(0)")
    stampk(sreg=sCI, add=17)
    A(f"  s_cmp_lt_i32 s{sCI}, 0")
    A(f"  s_cbranch_scc1 L_su_nosig")
    A(f"  s_and_b32 s75, s{sCI}, 1")
    fill_own_bins(75)
    A(f"  s_lshl_b32 s75, s75, 2")
    A(f"  v_add_u32 v{vA}, s75, v{vFl}")
    A(f"  s_waitcnt lgkmcnt(0)")
    A(f"  s_mov_b64 exec, 1")
    A(f"  ds_add_u32 v{vA}, v{vOne1} offset:{F_DONE}")
    A(f"  s_mov_b64 exec, -1")
    A("L_su_nosig:")
    A(f"  s_add_u32 s{sCI}, s{sCI}, 1")
    A(f"  v_lshrrev_b32 v{vG}, 2, v{vLA}")
    A(f"  s_lshl_b32 s76, s35, 8")
    A(f"  s_add_u32 s76, s76, {LIST}")
    A(f"  v_add_u32 v{vG}, s76, v{vG}")
    A(f"  s_cmp_lg_u32 s{sCI}, {NCH}")
    A(f"  s_cbranch_scc1 L_su_noovf")
    A(f"  ds_read_b32 v{vA2}, v{vFl} offset:{F_OVF}"); A(f"  s_waitcnt lgkmcnt(0)")
    A(f"  v_readfirstlane_b32 s77, v{vA2}"); A(f"  s_nop 3"); A(f"  s_cmp_eq_u32 s77, 0"); A(f"  s_cbranch_scc1 L_su_noovf")
    A(f"  s_mov_b32 s{sEnd}, 0x7fffffff")
    A("L_su_noovf:")
    A(f"  s_cmp_lt_u32 s{sCI}, s{sEnd}")
    A(f"  s_cbranch_scc1 L_su_real")
    A(f"  v_mov_b32 v{vList}, {DUMMY_X}")
    A(f"  s_mov_b32 s{sTot}, 0x7fffffff")
    A(f"  s_mov_b32 s{sT}, 0")
    A(f"  s_setpc_b64 s[30:31]")
    A("L_su_real:")
    A(f"  v_mov_b32 v{vList}, {DUMMY_X}")
    A(f"  ds_write_b32 v{vG}, v{vList}")
    A(f"  s_and_b32 s75, s{sCI}, 1")
    A(f"  s_lshl_b32 s77, s75, 2")
    A(f"  v_add_u32 v{vA}, s77, v{vFl}")
    A(f"  s_lshr_b32 s77, s{sCI}, 1")
    A(f"  s_add_u32 s77, s77, 1")
    A(f"  s_mul_i32 s77, s77, {NIW}")
    poll(vA, F_RDY, 77, "L_su_poll", vA2, 78, 2)
    A(f"  s_cmp_lt_u32 s{sCI}, {NCH}"); A(f"  s_cbranch_scc1 L_su_nolast")
    A(f"  ds_read_b32 v{vA2}, v{vFl} offset:{F_LAST}"); A(f"  s_waitcnt lgkmcnt(0)")
    A(f"  v_readfirstlane_b32 s77, v{vA2}"); A(f"  s_add_u32 s78, s{sCI}, 1"); A(f"  s_nop 2")
    A(f"  s_cmp_eq_u32 s77, s78"); A(f"  s_cselect_b32 s{sEnd}, s78, s{sEnd}")
    A("L_su_nolast:")
    A(f"  s_lshl_b32 s77, s75, 9")
    A(f"  s_mul_i32 s78, s35, {GPW*4}")
    A(f"  s_add_u32 s77, s77, s78")
    A(f"  s_add_u32 s77, s77, {CNT}")
    A(f"  v_lshrrev_b32 v{vA}, 2, v{vLA}")
    A(f"  v_add_u32 v{vA}, s77, v{vA}")
    A(f"  s_mov_b64 exec, 0x3ff")
    A(f"  v_mov_b32 v{T0}, 0")
    A(f"  s_mov_b64 exec, -1")
    A(f"  v_mov_b32 v{T0}, 0")
    A(f"  s_mov_b64 exec, 0x3ff")
    A(f"  ds_read_b32 v{T0}, v{vA}")
    A(f"  s_waitcnt lgkmcnt(0)")
    A(f"  ds_write_b32 v{vA}, v{vZero}")
    A(f"  s_mov_b64 exec, -1")
    A(f"  v_min_u32 v{T0}, {CAP}, v{T0}")
    A(f"  v_add_u32 v{T0}, 31, v{T0}")
    A(f"  v_lshrrev_b32 v{T0}, 5, v{T0}")
    A(f"  v_mov_b32 v{T1}, v{T0}")
    A(f"  s_mul_i32 s77, s75, {PB}")
    A(f"  s_mul_i32 s78, s35, {GPW*BS}")
    for sh in (1, 2, 4, 8):
        A(f"  s_nop 0") if sh > 1 else A(f"  s_add_u32 s77, s77, s78")
        A(f"  v_add_u32_dpp v{T1}, v{T1}, v{T1} row_shr:{sh} row_mask:0xf bank_mask:0xf bound_ctrl:0")
        A(f"  s_nop 0")
    A(f"  v_add_u32 v{T2}, s77, v{vBin}")
    A(f"  v_sub_u32 v{T3}, v{T1}, v{T0}")
    A(f"  v_lshl_add_u32 v{T3}, v{T3}, 2, s76")
    for i in range(4):
        A(f"  v_cmp_lt_u32 vcc, {i}, v{T0}")
        A(f"  s_and_saveexec_b64 s[78:79], vcc")
        A(f"  ds_write_b32 v{T3}, v{T2} offset:{4*i}")
        A(f"  s_mov_b64 exec, s[78:79]")
        if i < 3: A(f"  v_add_u32 v{T2}, 128, v{T2}")
    A(f"  ds_read_b32 v{vList}, v{vG}")
    for j in range(GPW):
        A(f"  v_readlane_b32 s{sNBn+j}, v{T0}, {j}")
    A(f"  v_readlane_b32 s77, v{T1}, {GPW-1}")
    A(f"  s_nop 2")
    A(f"  s_max_u32 s{sTot}, s77, {MINT}")
    A(f"  s_sub_u32 s77, s{sTot}, s77")
    A(f"  s_add_u32 s{sNBn+GPW-1}, s{sNBn+GPW-1}, s77")
    A(f"  s_mov_b32 s{sT}, 0")
    A(f"  s_waitcnt lgkmcnt(0)")
    A(f"  s_setpc_b64 s[30:31]")

def gen_gwave():
    A(f"  s_load_dwordx2 s[38:39], s[0:1], 72")
    PFL = int(os.environ.get("PFL", "0"))
    if PFL:
        A("  s_lshr_b32 s40, s2, 3"); A("  s_lshl_b32 s40, s40, 9"); A("  s_lshl_b32 s41, s35, 6"); A("  s_add_u32 s40, s40, s41")
        A("  v_add_u32 v16, s40, v1"); A("  v_lshlrev_b32 v16, 7, v16")
        for k in range((PFL + 16383) // 16384):
            A(f"  s_mov_b32 s42, {k*16384*128}")
            A(f"  buffer_load_dword v{76+k}, v16, s[8:11], s42 offen")
    lds_init()
    A(f"  v_and_b32 v{vLane4}, 31, v1")
    A(f"  v_lshlrev_b32 v{vLane4}, 2, v{vLane4}")
    A(f"  v_lshrrev_b32 v{vHalf16}, 5, v1")
    A(f"  v_lshlrev_b32 v{vHalf16}, 4, v{vHalf16}")
    A(f"  v_lshlrev_b32 v{vLA}, 4, v1")
    A(f"  v_mul_u32_u24 v{vBin}, {BS}, v1")
    A(f"  s_mov_b32 s{sM1}, {DUMMY_W:#x}")
    A(f"  s_lshl_b32 s40, s35, 10")
    A(f"  s_add_u32 s40, s40, {SEL}")
    A(f"  v_and_b32 v20, 31, v1")
    A(f"  v_lshl_add_u32 v{vSelW}, v20, 5, s40")
    A(f"  v_lshl_add_u32 v{vSelR}, v1, 3, s40")
    srd(28, 38, 512)
    A(f"  v_lshrrev_b32 v19, 4, v1")
    A(f"  v_and_b32 v18, 15, v1")
    A(f"  v_lshrrev_b32 v20, 1, v19")
    A(f"  v_lshlrev_b32 v20, 8, v20")
    A(f"  v_lshl_add_u32 v20, v18, 1, v20")
    for jj in range(8):
        A(f"  buffer_load_ushort v{DA+jj}, v20, s[28:31], 0 offen offset:{32*jj}")
    A(f"  v_mov_b32 v{vZero}, 0")
    A(f"  v_mov_b32 v{vFl}, {FLG}")
    A(f"  v_mov_b32 v{vOne1}, 1")
    A(f"  v_mov_b32 v{vS}, v{vSelW}")
    A(f"  v_and_b32 v21, 1, v19")
    A(f"  v_cmp_eq_u32 s[40:41], 0, v21")
    for u in range(U):
        for k in range(4):
            A(f"  v_mov_b32 v{XR(u)+k}, 0")
        A(f"  v_mov_b32 v{WR(u)}, {DUMMY_W:#x}")
        A(f"  v_mov_b32 v{CR(u)}, 0")
    for p in range(3):
        for k in range(4):
            A(f"  v_mov_b32 v{B2(p)+k}, 0")
    for j in range(GPW):
        for k in range(4):
            A(f"  v_mov_b32 v{ACC(j)+k}, 0")
    A(f"  s_waitcnt vmcnt(0)")
    for k in range(4):
        A(f"  v_lshl_or_b32 v{DA+k}, v{DA+1+2*k}, 16, v{DA+2*k}")
    for k in range(4):
        A(f"  v_cndmask_b32 v{B1A+k}, v{vZero}, v{DA+k}, s[40:41]")
        A(f"  v_cndmask_b32 v{B1B+k}, v{DA+k}, v{vZero}, s[40:41]")
    A("  s_barrier")
    if F0:
        A("  s_cmp_lg_u32 s35, 0"); A("  s_cbranch_scc1 L_g_nonon")
        A("  v_mov_b32 v76, s60"); A("  v_mov_b32 v77, s61")
        A(f"  ds_write_b64 v{vFl}, v[76:77] offset:24")
        A("L_g_nonon:")
    if os.environ.get("GPRIO", "") == "st1": A("  s_setprio 1")
    A(f"  s_mov_b32 s{sCI}, -1")
    A(f"  s_mov_b32 s{sCC}, 0")
    A(f"  s_mov_b32 s{sEnd}, {NCH}")
    A(f"  s_call_b64 s[30:31], L_setup")
    for k in range(0, GPW, 2):
        A(f"  s_mov_b64 s[{sNB+k}:{sNB+k+1}], s[{sNBn+k}:{sNBn+k+1}]")
    A(f"  s_add_u32 s{sLeft}, s{sNB}, {LEAD-1}")
    for j in range(GPW):
        for u in range(U):
            g_body(j, u)
    for j in range(GPW):
        for u in range(U):
            g_callstub(j, u)
    for j in range(0, GPW+1):
        for u in range(U):
            g_next(j, u)
    g_setup()
    A("L_g_end:")
    A("  s_waitcnt vmcnt(0) lgkmcnt(0)")
    A("  s_nop 7")
    A(f"  s_mul_i32 s76, s35, {GPW*BS}")
    A(f"  s_add_u32 s76, s76, {WB}")
    A(f"  v_add_u32 v{vA}, s76, v{vLA}")
    for j in range(GPW):
        A(f"  ds_write_b128 v{vA}, {vr(ACC(j))} offset:{(j//5)*PB + (j%5)*1024}")
    A(f"  s_lshl_b32 s76, s35, 2")
    A(f"  v_add_u32 v{vA}, s76, v{vFl}")
    A(f"  s_waitcnt lgkmcnt(0)")
    A(f"  s_mov_b64 exec, 1")
    A(f"  ds_write_b32 v{vA}, v{vOne1} offset:{F_FIN}")
    A(f"  s_mov_b64 exec, -1")
    A(f"  s_waitcnt lgkmcnt(0)")
    stamp_flush()

def gen_epilogue():
    A("  s_load_dwordx2 s[36:37], s[0:1], 24")
    A("  s_load_dwordx2 s[38:39], s[0:1], 40")
    A("  s_load_dwordx4 s[40:43], s[0:1], 56")
    A("  s_load_dwordx4 s[44:47], s[0:1], 80")
    A("  s_waitcnt lgkmcnt(0)")
    srd(12, 36, E*2); srd(16, 46, E*32); srd(20, 38, 16); srd(24, 40, 256); srd(28, 42, 256); srd(48, 44, 512)
    n, q = 2, 3
    A(f"  v_and_b32 v{n}, 15, v1"); A(f"  v_lshrrev_b32 v{q}, 4, v1")
    A(f"  v_lshlrev_b32 v4, 6, v{q}"); A(f"  v_lshl_add_u32 v4, v{n}, 1, v4")
    A("  buffer_load_ushort v96, v4, s[28:31], 0 offen"); A("  buffer_load_ushort v97, v4, s[28:31], 0 offen offset:32")
    A("  buffer_load_ushort v98, v4, s[24:27], 0 offen"); A("  buffer_load_ushort v99, v4, s[24:27], 0 offen offset:32")
    A(f"  v_lshlrev_b32 v4, 7, v{q}"); A(f"  v_lshl_add_u32 v4, v{n}, 1, v4")
    for k in range(4): A(f"  buffer_load_ushort v{100+k}, v4, s[48:51], 0 offen offset:{32*k}")
    A(f"  v_lshlrev_b32 v4, 2, v{q}")
    A("  buffer_load_ushort v104, v4, s[20:23], 0 offen"); A("  buffer_load_ushort v105, v4, s[20:23], 0 offen offset:2")
    A("  s_sub_u32 s52, s35, 8"); A(f"  s_mul_i32 s52, s52, {GPW*16}")
    A(f"  v_add_u32 v5, s52, v{n}")
    A("  s_mul_i32 s53, s3, 1250")
    for j in range(GPW):
        A(f"  v_add_u32 v6, s53, v5")
        if j: A(f"  v_add_u32 v6, {16*j}, v6")
        A(f"  v_lshlrev_b32 v7, 1, v6")
        A(f"  buffer_load_ushort v{16+8*j}, v7, s[12:15], 0 offen")
        A(f"  v_lshlrev_b32 v7, 5, v6")
        A(f"  v_lshl_add_u32 v7, v{q}, 3, v7")
        A(f"  buffer_load_dwordx2 v[{22+8*j}:{23+8*j}], v7, s[8:11], 0 offen")
    A(f"  s_waitcnt vmcnt({2*GPW})")
    A("  v_lshl_or_b32 v108, v97, 16, v96"); A("  v_lshl_or_b32 v112, v99, 16, v98")
    A("  v_lshl_or_b32 v116, v101, 16, v100"); A("  v_lshl_or_b32 v117, v103, 16, v102")
    A("  v_mov_b32 v118, v116"); A("  v_mov_b32 v119, v117")
    for r in (109, 110, 111, 113, 114, 115, 121, 122, 123): A(f"  v_mov_b32 v{r}, 0")
    A("  v_lshlrev_b32 v104, 16, v104"); A("  v_lshlrev_b32 v105, 16, v105")
    A("  s_mov_b32 s54, 0xffff0000"); A(f"  s_mov_b32 s55, {f2u(-10.0):#x}"); A(f"  s_mov_b32 s56, {f2u(LOG2E):#x}")
    A("  s_waitcnt vmcnt(0)")
    for j in range(GPW):
        b = 16 + 8*j
        A(f"  v_lshlrev_b32 v8, 16, v{b}")
        A(f"  v_sub_f32 v9, v8, v104"); A(f"  v_sub_f32 v10, v8, v105")
        for step, op in enumerate(["sq", "m10", "exp"]):
            A(f"  v_cvt_pk_bf16_f32 v11, v9, v10")
            A(f"  v_lshlrev_b32 v9, 16, v11"); A(f"  v_and_b32 v10, s54, v11")
            if op == "sq":
                A(f"  v_mul_f32 v9, v9, v9"); A(f"  v_mul_f32 v10, v10, v10")
            elif op == "m10":
                A(f"  v_mul_f32 v9, s55, v9"); A(f"  v_mul_f32 v10, s55, v10")
            else:
                A(f"  v_mul_f32 v9, s56, v9"); A(f"  v_mul_f32 v10, s56, v10")
                A(f"  v_exp_f32 v9, v9"); A(f"  v_exp_f32 v10, v10"); A(f"  s_nop 0")
        A(f"  v_cvt_pk_bf16_f32 v120, v9, v10")
        A(f"  s_nop 1")
        A(f"  v_mfma_f32_16x16x32_bf16 v[{b}:{b+3}], v[108:111], v[120:123], 0")
        A(f"  v_mfma_f32_16x16x32_bf16 v[96:99], v[112:115], v[120:123], 0")
        A(f"  s_nop 7")
        A(f"  v_cvt_pk_bf16_f32 v{b+4}, v96, v97")
        A(f"  v_cvt_pk_bf16_f32 v{b+5}, v98, v99")
    stampk(k=40)
    A("  s_sub_u32 s57, s35, 8"); A("  s_lshl_b32 s58, s57, 2")
    A(f"  v_mov_b32 v4, {FLG}"); A("  v_add_u32 v4, s58, v4")
    A("  s_mov_b32 s59, 1")
    poll(4, F_FIN, 59, "L_ep_poll", 6, 58, int(os.environ.get("ESLEEP", "2")))
    stampk(k=41)
    A(f"  s_mul_i32 s57, s57, {GPW*BS}"); A(f"  s_add_u32 s57, s57, {WB}")
    A("  v_lshlrev_b32 v4, 4, v1"); A("  v_add_u32 v4, s57, v4")
    A(f"  v_mov_b32 v124, {OOB:#x}"); A("  s_movk_i32 s57, 1250")
    for j in range(GPW):
        b = 16 + 8*j
        acc = 96 + 4*(j % 2)
        if j == 0:
            A(f"  ds_read_b128 v[96:99], v4 offset:0")
        if j + 1 < GPW:
            jn = j + 1
            A(f"  ds_read_b128 v[{96+4*(jn%2)}:{99+4*(jn%2)}], v4 offset:{(jn//5)*PB + (jn%5)*1024}")
            A(f"  s_waitcnt lgkmcnt(1)")
        else:
            A(f"  s_waitcnt lgkmcnt(0)")
        for k in range(4): A(f"  v_mul_f32 v{8+k}, v{acc+k}, v{b+k}")
        A(f"  v_cvt_pk_bf16_f32 v104, v8, v9"); A(f"  v_cvt_pk_bf16_f32 v105, v10, v11")
        A(f"  v_lshlrev_b32 v12, 16, v104"); A(f"  v_and_b32 v13, s54, v104")
        A(f"  v_lshlrev_b32 v14, 16, v105"); A(f"  v_and_b32 v125, s54, v105")
        A(f"  v_sub_f32 v8, v8, v12"); A(f"  v_sub_f32 v9, v9, v13"); A(f"  v_sub_f32 v10, v10, v14"); A(f"  v_sub_f32 v11, v11, v125")
        A(f"  v_cvt_pk_bf16_f32 v106, v8, v9"); A(f"  v_cvt_pk_bf16_f32 v107, v10, v11")
        A(f"  v_add_u32 v6, {16*j}, v5")
        A(f"  v_cmp_gt_u32 vcc, s57, v6")
        A(f"  v_mfma_f32_16x16x32_bf16 v[108:111], v[116:119], v[104:107], 0")
        A(f"  v_add_u32 v6, s53, v6"); A(f"  v_lshlrev_b32 v6, 5, v6"); A(f"  v_lshl_add_u32 v6, v{q}, 3, v6")
        A(f"  v_cndmask_b32 v6, v124, v6, vcc")
        A(f"  v_lshlrev_b32 v8, 16, v{b+4}"); A(f"  v_and_b32 v9, s54, v{b+4}"); A(f"  v_lshlrev_b32 v10, 16, v{b+5}"); A(f"  v_and_b32 v11, s54, v{b+5}")
        A(f"  v_lshlrev_b32 v12, 16, v{b+6}"); A(f"  v_and_b32 v13, s54, v{b+6}"); A(f"  v_lshlrev_b32 v14, 16, v{b+7}"); A(f"  v_and_b32 v125, s54, v{b+7}")
        A(f"  v_fma_f32 v12, v108, v8, v12"); A(f"  v_fma_f32 v13, v109, v9, v13"); A(f"  v_fma_f32 v14, v110, v10, v14"); A(f"  v_fma_f32 v125, v111, v11, v125")
        A(f"  v_cvt_pk_bf16_f32 v{b+4}, v12, v13"); A(f"  v_cvt_pk_bf16_f32 v{b+5}, v14, v125")
        A(f"  buffer_store_dwordx2 v[{b+4}:{b+5}], v6, s[16:19], 0 offen")

def gen_k2():
    k2_prologue()
    gen_gwave()
    A("L_k2_end:")
    A("  s_endpgm")
    gen_iwave()

if __name__ == "__main__":
    A(f"; @launch kernel=k1_kernel grid=(256,1,1) block=(1024,1,1) lds={gen.K1_LDS}")
    A(f"; @launch kernel=k2_kernel grid=(256,1,1) block=(1024,1,1) lds={K2_LDS}")
    A('.amdgcn_target "amdgcn-amd-amdhsa--gfx950"')
    A(".text")
    gen.STAMP = False
    gen_k1()
    gen_k2()
    A('.section .rodata,"a"')
    A(".p2align 6")
    desc_block("k1_kernel", 128)
    A(".p2align 6")
    desc_block("k2_kernel", 128, 100)
    lines = [l for l in out if l is not None]
    open(sys.argv[1], "w").write("\n".join(lines) + "\n")
```

```python
from gen import *
import gen, os, sys

CAP = 128
BS = 528
NGW = 8; GPW = 10; NIW = 8
PB = 80 * BS
WB = PB
SEL = 126976
LIST = SEL + NGW * 1024
CNT = LIST + NGW * 256
FLG = CNT + 1024
K2_LDS = FLG + 128
assert SEL >= 3 * PB and SEL % 1024 == 0 and CNT % 512 == 0
F_OVF, F_RDY, F_DONE, F_FIN, F_NDONE, F_LAST = 0, 4, 12, 32, 64, 68
DUMMY_X = 79 * BS
DUMMY_W = 0x00FFFFE0
OOB = 0x7FFFFF00
LOG2E = 1.4426950408889634
EXP = set(os.environ.get("EXP", "").split(","))
RAW_NT = os.environ.get("RAW_NT", "")
NCH = 8
F0 = False

def vr(b, n=4): return f"v[{b}:{b+n-1}]"
STAMP = os.environ.get("STAMP", "0") == "1"
def stamp_init():
    if not STAMP: return
    A("  s_memtime s[90:91]"); A("  s_memrealtime s[92:93]"); A("  s_waitcnt lgkmcnt(0)"); A("  v_mov_b32 v15, 0")
def stampk(k=None, sreg=None, add=0):
    if not STAMP: return
    A("  s_memtime s[94:95]"); A("  s_waitcnt lgkmcnt(0)"); A("  s_sub_u32 s94, s94, s90")
    if k is not None:
        A(f"  v_writelane_b32 v15, s94, {k}")
    else:
        A(f"  s_add_u32 s95, s{sreg}, {add}"); A("  s_mov_b32 m0, s95"); A("  v_writelane_b32 v15, s94, m0")
def stamp_flush():
    if not STAMP: return
    A("  s_memtime s[94:95]"); A("  s_waitcnt lgkmcnt(0)"); A("  s_sub_u32 s94, s94, s90"); A("  v_writelane_b32 v15, s94, 32")
    A("  s_memrealtime s[94:95]"); A("  s_waitcnt lgkmcnt(0)")
    A("  v_writelane_b32 v15, s92, 34"); A("  v_writelane_b32 v15, s94, 35")
    A("  s_load_dwordx2 s[44:45], s[0:1], 104"); A("  s_waitcnt lgkmcnt(0)")
    srd(48, 44, 256*16*256, 128 << 20)
    A("  s_lshl_b32 s44, s2, 4"); A("  s_add_u32 s44, s44, s35"); A("  s_lshl_b32 s44, s44, 8")
    A("  v_lshlrev_b32 v4, 2, v1"); A("  buffer_store_dword v15, v4, s[48:51], s44 offen"); A("  s_waitcnt vmcnt(0)")

def k2_prologue():
    A(".p2align 8"); A(".globl k2_kernel"); A(".type k2_kernel,@function"); A("k2_kernel:")
    A("  s_cmp_ge_u32 s2, 256"); A("  s_cbranch_scc1 L_k2_end")
    stamp_init()
    A("  s_load_dwordx2 s[4:5], s[0:1], 0")
    A("  s_load_dwordx2 s[6:7], s[0:1], 104")
    A("  s_and_b32 s3, s2, 7"); A("  s_lshl_b32 s3, s3, 5"); A("  s_lshr_b32 s36, s2, 3"); A("  s_add_u32 s3, s3, s36")
    A("  v_lshrrev_b32 v4, 6, v0"); A("  v_and_b32 v1, 63, v0"); A("  v_readfirstlane_b32 s35, v4")
    A("  s_waitcnt lgkmcnt(0)")
    srd(8, 4, E*32)
    srd(12, 6, NT*TILE_BYTES)
    srd(16, 6, NBIN*DESC_ROW, DESC_OFF)
    A("  s_cmp_ge_u32 s35, 8"); A("  s_cbranch_scc1 L_k2_iwave")

def lds_init():
    for r in (8, 9, 10, 11): A(f"  v_mov_b32 v{r}, 0")
    A("  v_lshlrev_b32 v5, 4, v0")
    def region(base, nbytes):
        n16 = nbytes // 16
        k = 0
        cur = None
        while k * 512 < n16:
            addr = base + k * 8192
            seg = addr // 65536
            if seg != cur:
                A(f"  v_add_u32 v6, {seg * 65536}, v5"); cur = seg
            off = addr - seg * 65536
            if (k + 1) * 512 <= n16:
                A(f"  ds_write_b128 v6, v[8:11] offset:{off}")
            else:
                A(f"  v_cmp_gt_u32 vcc, {n16 - k*512}, v0"); A("  s_and_saveexec_b64 s[40:41], vcc")
                A(f"  ds_write_b128 v6, v[8:11] offset:{off}"); A("  s_mov_b64 exec, s[40:41]")
            k += 1
    region(SEL, K2_LDS - SEL)
    region(0, PB)
    for r in (8, 9, 10, 11): A(f"  v_mov_b32 v{r}, {DUMMY_W:#x}")
    region(WB, 2 * PB)
    A("  s_waitcnt lgkmcnt(0)")

def poll(vaddr, off, sneed, label, vtmp, stmp, sleep=2):
    A(f"{label}:")
    A(f"  ds_read_b32 v{vtmp}, v{vaddr} offset:{off}")
    A(f"  s_waitcnt lgkmcnt(0)")
    A(f"  v_readfirstlane_b32 s{stmp}, v{vtmp}")
    A(f"  s_nop 3")
    A(f"  s_cmp_ge_u32 s{stmp}, s{sneed}")
    A(f"  s_cbranch_scc1 {label}_ok")
    A(f"  s_sleep {sleep}")
    A(f"  s_branch {label}")
    A(f"{label}_ok:")

def RR(st, i, k): return 16 + 32*st + 4*i + k
NSET = 4
def CA(st, r): return 80 + 2*st + r
def RK(st, r): return 88 + 2*st + r
def MK(st, r): return 64 + 4*st + 2*r
vCntB, vOne, vPerm, vL15, vTileJ, vOOB, vDescOff, vD0, vD1, vD2, vT0, vT1, vKB, vFlag = 96, 97, 98, 99, 100, 101, 102, 103, 104, 105, 106, 107, 108, 109

def ins_A(w, st):
    for r in range(2):
        A(f"  v_cmp_gt_i32 s[{MK(st,r)}:{MK(st,r)+1}], 0, v{w[r]}")
        A(f"  v_lshrrev_b32 v{CA(st,r)}, 22, v{w[r]}")
        A(f"  v_and_or_b32 v{CA(st,r)}, v{CA(st,r)}, s52, v{vCntB}")
    for r in range(2):
        A(f"  s_mov_b64 exec, s[{MK(st,r)}:{MK(st,r)+1}]")
        A(f"  ds_add_rtn_u32 v{RK(st,r)}, v{CA(st,r)}, v{vOne}")
    A(f"  s_mov_b64 exec, -1")

def ins_B(w, cw, st):
    for r in range(2):
        ca = CA(st,r); rk = RK(st,r)
        A(f"  s_mov_b64 exec, s[{MK(st,r)}:{MK(st,r)+1}]")
        A(f"  v_cmp_lt_u32 vcc, {CAP-1}, v{rk}")
        A(f"  v_min_u32 v{rk}, {CAP-1}, v{rk}")
        A(f"  v_mad_u32_u24 v{ca}, v{ca}, v{vKB}, s53")
        A(f"  s_or_b64 s[54:55], s[54:55], vcc")
        A(f"  v_lshl_add_u32 v{ca}, v{rk}, 2, v{ca}")
        A(f"  ds_write_b32 v{ca}, v{w[r]} offset:{WB}")
        A(f"  v_lshrrev_b32 v{rk}, 1, v{ca}")
        A(f"  ds_write_b16{'_d16_hi' if r else ''} v{rk}, v{cw}")
    A(f"  s_mov_b64 exec, -1")

def ins_set(st):
    ops = []
    def emitA(i):
        ins_A((RR(st,i,0), RR(st,i,1)), i % NSET); ops.extend([('a', i)]*2)
    def emitB(i):
        last = max(k for k, o in enumerate(ops) if o == ('a', i))
        A(f"  s_waitcnt lgkmcnt({min(len(ops) - 1 - last, 15)})")
        ins_B((RR(st,i,0), RR(st,i,1)), RR(st,i,2), i % NSET); ops.extend([('w', i)]*4)
    for i in range(NSET): emitA(i)
    for i in range(8):
        emitB(i)
        if i + NSET < 8: emitA(i + NSET)

def iw_T0(dst, c_sreg, add=0):
    A(f"  s_add_u32 s{dst}, s{c_sreg}, {add}")
    A(f"  s_and_b32 s{dst}, s{dst}, 1")
    A(f"  s_mul_i32 s{dst}, s{dst}, 250")
    A(f"  s_add_u32 s{dst}, s{dst}, s60")

def iw_issue_raw(st, desc, c_sreg, add):
    iw_T0(57, c_sreg, add)
    A(f"  s_mul_i32 s57, s57, {TILE_BYTES}")
    for i in range(8):
        A(f"  ds_bpermute_b32 v{RR(st,i,0)}, v{vPerm}, v{desc} offset:{16*i}")
    for i in range(8):
        d = RR(st,i,0)
        A(f"  s_waitcnt lgkmcnt({7-i})")
        A(f"  v_and_b32 v{vT0}, 0xffff, v{d}")
        A(f"  v_lshrrev_b32 v{vT1}, 16, v{d}")
        A(f"  v_add_u32 v{vT0}, v{vT0}, v{vL15}")
        A(f"  v_cmp_lt_u32 vcc, v{vT0}, v{vT1}")
        A(f"  v_mad_u32_u24 v{vT0}, v{vT0}, 12, v{vTileJ}")
        A(f"  s_nop 0")
        A(f"  v_cndmask_b32 v{vT0}, v{vOOB}, v{vT0}, vcc")
        if "sc1" in RAW_NT: A(f"  buffer_load_dwordx4 v[{d}:{d+3}], v{vT0}, s[12:15], s57 offen{RAW_NT}")
        else: A(f"  buffer_load_dwordx3 v[{d}:{d+2}], v{vT0}, s[12:15], s57 offen{RAW_NT}")
        if i < 7: A(f"  s_add_u32 s57, s57, {4*TILE_BYTES}")

def iw_desc_load(dst, c_sreg, add):
    A(f"  s_add_u32 s59, s{c_sreg}, {add}")
    A(f"  s_lshr_b32 s58, s59, 1")
    if os.environ.get("ROT", "0") == "1":
        A(f"  s_add_u32 s58, s58, s2"); A(f"  s_and_b32 s58, s58, 3")
    if os.environ.get("ROT", "0") == "2":
        A(f"  s_lshr_b32 s57, s2, 1"); A(f"  s_add_u32 s58, s58, s57"); A(f"  s_and_b32 s58, s58, 3")
    A(f"  s_lshl_b32 s58, s58, 8")
    A(f"  s_add_u32 s58, s58, s3")
    A(f"  s_lshl_b32 s58, s58, 9")
    A(f"  s_and_b32 s59, s59, 1")
    A(f"  s_mul_i32 s59, s59, 250")
    A(f"  s_add_u32 s59, s59, s60")
    A(f"  s_add_u32 s58, s58, s59")
    A(f"  s_lshl_b32 s58, s58, 2")
    A(f"  buffer_load_dword v{dst}, v{vDescOff}, s[16:19], s58 offen{RAW_NT}")

def iw_chunk(st):
    t = f"L_iw{st}"
    A(f"  s_lshr_b32 s87, s61, 1")
    A(f"  s_mul_i32 s87, s87, {NGW}")
    stampk(sreg=61, add=0)
    poll(vFlag, F_DONE + 4*st, 87, f"{t}_poll", vT0, 88, int(os.environ.get("ISLEEP", "4")))
    A(f"  v_mov_b32 v{vCntB}, {CNT + 512*st}")
    A(f"  s_mov_b32 s53, {(PB*st - (CNT + 512*st)*(BS//4)) & 0xffffffff:#x}")
    A(f"  s_waitcnt vmcnt(9)")
    stampk(sreg=61, add=8)
    ins_set(st)
    A(f"  v_and_b32 v{vT0}, 0xffff, v{vD0}")
    A(f"  v_lshrrev_b32 v{vT1}, 16, v{vD0}")
    A(f"  v_add_u32 v{vT0}, 16, v{vT0}")
    A(f"  v_cmp_lt_u32 s[80:81], v{vT0}, v{vT1}")
    iw_T0(86, 61)
    A(f"{t}_long:")
    A(f"  s_cmp_eq_u64 s[80:81], 0")
    A(f"  s_cbranch_scc1 {t}_long_done")
    A(f"  s_ff1_i32_b64 s82, s[80:81]")
    A(f"  s_bitset0_b64 s[80:81], s82")
    A(f"  v_readlane_b32 s83, v{vD0}, s82")
    A(f"  s_add_u32 s84, s86, s82")
    A(f"  s_mul_i32 s84, s84, {TILE_BYTES}")
    A(f"  s_lshr_b32 s85, s83, 16")
    A(f"  s_and_b32 s83, s83, 0xffff")
    A(f"  s_add_u32 s83, s83, 16")
    A(f"{t}_long_win:")
    A(f"  v_add_u32 v{vT0}, s83, v1")
    A(f"  v_cmp_gt_u32 vcc, s85, v{vT0}")
    A(f"  v_mul_u32_u24 v{vT0}, 12, v{vT0}")
    A(f"  s_nop 0")
    A(f"  v_cndmask_b32 v{vT0}, v{vOOB}, v{vT0}, vcc")
    L = RR(st,0,0)
    if "sc1" in RAW_NT: A(f"  buffer_load_dwordx4 v[{L}:{L+3}], v{vT0}, s[12:15], s84 offen{RAW_NT}")
    else: A(f"  buffer_load_dwordx3 v[{L}:{L+2}], v{vT0}, s[12:15], s84 offen")
    A(f"  s_waitcnt vmcnt(0)")
    ins_A((L, L+1), 0)
    A(f"  s_waitcnt lgkmcnt(0)")
    ins_B((L, L+1), L+2, 0)
    A(f"  s_add_u32 s83, s83, 64")
    A(f"  s_cmp_lt_u32 s83, s85")
    A(f"  s_cbranch_scc1 {t}_long_win")
    A(f"  s_branch {t}_long")
    A(f"{t}_long_done:")
    A(f"  s_cmp_eq_u64 s[54:55], 0")
    A(f"  s_cbranch_scc1 {t}_noovf")
    A(f"  ds_write_b32 v{vFlag}, v{vOne} offset:{F_OVF}")
    A(f"{t}_noovf:")
    A(f"  s_waitcnt lgkmcnt(0)")
    A(f"  s_mov_b64 exec, 1")
    A(f"  ds_add_u32 v{vFlag}, v{vOne} offset:{F_RDY + 4*st}")
    A(f"  s_mov_b64 exec, -1")
    stampk(sreg=61, add=16)
    if os.environ.get('IPRIO0'): A(f"  s_setprio {os.environ.get('IPRIO', '3')}")
    A(f"  s_add_u32 s62, s61, 2")
    A(f"  s_cmp_ge_u32 s62, {NCH}")
    A(f"  s_cbranch_scc1 {t}_noraw")
    A(f"  s_waitcnt vmcnt(0)")
    iw_issue_raw(st, vD2, 61, 2)
    A(f"  s_add_u32 s62, s61, 3")
    A(f"  s_cmp_ge_u32 s62, {NCH}")
    A(f"  v_mov_b32 v{vD0}, v{vD1}")
    A(f"  v_mov_b32 v{vD1}, v{vD2}")
    A(f"  s_cbranch_scc1 {t}_nodesc")
    iw_desc_load(vD2, 61, 3)
    A(f"  s_branch {t}_nodesc")
    A(f"{t}_noraw:")
    A(f"  s_waitcnt vmcnt(0)")
    A(f"  v_mov_b32 v{vD0}, v{vD1}")
    A(f"{t}_nodesc:")
    A(f"  s_add_u32 s61, s61, 1")

def slow_parity():
    c0 = (0 - CNT*(BS//4)) & 0xffffffff
    c1 = (PB - (CNT + 512)*(BS//4)) & 0xffffffff
    A("  s_and_b32 s88, s61, 1"); A("  s_cmp_eq_u32 s88, 0")
    A(f"  s_cselect_b32 s53, {c0:#x}, s53") if False else None
    A(f"  s_mov_b32 s53, {c0:#x}"); A(f"  s_mov_b32 s89, {c1:#x}"); A("  s_cselect_b32 s53, s53, s89")
    A(f"  s_lshl_b32 s89, s88, 9"); A(f"  s_add_u32 s89, s89, {CNT}"); A(f"  v_mov_b32 v{vCntB}, s89")
    A(f"  s_lshl_b32 s89, s88, 2"); A(f"  v_add_u32 v{vT1}, s89, v{vFlag}")

def gen_iw_slow():
    A(f"  s_mov_b32 s87, {NIW * (NCH // 2)}")
    poll(vFlag, F_RDY + 4, 87, "L_sl_w", vT0, 88, 2)
    A(f"  ds_read_b32 v{vT0}, v{vFlag} offset:{F_OVF}"); A("  s_waitcnt lgkmcnt(0)")
    A(f"  v_readfirstlane_b32 s88, v{vT0}"); A("  s_nop 3"); A("  s_cmp_eq_u32 s88, 0"); A("  s_cbranch_scc1 L_iw_epi")
    A("  s_setprio 0")
    A("  s_mov_b32 s62, 0")
    A("L_sl_q:")
    iw_desc_load(vD0, 62, 0)
    iw_T0(86, 62)
    A("  s_mov_b32 s82, 0")
    A("  s_waitcnt vmcnt(0)")
    A("L_sl_tile:")
    A(f"  v_readlane_b32 s83, v{vD0}, s82")
    A("  s_add_u32 s84, s86, s82"); A(f"  s_mul_i32 s84, s84, {TILE_BYTES}")
    A("  s_lshr_b32 s85, s83, 16"); A("  s_and_b32 s83, s83, 0xffff")
    A("L_sl_win:")
    A("  s_cmp_ge_u32 s83, s85"); A("  s_cbranch_scc1 L_sl_next")
    slow_parity()
    A("  s_lshr_b32 s87, s61, 1"); A(f"  s_mul_i32 s87, s87, {NGW}")
    poll(vT1, F_DONE, 87, "L_sl_d", vT0, 88, 2)
    A(f"  v_add_u32 v{vT0}, s83, v1"); A(f"  v_cmp_gt_u32 vcc, s85, v{vT0}"); A("  v_cmp_gt_u32 s[80:81], 8, v1")
    A(f"  v_mul_u32_u24 v{vT0}, 12, v{vT0}"); A("  s_and_b64 vcc, vcc, s[80:81]"); A("  s_nop 1")
    A(f"  v_cndmask_b32 v{vT0}, v{vOOB}, v{vT0}, vcc")
    L = RR(0,0,0)
    A(f"  buffer_load_dwordx3 v[{L}:{L+2}], v{vT0}, s[12:15], s84 offen")
    A("  s_waitcnt vmcnt(0)")
    ins_A((L, L+1), 0); A("  s_waitcnt lgkmcnt(0)"); ins_B((L, L+1), L+2, 0)
    A("  s_waitcnt lgkmcnt(0)")
    A("  s_mov_b64 exec, 1"); A(f"  ds_add_u32 v{vT1}, v{vOne} offset:{F_RDY}"); A("  s_mov_b64 exec, -1")
    A("  s_add_u32 s61, s61, 1"); A("  s_add_u32 s83, s83, 8"); A("  s_branch L_sl_win")
    A("L_sl_next:")
    A("  s_add_u32 s82, s82, 1"); A("  s_cmp_lt_u32 s82, 32"); A("  s_cbranch_scc1 L_sl_tile")
    A("  s_add_u32 s62, s62, 1"); A(f"  s_cmp_lt_u32 s62, {NCH}"); A("  s_cbranch_scc1 L_sl_q")
    A("  s_mov_b32 s63, 1")
    A("L_sl_idle:")
    A(f"  ds_read_b32 v{vT0}, v{vFlag} offset:{F_LAST}"); A("  s_waitcnt lgkmcnt(0)")
    A(f"  v_readfirstlane_b32 s88, v{vT0}"); A("  s_nop 3")
    A("  s_cmp_eq_u32 s88, 0"); A("  s_cbranch_scc1 L_sl_cont")
    A("  s_cmp_ge_u32 s61, s88"); A("  s_cbranch_scc1 L_iw_epi")
    A("L_sl_cont:")
    slow_parity()
    A("  s_lshr_b32 s87, s61, 1"); A(f"  s_mul_i32 s87, s87, {NGW}")
    A(f"  ds_read_b32 v{vT0}, v{vT1} offset:{F_DONE}"); A("  s_waitcnt lgkmcnt(0)")
    A(f"  v_readfirstlane_b32 s88, v{vT0}"); A("  s_nop 3")
    A("  s_cmp_ge_u32 s88, s87"); A("  s_cbranch_scc1 L_sl_go")
    A("  s_sleep 2"); A("  s_branch L_sl_idle")
    A("L_sl_go:")
    A("  s_cmp_eq_u32 s63, 0"); A("  s_cbranch_scc1 L_sl_sig")
    A("  s_mov_b32 s63, 0")
    A("  s_mov_b64 exec, 1"); A(f"  ds_add_rtn_u32 v{vT0}, v{vFlag}, v{vOne} offset:{F_NDONE}"); A("  s_waitcnt lgkmcnt(0)")
    A(f"  v_readfirstlane_b32 s88, v{vT0}"); A("  s_mov_b64 exec, -1"); A("  s_nop 2")
    A(f"  s_cmp_lg_u32 s88, {NIW-1}"); A("  s_cbranch_scc1 L_sl_sig")
    A("  s_add_u32 s88, s61, 1"); A(f"  v_mov_b32 v{vT0}, s88"); A(f"  ds_write_b32 v{vFlag}, v{vT0} offset:{F_LAST}"); A("  s_waitcnt lgkmcnt(0)")
    A("L_sl_sig:")
    A("  s_mov_b64 exec, 1"); A(f"  ds_add_u32 v{vT1}, v{vOne} offset:{F_RDY}"); A("  s_mov_b64 exec, -1")
    A("  s_add_u32 s61, s61, 1"); A("  s_branch L_sl_idle")

def gen_iwave():
    A("L_k2_iwave:")
    A(f"  s_setprio {os.environ.get('IPRIO0', os.environ.get('IPRIO', '3'))}")
    A("  s_sub_u32 s60, s35, 8")
    A("  s_lshl_b32 s60, s60, 5")
    A("  s_mov_b32 s52, 0x1fc")
    A("  s_mov_b64 s[54:55], 0")
    A(f"  v_mov_b32 v{vOOB}, {OOB:#x}")
    A(f"  v_add_u32 v{vDescOff}, s60, v1")
    A(f"  v_cmp_gt_u32 vcc, 250, v{vDescOff}")
    A(f"  v_cmp_gt_u32 s[40:41], 32, v1")
    A(f"  v_lshlrev_b32 v{vDescOff}, 2, v1")
    A(f"  s_and_b64 vcc, vcc, s[40:41]")
    A(f"  s_nop 1")
    A(f"  v_cndmask_b32 v{vDescOff}, v{vOOB}, v{vDescOff}, vcc")
    A("  s_mov_b32 s61, 0")
    if F0:
        A(f"  v_mov_b32 v{vFlag}, {FLG}")
        A("  s_barrier")
        A("  s_cmp_lg_u32 s35, 8"); A("  s_cbranch_scc1 L_i_lpoll")
        A("L_i_nw:")
        A(f"  ds_read_b64 v[16:17], v{vFlag} offset:24"); A("  s_waitcnt lgkmcnt(0)")
        A("  v_readfirstlane_b32 s28, v16"); A("  v_readfirstlane_b32 s29, v17"); A("  s_nop 3")
        A("  s_cmp_lg_u32 s28, 0"); A("  s_cbranch_scc1 L_i_nok")
        A("  s_cmp_eq_u32 s97, 0"); A("  s_cbranch_scc1 L_i_nok"); A("  s_sub_u32 s97, s97, 1")
        A("  s_sleep 2"); A("  s_branch L_i_nw")
        A("L_i_nok:")
        A("  s_and_b32 s62, s2, 7"); A("  s_lshl_b32 s62, s62, 13")
        A(f"  v_lshlrev_b32 v{vT1}, 3, v1")
        A("L_i_rpoll:")
        for k in range(8):
            if k == 7: A("  s_bfm_b64 exec, 52, 0")
            A(f"  buffer_load_dwordx2 v[{16+2*k}:{17+2*k}], v{vT1}, s[24:27], s62 offen offset:{512*k} sc1")
        A("  s_mov_b64 exec, -1"); A("  s_waitcnt vmcnt(0)"); A("  s_mov_b64 s[64:65], -1")
        for k in range(8):
            if k == 7: A("  s_bfm_b64 exec, 52, 0")
            A(f"  v_cmp_ne_u64 vcc, s[28:29], v[{16+2*k}:{17+2*k}]")
            A(f"  s_cmp_eq_u64 vcc, 0"); A(f"  s_cselect_b64 s[64:65], s[64:65], 0")
        A("  s_mov_b64 exec, -1")
        A("  s_cmp_lg_u64 s[64:65], 0"); A("  s_cbranch_scc1 L_i_rok")
        A("  s_cmp_eq_u32 s97, 0"); A("  s_cbranch_scc1 L_i_rok"); A("  s_sub_u32 s97, s97, 1")
        A(f"  s_sleep {os.environ.get('RSLEEP', '8')}"); A("  s_branch L_i_rpoll")
        A("L_i_rok:")
        A(f"  v_mov_b32 v{vT0}, 1"); A(f"  ds_write_b32 v{vFlag}, v{vT0} offset:20")
        A("  s_branch L_i_rdone")
        A("L_i_lpoll:")
        A("  s_mov_b32 s62, 1")
        poll(vFlag, 20, 62, "L_i_lp", vT0, 63, 2)
        A("L_i_rdone:")
        stampk(k=42)
    iw_desc_load(vD0, 61, 0)
    iw_desc_load(vD1, 61, 1)
    iw_desc_load(vD2, 61, 2)
    A(f"  v_mov_b32 v{vOne}, 1")
    A(f"  v_mov_b32 v{vKB}, {BS//4}")
    A(f"  v_lshrrev_b32 v{vPerm}, 4, v1")
    A(f"  v_mov_b32 v{vTileJ}, {TILE_BYTES}")
    A(f"  v_mul_lo_u32 v{vTileJ}, v{vTileJ}, v{vPerm}")
    A(f"  v_lshlrev_b32 v{vPerm}, 2, v{vPerm}")
    A(f"  v_and_b32 v{vL15}, 15, v1")
    A(f"  v_mov_b32 v{vFlag}, {FLG}")
    A("  s_waitcnt vmcnt(2)")
    iw_issue_raw(0, vD0, 61, 0)
    A("  s_waitcnt vmcnt(9)")
    out[-1] = "  s_waitcnt vmcnt(9)"
    iw_issue_raw(1, vD1, 61, 1)
    if not F0: A("  s_barrier")
    A("  s_waitcnt vmcnt(8)")
    A("L_iw_loop:")
    iw_chunk(0)
    iw_chunk(1)
    A(f"  s_cmp_lt_u32 s61, {NCH}")
    A("  s_cbranch_scc1 L_iw_loop")
    gen_iw_slow()
    A("L_iw_epi:")
    gen_epilogue()
    stamp_flush()
    A("  s_endpgm")

D = int(os.environ.get("GD", "2")); U = D + 1; LEAD = D + 2; MINT = D + 3
assert U % 3 == 0
B1A, B1B, DA, DB, A2 = 18, 22, 26, 30, 34
XR = lambda u: 38 + 4*(u % U)
WR = lambda u: 38 + 4*U + (u % U)
CR = lambda u: 38 + 5*U + (u % U)
B2 = lambda p: 38 + 6*U + 4*(p % 3)
assert 38 + 6*U + 12 <= 88
ACC = lambda j: 88 + 4*j
vLane4, vHalf16, vSelW, vSelR, vZero, vList, vG, vA, vA2, vS, vFl, vOne1, vBin, vLA = 2, 3, 4, 5, 6, 7, 8, 9, 10, 11, 12, 13, 14, 16
vF0 = DA
T0, T1, T2, T3 = DA, DA+1, DA+2, DA+3
sM1 = 44; sT = 45; sD = 46; sLeft = 47
sNB = 48
sTot = 58; sCI = 59; sCC = 60; sEnd = 61
sNBn = 64
sLo = 80

def g_body(j, u):
    A(f"L_g_{j}_{u}:")
    if os.environ.get("GPRIO", "") == "iter": A(f"  s_setprio {u % 3}")
    if os.environ.get("GPRIO", "") == "iter1": A(f"  s_setprio {1 + u % 3}")
    if os.environ.get("GPRIO", "") == "iter2": A(f"  s_setprio {(u + j) % 4}")
    if os.environ.get("GPRIO", "") == "iter3": A(f"  s_setprio {[1, 3, 2][u % 3]}" )
    A(f"  s_waitcnt lgkmcnt(6)")
    A(f"  v_and_or_b32 v{vG}, v{WR(u+D)}, s{sM1}, v{vHalf16}")
    if "noload" not in EXP:
        A(f"  buffer_load_dwordx4 {vr(XR(u+D))}, v{vG}, s[8:11], 0 offen")
        A(f"  s_waitcnt vmcnt({D})")
    A(f"  v_mfma_f32_16x16x32_bf16 {vr(DA)}, {vr(XR(u))}, {vr(B1A)}, 0")
    A(f"  v_mfma_f32_16x16x32_bf16 {vr(DB)}, {vr(XR(u))}, {vr(B1B)}, 0")
    A(f"  v_readlane_b32 s{sD}, v{vList}, s{sT}")
    A(f"  s_add_u32 s{sT}, s{sT}, 1")
    A(f"  v_and_or_b32 v{vA2}, v{WR(u+2)}, 30, v{vSelW}")
    A(f"  v_add_u32 v{vA}, s{sD}, v{vLane4}")
    A(f"  ds_write_b16 v{vS}, v{vZero}")
    A(f"  ds_write_b16 v{vA2}, v{CR(u+2)}")
    A(f"  v_mov_b32 v{vS}, v{vA2}")
    A(f"  ds_read_b64_tr_b16 {vr(B2(u+2),2)}, v{vSelR}")
    A(f"  ds_read_b64_tr_b16 {vr(B2(u+2)+2,2)}, v{vSelR} offset:512")
    A(f"  ds_read_b32 v{WR(u+D+2)}, v{vA} offset:{WB}")
    A(f"  v_lshrrev_b32 v{vA}, 1, v{vA}")
    A(f"  ds_read_u16 v{CR(u+D+2)}, v{vA}")
    A(f"  v_cvt_pk_bf16_f32 v{A2}, v{DA}, v{DA+1}")
    A(f"  v_cvt_pk_bf16_f32 v{A2+1}, v{DA+2}, v{DA+3}")
    A(f"  v_cvt_pk_bf16_f32 v{A2+2}, v{DB}, v{DB+1}")
    A(f"  v_cvt_pk_bf16_f32 v{A2+3}, v{DB+2}, v{DB+3}")
    A(f"  s_cmp_eq_u32 s{sT}, s{sTot}")
    A(f"  s_cbranch_scc1 L_gc_{j}_{u}")
    A(f"L_gb_{j}_{u}:")
    A(f"  s_sub_u32 s{sLeft}, s{sLeft}, 1")
    A(f"  v_mfma_f32_16x16x32_bf16 {vr(ACC(j))}, {vr(A2)}, {vr(B2(u))}, {vr(ACC(j))}")
    A(f"  s_cbranch_scc1 L_gn_{j+1}_{(u+1)%U}")
    if u == U-1:
        A(f"  s_branch L_g_{j}_0")

def g_callstub(j, u):
    A(f"L_gc_{j}_{u}:")
    A(f"  s_call_b64 s[30:31], L_setup")
    A(f"  s_branch L_gb_{j}_{u}")

def g_next(j, u):
    A(f"L_gn_{j}_{u}:")
    if j == GPW:
        A(f"  s_add_u32 s{sCC}, s{sCC}, 1")
        stampk(sreg=sCC, add=0)
        A(f"  s_cmp_eq_u32 s{sCC}, s{sEnd}")
        A(f"  s_cbranch_scc1 L_g_end")
        A(f"  s_cmp_lg_u32 s{sCC}, {NCH}")
        A(f"  s_cbranch_scc1 L_gz_{u}")
        A(f"  s_nop 7")
        for jj in range(GPW):
            for k in range(4): A(f"  v_mov_b32 v{ACC(jj)+k}, 0")
        A(f"L_gz_{u}:")
        for k in range(0, GPW, 2):
            A(f"  s_mov_b64 s[{sNB+k}:{sNB+k+1}], s[{sNBn+k}:{sNBn+k+1}]")
        A(f"  s_branch L_gn_0_{u}")
        return
    A(f"  s_sub_u32 s{sLeft}, s{sNB+j}, 1")
    A(f"  s_cbranch_scc1 L_gn_{j+1}_{u}")
    A(f"  s_branch L_g_{j}_{u}")

def fill_own_bins(sreg_p):
    for k in range(4):
        A(f"  v_mov_b32 v{vF0+k}, {DUMMY_W:#x}")
        A(f"  v_mov_b32 v{vF0+4+k}, 0")
    A(f"  s_mul_i32 s76, s{sreg_p}, {PB}")
    A(f"  s_mul_i32 s77, s35, {GPW*BS}")
    A(f"  s_add_u32 s76, s76, s77")
    A(f"  v_add_u32 v{vA}, s76, v{vLA}")
    for k in range(5):
        A(f"  ds_write_b128 v{vA}, {vr(vF0)} offset:{WB + 1024*k}")
    A(f"  s_mov_b64 exec, 0x3ff")
    A(f"  ds_write_b128 v{vA}, {vr(vF0)} offset:{WB + 5120}")
    A(f"  s_mov_b64 exec, -1")
    A(f"  s_lshr_b32 s76, s76, 1")
    A(f"  v_add_u32 v{vA}, s76, v{vLA}")
    A(f"  ds_write_b128 v{vA}, {vr(vF0+4)}")
    A(f"  ds_write_b128 v{vA}, {vr(vF0+4)} offset:1024")
    A(f"  s_mov_b64 exec, 0x{(1<<37)-1:x}") if False else None
    A(f"  s_bfm_b64 exec, 37, 0")
    A(f"  ds_write_b128 v{vA}, {vr(vF0+4)} offset:2048")
    A(f"  s_mov_b64 exec, -1")

def g_setup():
    A("L_setup:")
    A(f"  s_waitcnt lgkmcnt(0)")
    stampk(sreg=sCI, add=17)
    A(f"  s_cmp_lt_i32 s{sCI}, 0")
    A(f"  s_cbranch_scc1 L_su_nosig")
    A(f"  s_and_b32 s75, s{sCI}, 1")
    fill_own_bins(75)
    A(f"  s_lshl_b32 s75, s75, 2")
    A(f"  v_add_u32 v{vA}, s75, v{vFl}")
    A(f"  s_waitcnt lgkmcnt(0)")
    A(f"  s_mov_b64 exec, 1")
    A(f"  ds_add_u32 v{vA}, v{vOne1} offset:{F_DONE}")
    A(f"  s_mov_b64 exec, -1")
    A("L_su_nosig:")
    A(f"  s_add_u32 s{sCI}, s{sCI}, 1")
    A(f"  v_lshrrev_b32 v{vG}, 2, v{vLA}")
    A(f"  s_lshl_b32 s76, s35, 8")
    A(f"  s_add_u32 s76, s76, {LIST}")
    A(f"  v_add_u32 v{vG}, s76, v{vG}")
    A(f"  s_cmp_lg_u32 s{sCI}, {NCH}")
    A(f"  s_cbranch_scc1 L_su_noovf")
    A(f"  ds_read_b32 v{vA2}, v{vFl} offset:{F_OVF}"); A(f"  s_waitcnt lgkmcnt(0)")
    A(f"  v_readfirstlane_b32 s77, v{vA2}"); A(f"  s_nop 3"); A(f"  s_cmp_eq_u32 s77, 0"); A(f"  s_cbranch_scc1 L_su_noovf")
    A(f"  s_mov_b32 s{sEnd}, 0x7fffffff")
    A("L_su_noovf:")
    A(f"  s_cmp_lt_u32 s{sCI}, s{sEnd}")
    A(f"  s_cbranch_scc1 L_su_real")
    A(f"  v_mov_b32 v{vList}, {DUMMY_X}")
    A(f"  s_mov_b32 s{sTot}, 0x7fffffff")
    A(f"  s_mov_b32 s{sT}, 0")
    A(f"  s_setpc_b64 s[30:31]")
    A("L_su_real:")
    A(f"  v_mov_b32 v{vList}, {DUMMY_X}")
    A(f"  ds_write_b32 v{vG}, v{vList}")
    A(f"  s_and_b32 s75, s{sCI}, 1")
    A(f"  s_lshl_b32 s77, s75, 2")
    A(f"  v_add_u32 v{vA}, s77, v{vFl}")
    A(f"  s_lshr_b32 s77, s{sCI}, 1")
    A(f"  s_add_u32 s77, s77, 1")
    A(f"  s_mul_i32 s77, s77, {NIW}")
    poll(vA, F_RDY, 77, "L_su_poll", vA2, 78, 2)
    A(f"  s_cmp_lt_u32 s{sCI}, {NCH}"); A(f"  s_cbranch_scc1 L_su_nolast")
    A(f"  ds_read_b32 v{vA2}, v{vFl} offset:{F_LAST}"); A(f"  s_waitcnt lgkmcnt(0)")
    A(f"  v_readfirstlane_b32 s77, v{vA2}"); A(f"  s_add_u32 s78, s{sCI}, 1"); A(f"  s_nop 2")
    A(f"  s_cmp_eq_u32 s77, s78"); A(f"  s_cselect_b32 s{sEnd}, s78, s{sEnd}")
    A("L_su_nolast:")
    A(f"  s_lshl_b32 s77, s75, 9")
    A(f"  s_mul_i32 s78, s35, {GPW*4}")
    A(f"  s_add_u32 s77, s77, s78")
    A(f"  s_add_u32 s77, s77, {CNT}")
    A(f"  v_lshrrev_b32 v{vA}, 2, v{vLA}")
    A(f"  v_add_u32 v{vA}, s77, v{vA}")
    A(f"  s_mov_b64 exec, 0x3ff")
    A(f"  v_mov_b32 v{T0}, 0")
    A(f"  s_mov_b64 exec, -1")
    A(f"  v_mov_b32 v{T0}, 0")
    A(f"  s_mov_b64 exec, 0x3ff")
    A(f"  ds_read_b32 v{T0}, v{vA}")
    A(f"  s_waitcnt lgkmcnt(0)")
    A(f"  ds_write_b32 v{vA}, v{vZero}")
    A(f"  s_mov_b64 exec, -1")
    A(f"  v_min_u32 v{T0}, {CAP}, v{T0}")
    A(f"  v_add_u32 v{T0}, 31, v{T0}")
    A(f"  v_lshrrev_b32 v{T0}, 5, v{T0}")
    A(f"  v_mov_b32 v{T1}, v{T0}")
    A(f"  s_mul_i32 s77, s75, {PB}")
    A(f"  s_mul_i32 s78, s35, {GPW*BS}")
    for sh in (1, 2, 4, 8):
        A(f"  s_nop 0") if sh > 1 else A(f"  s_add_u32 s77, s77, s78")
        A(f"  v_add_u32_dpp v{T1}, v{T1}, v{T1} row_shr:{sh} row_mask:0xf bank_mask:0xf bound_ctrl:0")
        A(f"  s_nop 0")
    A(f"  v_add_u32 v{T2}, s77, v{vBin}")
    A(f"  v_sub_u32 v{T3}, v{T1}, v{T0}")
    A(f"  v_lshl_add_u32 v{T3}, v{T3}, 2, s76")
    for i in range(4):
        A(f"  v_cmp_lt_u32 vcc, {i}, v{T0}")
        A(f"  s_and_saveexec_b64 s[78:79], vcc")
        A(f"  ds_write_b32 v{T3}, v{T2} offset:{4*i}")
        A(f"  s_mov_b64 exec, s[78:79]")
        if i < 3: A(f"  v_add_u32 v{T2}, 128, v{T2}")
    A(f"  ds_read_b32 v{vList}, v{vG}")
    for j in range(GPW):
        A(f"  v_readlane_b32 s{sNBn+j}, v{T0}, {j}")
    A(f"  v_readlane_b32 s77, v{T1}, {GPW-1}")
    A(f"  s_nop 2")
    A(f"  s_max_u32 s{sTot}, s77, {MINT}")
    A(f"  s_sub_u32 s77, s{sTot}, s77")
    A(f"  s_add_u32 s{sNBn+GPW-1}, s{sNBn+GPW-1}, s77")
    A(f"  s_mov_b32 s{sT}, 0")
    A(f"  s_waitcnt lgkmcnt(0)")
    A(f"  s_setpc_b64 s[30:31]")

def gen_gwave():
    A(f"  s_load_dwordx2 s[38:39], s[0:1], 72")
    PFL = int(os.environ.get("PFL", "0"))
    if PFL:
        A("  s_lshr_b32 s40, s2, 3"); A("  s_lshl_b32 s40, s40, 9"); A("  s_lshl_b32 s41, s35, 6"); A("  s_add_u32 s40, s40, s41")
        A("  v_add_u32 v16, s40, v1"); A("  v_lshlrev_b32 v16, 7, v16")
        for k in range((PFL + 16383) // 16384):
            A(f"  s_mov_b32 s42, {k*16384*128}")
            A(f"  buffer_load_dword v{76+k}, v16, s[8:11], s42 offen")
    lds_init()
    A(f"  v_and_b32 v{vLane4}, 31, v1")
    A(f"  v_lshlrev_b32 v{vLane4}, 2, v{vLane4}")
    A(f"  v_lshrrev_b32 v{vHalf16}, 5, v1")
    A(f"  v_lshlrev_b32 v{vHalf16}, 4, v{vHalf16}")
    A(f"  v_lshlrev_b32 v{vLA}, 4, v1")
    A(f"  v_mul_u32_u24 v{vBin}, {BS}, v1")
    A(f"  s_mov_b32 s{sM1}, {DUMMY_W:#x}")
    A(f"  s_lshl_b32 s40, s35, 10")
    A(f"  s_add_u32 s40, s40, {SEL}")
    A(f"  v_and_b32 v20, 31, v1")
    A(f"  v_lshl_add_u32 v{vSelW}, v20, 5, s40")
    A(f"  v_lshl_add_u32 v{vSelR}, v1, 3, s40")
    srd(28, 38, 512)
    A(f"  v_lshrrev_b32 v19, 4, v1")
    A(f"  v_and_b32 v18, 15, v1")
    A(f"  v_lshrrev_b32 v20, 1, v19")
    A(f"  v_lshlrev_b32 v20, 8, v20")
    A(f"  v_lshl_add_u32 v20, v18, 1, v20")
    for jj in range(8):
        A(f"  buffer_load_ushort v{DA+jj}, v20, s[28:31], 0 offen offset:{32*jj}")
    A(f"  v_mov_b32 v{vZero}, 0")
    A(f"  v_mov_b32 v{vFl}, {FLG}")
    A(f"  v_mov_b32 v{vOne1}, 1")
    A(f"  v_mov_b32 v{vS}, v{vSelW}")
    A(f"  v_and_b32 v21, 1, v19")
    A(f"  v_cmp_eq_u32 s[40:41], 0, v21")
    for u in range(U):
        for k in range(4):
            A(f"  v_mov_b32 v{XR(u)+k}, 0")
        A(f"  v_mov_b32 v{WR(u)}, {DUMMY_W:#x}")
        A(f"  v_mov_b32 v{CR(u)}, 0")
    for p in range(3):
        for k in range(4):
            A(f"  v_mov_b32 v{B2(p)+k}, 0")
    for j in range(GPW):
        for k in range(4):
            A(f"  v_mov_b32 v{ACC(j)+k}, 0")
    A(f"  s_waitcnt vmcnt(0)")
    for k in range(4):
        A(f"  v_lshl_or_b32 v{DA+k}, v{DA+1+2*k}, 16, v{DA+2*k}")
    for k in range(4):
        A(f"  v_cndmask_b32 v{B1A+k}, v{vZero}, v{DA+k}, s[40:41]")
        A(f"  v_cndmask_b32 v{B1B+k}, v{DA+k}, v{vZero}, s[40:41]")
    A("  s_barrier")
    if F0:
        A("  s_cmp_lg_u32 s35, 0"); A("  s_cbranch_scc1 L_g_nonon")
        A("  v_mov_b32 v76, s60"); A("  v_mov_b32 v77, s61")
        A(f"  ds_write_b64 v{vFl}, v[76:77] offset:24")
        A("L_g_nonon:")
    LATE = os.environ.get("GLATE", "0") == "1"
    if os.environ.get("GPRIO", "") == "st1" and not LATE: A("  s_setprio 1")
    A(f"  s_mov_b32 s{sCI}, -1")
    A(f"  s_mov_b32 s{sCC}, 0")
    A(f"  s_mov_b32 s{sEnd}, {NCH}")
    A(f"  s_call_b64 s[30:31], L_setup")
    if os.environ.get("GPRIO", "") == "st1" and LATE: A("  s_setprio 1")
    for k in range(0, GPW, 2):
        A(f"  s_mov_b64 s[{sNB+k}:{sNB+k+1}], s[{sNBn+k}:{sNBn+k+1}]")
    A(f"  s_add_u32 s{sLeft}, s{sNB}, {LEAD-1}")
    for j in range(GPW):
        for u in range(U):
            g_body(j, u)
    for j in range(GPW):
        for u in range(U):
            g_callstub(j, u)
    for j in range(0, GPW+1):
        for u in range(U):
            g_next(j, u)
    g_setup()
    A("L_g_end:")
    A("  s_waitcnt vmcnt(0) lgkmcnt(0)")
    A("  s_nop 7")
    A(f"  s_mul_i32 s76, s35, {GPW*BS}")
    A(f"  s_add_u32 s76, s76, {WB}")
    A(f"  v_add_u32 v{vA}, s76, v{vLA}")
    for j in range(GPW):
        A(f"  ds_write_b128 v{vA}, {vr(ACC(j))} offset:{(j//5)*PB + (j%5)*1024}")
    A(f"  s_lshl_b32 s76, s35, 2")
    A(f"  v_add_u32 v{vA}, s76, v{vFl}")
    A(f"  s_waitcnt lgkmcnt(0)")
    A(f"  s_mov_b64 exec, 1")
    A(f"  ds_write_b32 v{vA}, v{vOne1} offset:{F_FIN}")
    A(f"  s_mov_b64 exec, -1")
    A(f"  s_waitcnt lgkmcnt(0)")
    stamp_flush()

def gen_epilogue():
    A("  s_load_dwordx2 s[36:37], s[0:1], 24")
    A("  s_load_dwordx2 s[38:39], s[0:1], 40")
    A("  s_load_dwordx4 s[40:43], s[0:1], 56")
    A("  s_load_dwordx4 s[44:47], s[0:1], 80")
    A("  s_waitcnt lgkmcnt(0)")
    srd(12, 36, E*2); srd(16, 46, E*32); srd(20, 38, 16); srd(24, 40, 256); srd(28, 42, 256); srd(48, 44, 512)
    n, q = 2, 3
    A(f"  v_and_b32 v{n}, 15, v1"); A(f"  v_lshrrev_b32 v{q}, 4, v1")
    A(f"  v_lshlrev_b32 v4, 6, v{q}"); A(f"  v_lshl_add_u32 v4, v{n}, 1, v4")
    A("  buffer_load_ushort v96, v4, s[28:31], 0 offen"); A("  buffer_load_ushort v97, v4, s[28:31], 0 offen offset:32")
    A("  buffer_load_ushort v98, v4, s[24:27], 0 offen"); A("  buffer_load_ushort v99, v4, s[24:27], 0 offen offset:32")
    A(f"  v_lshlrev_b32 v4, 7, v{q}"); A(f"  v_lshl_add_u32 v4, v{n}, 1, v4")
    for k in range(4): A(f"  buffer_load_ushort v{100+k}, v4, s[48:51], 0 offen offset:{32*k}")
    A(f"  v_lshlrev_b32 v4, 2, v{q}")
    A("  buffer_load_ushort v104, v4, s[20:23], 0 offen"); A("  buffer_load_ushort v105, v4, s[20:23], 0 offen offset:2")
    A("  s_sub_u32 s52, s35, 8"); A(f"  s_mul_i32 s52, s52, {GPW*16}")
    A(f"  v_add_u32 v5, s52, v{n}")
    A("  s_mul_i32 s53, s3, 1250")
    for j in range(GPW):
        A(f"  v_add_u32 v6, s53, v5")
        if j: A(f"  v_add_u32 v6, {16*j}, v6")
        A(f"  v_lshlrev_b32 v7, 1, v6")
        A(f"  buffer_load_ushort v{16+8*j}, v7, s[12:15], 0 offen")
        A(f"  v_lshlrev_b32 v7, 5, v6")
        A(f"  v_lshl_add_u32 v7, v{q}, 3, v7")
        A(f"  buffer_load_dwordx2 v[{22+8*j}:{23+8*j}], v7, s[8:11], 0 offen")
    A(f"  s_waitcnt vmcnt({2*GPW})")
    A("  v_lshl_or_b32 v108, v97, 16, v96"); A("  v_lshl_or_b32 v112, v99, 16, v98")
    A("  v_lshl_or_b32 v116, v101, 16, v100"); A("  v_lshl_or_b32 v117, v103, 16, v102")
    A("  v_mov_b32 v118, v116"); A("  v_mov_b32 v119, v117")
    for r in (109, 110, 111, 113, 114, 115, 121, 122, 123): A(f"  v_mov_b32 v{r}, 0")
    A("  v_lshlrev_b32 v104, 16, v104"); A("  v_lshlrev_b32 v105, 16, v105")
    A("  s_mov_b32 s54, 0xffff0000"); A(f"  s_mov_b32 s55, {f2u(-10.0):#x}"); A(f"  s_mov_b32 s56, {f2u(LOG2E):#x}")
    A("  s_waitcnt vmcnt(0)")
    for j in range(GPW):
        b = 16 + 8*j
        A(f"  v_lshlrev_b32 v8, 16, v{b}")
        A(f"  v_sub_f32 v9, v8, v104"); A(f"  v_sub_f32 v10, v8, v105")
        for step, op in enumerate(["sq", "m10", "exp"]):
            A(f"  v_cvt_pk_bf16_f32 v11, v9, v10")
            A(f"  v_lshlrev_b32 v9, 16, v11"); A(f"  v_and_b32 v10, s54, v11")
            if op == "sq":
                A(f"  v_mul_f32 v9, v9, v9"); A(f"  v_mul_f32 v10, v10, v10")
            elif op == "m10":
                A(f"  v_mul_f32 v9, s55, v9"); A(f"  v_mul_f32 v10, s55, v10")
            else:
                A(f"  v_mul_f32 v9, s56, v9"); A(f"  v_mul_f32 v10, s56, v10")
                A(f"  v_exp_f32 v9, v9"); A(f"  v_exp_f32 v10, v10"); A(f"  s_nop 0")
        A(f"  v_cvt_pk_bf16_f32 v120, v9, v10")
        A(f"  s_nop 1")
        A(f"  v_mfma_f32_16x16x32_bf16 v[{b}:{b+3}], v[108:111], v[120:123], 0")
        A(f"  v_mfma_f32_16x16x32_bf16 v[96:99], v[112:115], v[120:123], 0")
        A(f"  s_nop 7")
        A(f"  v_cvt_pk_bf16_f32 v{b+4}, v96, v97")
        A(f"  v_cvt_pk_bf16_f32 v{b+5}, v98, v99")
    stampk(k=40)
    A("  s_sub_u32 s57, s35, 8"); A("  s_lshl_b32 s58, s57, 2")
    A(f"  v_mov_b32 v4, {FLG}"); A("  v_add_u32 v4, s58, v4")
    A("  s_mov_b32 s59, 1")
    poll(4, F_FIN, 59, "L_ep_poll", 6, 58, int(os.environ.get("ESLEEP", "2")))
    stampk(k=41)
    A(f"  s_mul_i32 s57, s57, {GPW*BS}"); A(f"  s_add_u32 s57, s57, {WB}")
    A("  v_lshlrev_b32 v4, 4, v1"); A("  v_add_u32 v4, s57, v4")
    A(f"  v_mov_b32 v124, {OOB:#x}"); A("  s_movk_i32 s57, 1250")
    for j in range(GPW):
        b = 16 + 8*j
        acc = 96 + 4*(j % 2)
        if j == 0:
            A(f"  ds_read_b128 v[96:99], v4 offset:0")
        if j + 1 < GPW:
            jn = j + 1
            A(f"  ds_read_b128 v[{96+4*(jn%2)}:{99+4*(jn%2)}], v4 offset:{(jn//5)*PB + (jn%5)*1024}")
            A(f"  s_waitcnt lgkmcnt(1)")
        else:
            A(f"  s_waitcnt lgkmcnt(0)")
        for k in range(4): A(f"  v_mul_f32 v{8+k}, v{acc+k}, v{b+k}")
        A(f"  v_cvt_pk_bf16_f32 v104, v8, v9"); A(f"  v_cvt_pk_bf16_f32 v105, v10, v11")
        A(f"  v_lshlrev_b32 v12, 16, v104"); A(f"  v_and_b32 v13, s54, v104")
        A(f"  v_lshlrev_b32 v14, 16, v105"); A(f"  v_and_b32 v125, s54, v105")
        A(f"  v_sub_f32 v8, v8, v12"); A(f"  v_sub_f32 v9, v9, v13"); A(f"  v_sub_f32 v10, v10, v14"); A(f"  v_sub_f32 v11, v11, v125")
        A(f"  v_cvt_pk_bf16_f32 v106, v8, v9"); A(f"  v_cvt_pk_bf16_f32 v107, v10, v11")
        A(f"  v_add_u32 v6, {16*j}, v5")
        A(f"  v_cmp_gt_u32 vcc, s57, v6")
        A(f"  v_mfma_f32_16x16x32_bf16 v[108:111], v[116:119], v[104:107], 0")
        A(f"  v_add_u32 v6, s53, v6"); A(f"  v_lshlrev_b32 v6, 5, v6"); A(f"  v_lshl_add_u32 v6, v{q}, 3, v6")
        A(f"  v_cndmask_b32 v6, v124, v6, vcc")
        A(f"  v_lshlrev_b32 v8, 16, v{b+4}"); A(f"  v_and_b32 v9, s54, v{b+4}"); A(f"  v_lshlrev_b32 v10, 16, v{b+5}"); A(f"  v_and_b32 v11, s54, v{b+5}")
        A(f"  v_lshlrev_b32 v12, 16, v{b+6}"); A(f"  v_and_b32 v13, s54, v{b+6}"); A(f"  v_lshlrev_b32 v14, 16, v{b+7}"); A(f"  v_and_b32 v125, s54, v{b+7}")
        A(f"  v_fma_f32 v12, v108, v8, v12"); A(f"  v_fma_f32 v13, v109, v9, v13"); A(f"  v_fma_f32 v14, v110, v10, v14"); A(f"  v_fma_f32 v125, v111, v11, v125")
        A(f"  v_cvt_pk_bf16_f32 v{b+4}, v12, v13"); A(f"  v_cvt_pk_bf16_f32 v{b+5}, v14, v125")
        A(f"  buffer_store_dwordx2 v[{b+4}:{b+5}], v6, s[16:19], 0 offen")

def gen_k2():
    k2_prologue()
    gen_gwave()
    A("L_k2_end:")
    A("  s_endpgm")
    gen_iwave()

if __name__ == "__main__":
    A(f"; @launch kernel=k1_kernel grid=(256,1,1) block=(1024,1,1) lds={gen.K1_LDS}")
    A(f"; @launch kernel=k2_kernel grid=(256,1,1) block=(1024,1,1) lds={K2_LDS}")
    A('.amdgcn_target "amdgcn-amd-amdhsa--gfx950"')
    A(".text")
    gen.STAMP = False
    gen_k1()
    gen_k2()
    A('.section .rodata,"a"')
    A(".p2align 6")
    desc_block("k1_kernel", 128)
    A(".p2align 6")
    desc_block("k2_kernel", 128, 100)
    lines = [l for l in out if l is not None]
    open(sys.argv[1], "w").write("\n".join(lines) + "\n")
```

```python
import struct, sys, os
import numpy as np

E = 320000; T = 10240000
TILE = 20480; NT = 500; NBIN = 1024
TILE_BYTES = 129024
DESC_OFF = NT * TILE_BYTES
DESC_ROW = 512 * 4
ROWS_PER_B = 1250

out = []
def A(s=""):
    out.append(s)
def f2u(x):
    return struct.unpack("<I", struct.pack("<f", x))[0]

def srd(base_s, ptr_lo, nbytes, off=0):
    if off:
        A(f"  s_add_u32 s{base_s}, s{ptr_lo}, {off}")
        A(f"  s_addc_u32 s{base_s+1}, s{ptr_lo+1}, 0")
    else:
        A(f"  s_mov_b32 s{base_s}, s{ptr_lo}")
        A(f"  s_mov_b32 s{base_s+1}, s{ptr_lo+1}")
    A(f"  s_mov_b32 s{base_s+2}, {nbytes}")
    A(f"  s_mov_b32 s{base_s+3}, 0x20000")

STAMP = False
stamp_idx = [0]
def stamp():
    if not STAMP: return
    i = stamp_idx[0]; stamp_idx[0] += 1
    A(f"  s_memtime s[{60+2*i}:{61+2*i}]")
    A(f"  s_waitcnt lgkmcnt(0)")
def rstamp(reg):
    if not STAMP: return
    A(f"  s_memrealtime s[{reg}:{reg+1}]")
    A(f"  s_waitcnt lgkmcnt(0)")
def stamp_flush(wgsel):
    if not STAMP: return
    n = stamp_idx[0]
    A(f"  s_cmp_lg_u32 s2, {wgsel}")
    A(f"  s_cbranch_scc1 L_nostamp")
    A(f"  s_cmp_lg_u32 s35, 0")
    A(f"  s_cbranch_scc1 L_nostamp")
    A(f"  s_load_dwordx2 s[44:45], s[0:1], 96")
    A(f"  s_waitcnt lgkmcnt(0)")
    srd(48, 44, 256)
    A(f"  v_mov_b32 v4, 0")
    for i in range(n):
        A(f"  s_sub_u32 s46, s{60+2*i}, s60")
        A(f"  v_mov_b32 v5, s46")
        A(f"  buffer_store_dword v5, v4, s[48:51], 0 offen offset:{4*i}")
    A(f"  s_sub_u32 s46, s94, s92")
    A(f"  v_mov_b32 v5, s46")
    A(f"  buffer_store_dword v5, v4, s[48:51], 0 offen offset:{4*n}")
    A(f"L_nostamp:")
K1_HIST = TILE_BYTES
K1_WT = K1_HIST + 4096
K1_LDS = K1_WT + 64

c_full = 0.15915494309189535
c_hi_u = f2u(c_full) & 0xFFFFFF00
c_hi = struct.unpack("<f", struct.pack("<I", c_hi_u))[0]
c_lo_u = f2u(c_full - c_hi)

def k1_loads(O, I, An, stau, nt=os.environ.get("K1_LD", " nt")):
    A(f"  s_mul_i32 s40, s{stau}, 81920")
    A(f"  s_mul_i32 s42, s{stau}, 40960")
    for c in range(5):
        A(f"  buffer_load_dwordx4 v[{O+4*c}:{O+4*c+3}], v1, s[8:11], s40 offen{nt}")
        A(f"  buffer_load_dwordx4 v[{I+4*c}:{I+4*c+3}], v1, s[12:15], s40 offen{nt}")
        A(f"  buffer_load_dwordx2 v[{An+2*c}:{An+2*c+1}], v2, s[16:19], s42 offen{nt}")
        if c < 4:
            A(f"  s_add_u32 s40, s40, 16384")
            A(f"  s_add_u32 s42, s42, 8192")

def k1_fields(O, I, An, c):
    for r in range(4):
        o = O + 4*c + r; i = I + 4*c + r
        A(f"  v_mul_hi_u32_u24 v12, s28, v{o}")
        A(f"  v_mul_hi_u32_u24 v13, s30, v{i}")
        A(f"  v_mad_i32_i24 v14, v12, s29, v{o}")
        A(f"  v_lshlrev_b32 v12, 2, v12")
        A(f"  v_lshl_or_b32 v{o}, v13, 10, v12")
        A(f"  v_lshl_or_b32 v{i}, v{i}, 5, s32")
        A(f"  v_lshlrev_b32 v15, 20, v14")
        A(f"  v_lshlrev_b32 v14, 1, v14")
        A(f"  v_and_or_b32 v{i}, v15, s37, v{i}")
        A(f"  v_and_or_b32 v{i}, v14, 30, v{i}")
        rk = 4 + (c % 2) * 4 + r
        A(f"  ds_add_rtn_u32 v{rk}, v{o}, v3 offset:{K1_HOFF}")
    for h in range(2):
        a = An + 2*c + h
        A(f"  v_lshlrev_b32 v12, 16, v{a}")
        A(f"  v_and_b32 v13, s38, v{a}")
        if os.environ.get("FREQ1", "0") != "1":
            A(f"  v_mul_f32 v12, s31, v12")
            A(f"  v_mul_f32 v13, s31, v13")
            A(f"  v_cvt_pk_bf16_f32 v14, v12, v13")
            A(f"  v_lshlrev_b32 v12, 16, v14")
            A(f"  v_and_b32 v13, s38, v14")
        A(f"  v_mul_f32 v14, s33, v12")
        A(f"  v_mul_f32 v15, s33, v13")
        A(f"  v_fract_f32 v14, v14")
        A(f"  v_fract_f32 v15, v15")
        A(f"  v_fma_f32 v14, v12, s34, v14")
        A(f"  v_fma_f32 v15, v13, s34, v15")
        A(f"  v_cos_f32 v14, v14")
        A(f"  v_cos_f32 v15, v15")
        A(f"  s_nop 0")
        A(f"  v_cvt_pk_bf16_f32 v{a}, v14, v15")

K1_HIST = 0
K1_WT = 4096
K1_STG = 4096 + 128
K1_LDS = K1_STG + TILE_BYTES
K1_HOFF = K1_HIST

def k1_pack(O, c):
    for r in range(4):
        o = O + 4*c + r; rk = 4 + (c % 2) * 4 + r
        A(f"  v_lshl_or_b32 v{o}, v{rk}, 12, v{o}")

def k1_tile(O, I, An, stau, vm_base, tag, after_first=None):
    BAFTER = int(os.environ.get("BAFTER", "0"))
    for c in range(5):
        if vm_base is not None:
            if after_first is not None and c <= BAFTER:
                A(f"  s_waitcnt vmcnt({15 - 3*(c+1)})")
                if os.environ.get("DYNB") and c == int(os.environ.get("CLAIMAT", "0")):
                    A("  s_cmp_lg_u32 s35, 0"); A("  s_cbranch_scc1 L_k1_nclaim")
                    A("  s_mov_b64 exec, 1"); A("  v_mov_b32 v120, 1"); A("  v_mov_b32 v123, 0")
                    A("  buffer_atomic_add v120, v123, s[52:55], 0 offen sc0")
                    A("  s_mov_b64 exec, -1")
                    A("L_k1_nclaim:")
                if c == BAFTER:
                    stamp()
                    after_first()
            else:
                A(f"  s_waitcnt vmcnt({vm_base + 15 - 3*(c+1)})")
        k1_fields(O, I, An, c)
        if c > 0:
            A(f"  s_waitcnt lgkmcnt(4)")
            k1_pack(O, c-1)
    A(f"  s_waitcnt lgkmcnt(0)")
    k1_pack(O, 4)
    stamp()
    A(f"  s_barrier")
    stamp()
    A(f"  ds_read_b32 v4, v16 offset:{K1_HIST}")
    A(f"  s_waitcnt lgkmcnt(0)")
    A(f"  v_add_u32 v5, 1, v4")
    A(f"  v_and_b32 v5, -2, v5")
    A(f"  v_mov_b32 v6, v5")
    A(f"  s_nop 1")
    for sh in (1, 2, 4, 8):
        A(f"  v_add_u32_dpp v6, v6, v6 row_shr:{sh} row_mask:0xf bank_mask:0xf bound_ctrl:0")
        A(f"  s_nop 1")
    A(f"  v_add_u32_dpp v6, v6, v6 row_bcast:15 row_mask:0xa bank_mask:0xf")
    A(f"  s_nop 1")
    A(f"  v_add_u32_dpp v6, v6, v6 row_bcast:31 row_mask:0xc bank_mask:0xf")
    A(f"  s_nop 1")
    A(f"  v_readlane_b32 s43, v6, 63")
    A(f"  s_lshl_b32 s44, s35, 2")
    A(f"  v_mov_b32 v7, s44")
    A(f"  s_nop 0")
    A(f"  v_mov_b32 v8, s43")
    A(f"  ds_write_b32 v7, v8 offset:{K1_WT}")
    A(f"  s_waitcnt lgkmcnt(0)")
    A(f"  s_barrier")
    A(f"  ds_read_b32 v7, v17 offset:{K1_WT}")
    A(f"  s_waitcnt lgkmcnt(0)")
    A(f"  s_nop 1")
    for sh in (1, 2, 4, 8):
        A(f"  v_add_u32_dpp v7, v7, v7 row_shr:{sh} row_mask:0xf bank_mask:0xf bound_ctrl:0")
        A(f"  s_nop 1")
    A(f"  s_sub_u32 s44, s35, 1")
    A(f"  s_max_i32 s44, s44, 0")
    A(f"  v_readlane_b32 s43, v7, s44")
    A(f"  s_cmp_eq_u32 s35, 0")
    A(f"  s_cselect_b32 s43, 0, s43")
    A(f"  v_sub_u32 v6, v6, v5")
    A(f"  s_nop 1")
    A(f"  v_add_u32 v6, s43, v6")
    A(f"  ds_write_b32 v16, v6 offset:{K1_HIST}")
    A(f"  v_add_u32 v7, v6, v5")
    A(f"  v_lshrrev_b32 v8, 1, v6")
    A(f"  v_lshrrev_b32 v7, 1, v7")
    A(f"  v_lshl_or_b32 v7, v7, 16, v8")
    A(f"  s_lshl_b32 s44, s{stau}, 2")
    A(f"  buffer_store_dword v7, v18, s[24:27], s44 offen{os.environ.get('DESC_ST', K1_ST)}")
    A(f"  v_and_b32 v8, 1, v4")
    A(f"  v_cmp_eq_u32 vcc, 1, v8")
    A(f"  v_add_u32 v8, v6, v4")
    A(f"  v_mul_u32_u24 v8, 6, v8")
    A(f"  v_mov_b32 v9, 0")
    A(f"  s_and_saveexec_b64 s[46:47], vcc")
    A(f"  ds_write_b32 v8, v9 offset:{K1_STG - 2}")
    A(f"  s_mov_b64 exec, s[46:47]")
    A(f"  s_waitcnt lgkmcnt(0)")
    A(f"  s_barrier")
    stamp()
    def rd(c):
        for r in range(4):
            o = O + 4*c + r; rk = 4 + (c % 2) * 4 + r
            A(f"  v_and_b32 v{rk}, s39, v{o}")
            A(f"  ds_read_b32 v{rk}, v{rk} offset:{K1_HIST}")
    rd(0)
    for c in range(5):
        if c < 4:
            rd(c+1)
        A(f"  s_waitcnt lgkmcnt({4 if c < 4 else 0})")
        for r in range(4):
            k = 4*c + r; o = O + k; i = I + k; rk = 4 + (c % 2) * 4 + r
            a = An + k // 2
            A(f"  v_lshrrev_b32 v12, 12, v{o}")
            A(f"  v_add_u32 v12, v12, v{rk}")
            A(f"  v_and_b32 v13, 1, v12")
            A(f"  v_mul_u32_u24 v12, 6, v12")
            A(f"  v_mad_i32_i24 v12, v13, -2, v12")
            A(f"  v_mad_i32_i24 v13, v13, -2, v12")
            A(f"  ds_write_b32 v12, v{i} offset:{K1_STG}")
            A(f"  ds_write_b16{'_d16_hi' if k % 2 else ''} v13, v{a} offset:{K1_STG + 8}")
    A(f"  s_waitcnt lgkmcnt(0)")
    A(f"  s_barrier")
    stamp()
    A(f"  v_mov_b32 v9, 0")
    A(f"  ds_write_b32 v16, v9 offset:{K1_HIST}")
    R = O
    assert I == O + 20
    for it in range(7):
        base = "v1" if it < 3 else "v19"
        off = K1_STG + it*16384 - (0 if it < 3 else 49152)
        A(f"  ds_read_b128 v[{R+4*it}:{R+4*it+3}], {base} offset:{off}")
    A(f"  s_cmp_lt_u32 s35, 14")
    A(f"  s_cbranch_scc0 L_k1_skip7_{tag}")
    A(f"  v_add_u32 v12, 65536, v19")
    A(f"  ds_read_b128 v[{R+28}:{R+31}], v12 offset:{K1_STG + 7*16384 - 49152 - 65536}")
    A(f"L_k1_skip7_{tag}:")
    A(f"  s_mul_i32 s44, s{stau}, {TILE_BYTES}")
    A(f"  s_waitcnt lgkmcnt(0)")
    A(f"  s_barrier")
    for it in range(7):
        A(f"  buffer_store_dwordx4 v[{R+4*it}:{R+4*it+3}], v1, s[20:23], s44 offen{os.environ.get('K1_ST_'+tag, K1_ST)}")
        A(f"  s_add_u32 s44, s44, 16384")
    A(f"  s_cmp_lt_u32 s35, 14")
    A(f"  s_cbranch_scc0 L_k1_skip7s_{tag}")
    A(f"  buffer_store_dwordx4 v[{R+28}:{R+31}], v1, s[20:23], s44 offen{os.environ.get('K1_ST_'+tag, K1_ST)}")
    A(f"L_k1_skip7s_{tag}:")
    stamp()

K1_ST = os.environ.get("K1_ST", "")

def gen_k1():
    A(".p2align 8")
    A(".globl k1_kernel")
    A(".type k1_kernel,@function")
    A("k1_kernel:")
    A("  s_cmp_ge_u32 s2, 256")
    A("  s_cbranch_scc1 L_k1_end")
    stamp()
    rstamp(92)
    if os.environ.get("K1ALL"):
        A("  s_memrealtime s[92:93]"); A("  s_waitcnt lgkmcnt(0)")
    A("  s_load_dwordx4 s[4:7], s[0:1], 8")
    A("  s_load_dwordx2 s[44:45], s[0:1], 32")
    A("  s_load_dwordx2 s[46:47], s[0:1], 48")
    A("  s_load_dwordx2 s[48:49], s[0:1], 104")
    A("  s_and_b32 s3, s2, 7")
    A("  s_lshl_b32 s3, s3, 5")
    A("  s_lshr_b32 s36, s2, 3")
    A("  s_add_u32 s3, s3, s36")
    A("  s_add_u32 s36, s3, 256")
    A("  v_lshlrev_b32 v1, 4, v0")
    A("  v_lshlrev_b32 v2, 3, v0")
    A("  v_mov_b32 v3, 1")
    A("  v_lshlrev_b32 v16, 2, v0")
    A("  v_and_b32 v17, 15, v0")
    A("  v_lshlrev_b32 v17, 2, v17")
    A("  v_lshlrev_b32 v18, 11, v0")
    A("  v_add_u32 v19, 49152, v1")
    A("  v_lshrrev_b32 v4, 6, v0")
    A("  s_nop 0")
    A("  v_readfirstlane_b32 s35, v4")
    A("  s_mov_b32 s28, 3435974")
    A("  s_mov_b32 s29, -1250")
    A("  s_mov_b32 s30, 53248")
    A("  s_mov_b32 s32, 0x80000000")
    A(f"  s_mov_b32 s33, {c_hi_u:#x}")
    A(f"  s_mov_b32 s34, {c_lo_u:#x}")
    A("  s_mov_b32 s37, 0x7f000000")
    A("  s_mov_b32 s38, 0xffff0000")
    A("  s_mov_b32 s39, 0xfff")
    A("  v_mov_b32 v9, 0")
    A(f"  ds_write_b32 v16, v9 offset:{K1_HIST}")
    A("  s_waitcnt lgkmcnt(0)")
    srd(12, 4, T*4)
    srd(8, 6, T*4)
    srd(16, 44, T*2)
    srd(20, 48, NT*TILE_BYTES)
    srd(24, 48, NBIN*DESC_ROW, DESC_OFF)
    A("  s_load_dword s31, s[46:47], 0")
    k1_loads(20, 40, 60, 3)
    if os.environ.get("DYNB"):
        A("  s_load_dwordx2 s[50:51], s[0:1], 96")
        A(f"  v_mov_b32 v121, {K1_WT + 64}"); A("  v_mov_b32 v122, 0"); A("  ds_write_b32 v121, v122")
        A("  s_waitcnt lgkmcnt(0)")
        srd(52, 50, 256)
    A("  s_waitcnt lgkmcnt(0)")
    A("  s_lshl_b32 s31, s31, 16")
    A("  s_barrier")
    if os.environ.get("DYNB"):
        def before_b():
            A("  s_cmp_lg_u32 s35, 0"); A("  s_cbranch_scc1 L_k1_nw0")
            A("  s_waitcnt vmcnt(0)") if False else None
            A("L_k1_nw0:")
        def claim_and_load():
            A("  s_cmp_lg_u32 s35, 0"); A("  s_cbranch_scc1 L_k1_rd")
            A(f"  s_waitcnt vmcnt(0)")
            A("  v_add_u32 v120, 257, v120")
            A(f"  v_mov_b32 v121, {K1_WT + 64}")
            A("  s_mov_b64 exec, 1"); A("  ds_write_b32 v121, v120"); A("  s_mov_b64 exec, -1")
            A("L_k1_rd:")
            A(f"  v_mov_b32 v121, {K1_WT + 64}")
            A("L_k1_spin:")
            A("  ds_read_b32 v122, v121"); A("  s_waitcnt lgkmcnt(0)"); A("  v_readfirstlane_b32 s36, v122"); A("  s_nop 3")
            A("  s_cmp_lg_u32 s36, 0"); A("  s_cbranch_scc1 L_k1_got"); A("  s_sleep 1"); A("  s_branch L_k1_spin")
            A("L_k1_got:")
            A("  s_sub_u32 s36, s36, 1")
            k1_loads(70, 90, 110, 36)
        k1_tile(20, 40, 60, 3, 15, "a", after_first=claim_and_load)
    else:
        k1_tile(20, 40, 60, 3, 15, "a", after_first=lambda: k1_loads(70, 90, 110, 36))
    A("  s_cmp_ge_u32 s36, 500")
    A("  s_cbranch_scc1 L_k1_fin")
    A("  s_waitcnt vmcnt(8)")
    stamp()
    k1_tile(70, 90, 110, 36, None, "b")
    A("  s_waitcnt vmcnt(0)")
    stamp()
    rstamp(94)
    stamp_flush(int(WGSEL))
    A("L_k1_fin:")
    if os.environ.get("K1PF"):
        A("  s_load_dwordx2 s[44:45], s[0:1], 0"); A("  s_waitcnt lgkmcnt(0)")
        srd(52, 44, E*32)
        A("  s_and_b32 s40, s2, 3"); A("  s_mul_i32 s40, s40, 20165")
        A("  s_lshr_b32 s41, s2, 3"); A("  s_mul_i32 s41, s41, 640"); A("  s_add_u32 s40, s40, s41")
        A("  v_add_u32 v4, s40, v0"); A("  v_lshlrev_b32 v4, 7, v4")
        A("  v_cmp_gt_u32 vcc, 640, v0"); A("  s_and_saveexec_b64 s[46:47], vcc"); A("  s_cbranch_execz L_k1_nopf")
        A("  buffer_load_dword v5, v4, s[52:55], 0 offen")
        A("  s_waitcnt vmcnt(0)")
        A("L_k1_nopf:")
        A("  s_mov_b64 exec, s[46:47]")
    if os.environ.get("K1ALL"):
        A("  s_waitcnt vmcnt(0)")
        A("  s_memrealtime s[94:95]"); A("  s_waitcnt lgkmcnt(0)")
        A("  s_cmp_lg_u32 s35, 0"); A("  s_cbranch_scc1 L_k1_end")
        srd(52, 48, 256*16*256, 128 << 20)
        A("  s_lshl_b32 s44, s2, 12"); A("  v_mov_b32 v4, 0"); A("  v_mov_b32 v5, s92"); A("  v_mov_b32 v6, s94")
        A("  buffer_store_dword v5, v4, s[52:55], s44 offen offset:248"); A("  buffer_store_dword v6, v4, s[52:55], s44 offen offset:252")
        A("  s_waitcnt vmcnt(0)")
    A("L_k1_end:")
    A("  s_endpgm")

def desc_block(name, vg, sg=96):
    A(f".amdhsa_kernel {name}")
    A(f"  .amdhsa_next_free_vgpr {vg}")
    A(f"  .amdhsa_next_free_sgpr {sg}")
    A(f"  .amdhsa_accum_offset {vg}")
    A("  .amdhsa_group_segment_fixed_size 0")
    A("  .amdhsa_kernarg_size 112")
    A("  .amdhsa_user_sgpr_count 2")
    A("  .amdhsa_user_sgpr_kernarg_segment_ptr 1")
    A("  .amdhsa_system_sgpr_workgroup_id_x 1")
    A("  .amdhsa_float_denorm_mode_32 3")
    A(".end_amdhsa_kernel")

import os
WGSEL = os.environ.get("WGSEL", "0")
if __name__ == "__main__":
    STAMP = os.environ.get("STAMP", "0") == "1"
    which = sys.argv[1] if len(sys.argv) > 1 else "k1"
    A(f"; @launch kernel=k1_kernel grid=(256,1,1) block=(1024,1,1) lds={K1_LDS}")
    A('.amdgcn_target "amdgcn-amd-amdhsa--gfx950"')
    A(".text")
    gen_k1()
    A('.section .rodata,"a"')
    A(".p2align 6")
    desc_block("k1_kernel", 128)
    open(sys.argv[2] if len(sys.argv) > 2 else "k.s", "w").write("\n".join(out) + "\n")
```

```python
from gen import *
import gen, os, sys

CAP = 128
BS = 528
NGW = 8; GPW = 10; NIW = 8
PB = 80 * BS
WB = PB
SEL = 126976
LIST = SEL + NGW * 1024
CNT = LIST + NGW * 256
FLG = CNT + 1024
K2_LDS = FLG + 128
assert SEL >= 3 * PB and SEL % 1024 == 0 and CNT % 512 == 0
F_OVF, F_RDY, F_DONE, F_FIN, F_NDONE, F_LAST = 0, 4, 12, 32, 64, 68
DUMMY_X = 79 * BS
DUMMY_W = 0x00FFFFE0
OOB = 0x7FFFFF00
LOG2E = 1.4426950408889634
EXP = set(os.environ.get("EXP", "").split(","))
RAW_NT = os.environ.get("RAW_NT", "")
NCH = 8
F0 = False

def vr(b, n=4): return f"v[{b}:{b+n-1}]"
STAMP = os.environ.get("STAMP", "0") == "1"
def stamp_init():
    if not STAMP: return
    A("  s_memtime s[90:91]"); A("  s_memrealtime s[92:93]"); A("  s_waitcnt lgkmcnt(0)"); A("  v_mov_b32 v15, 0")
def stampk(k=None, sreg=None, add=0):
    if not STAMP: return
    A("  s_memtime s[94:95]"); A("  s_waitcnt lgkmcnt(0)"); A("  s_sub_u32 s94, s94, s90")
    if k is not None:
        A(f"  v_writelane_b32 v15, s94, {k}")
    else:
        A(f"  s_add_u32 s95, s{sreg}, {add}"); A("  s_mov_b32 m0, s95"); A("  v_writelane_b32 v15, s94, m0")
def stamp_flush():
    if not STAMP: return
    A("  s_memtime s[94:95]"); A("  s_waitcnt lgkmcnt(0)"); A("  s_sub_u32 s94, s94, s90"); A("  v_writelane_b32 v15, s94, 32")
    A("  s_memrealtime s[94:95]"); A("  s_waitcnt lgkmcnt(0)")
    A("  v_writelane_b32 v15, s92, 34"); A("  v_writelane_b32 v15, s94, 35")
    A("  s_load_dwordx2 s[44:45], s[0:1], 104"); A("  s_waitcnt lgkmcnt(0)")
    srd(48, 44, 256*16*256, 128 << 20)
    A("  s_lshl_b32 s44, s2, 4"); A("  s_add_u32 s44, s44, s35"); A("  s_lshl_b32 s44, s44, 8")
    A("  v_lshlrev_b32 v4, 2, v1"); A("  buffer_store_dword v15, v4, s[48:51], s44 offen"); A("  s_waitcnt vmcnt(0)")

def k2_prologue():
    A(".p2align 8"); A(".globl k2_kernel"); A(".type k2_kernel,@function"); A("k2_kernel:")
    A("  s_cmp_ge_u32 s2, 256"); A("  s_cbranch_scc1 L_k2_end")
    stamp_init()
    A("  s_load_dwordx2 s[4:5], s[0:1], 0")
    A("  s_load_dwordx2 s[6:7], s[0:1], 104")
    A("  s_and_b32 s3, s2, 7"); A("  s_lshl_b32 s3, s3, 5"); A("  s_lshr_b32 s36, s2, 3"); A("  s_add_u32 s3, s3, s36")
    A("  v_lshrrev_b32 v4, 6, v0"); A("  v_and_b32 v1, 63, v0"); A("  v_readfirstlane_b32 s35, v4")
    A("  s_waitcnt lgkmcnt(0)")
    srd(8, 4, E*32)
    srd(12, 6, NT*TILE_BYTES)
    srd(16, 6, NBIN*DESC_ROW, DESC_OFF)
    A("  s_cmp_ge_u32 s35, 8"); A("  s_cbranch_scc1 L_k2_iwave")

def lds_init():
    for r in (8, 9, 10, 11): A(f"  v_mov_b32 v{r}, 0")
    A("  v_lshlrev_b32 v5, 4, v0")
    def region(base, nbytes):
        n16 = nbytes // 16
        k = 0
        cur = None
        while k * 512 < n16:
            addr = base + k * 8192
            seg = addr // 65536
            if seg != cur:
                A(f"  v_add_u32 v6, {seg * 65536}, v5"); cur = seg
            off = addr - seg * 65536
            if (k + 1) * 512 <= n16:
                A(f"  ds_write_b128 v6, v[8:11] offset:{off}")
            else:
                A(f"  v_cmp_gt_u32 vcc, {n16 - k*512}, v0"); A("  s_and_saveexec_b64 s[40:41], vcc")
                A(f"  ds_write_b128 v6, v[8:11] offset:{off}"); A("  s_mov_b64 exec, s[40:41]")
            k += 1
    region(SEL, K2_LDS - SEL)
    region(0, PB)
    for r in (8, 9, 10, 11): A(f"  v_mov_b32 v{r}, {DUMMY_W:#x}")
    region(WB, 2 * PB)
    A("  s_waitcnt lgkmcnt(0)")

def poll(vaddr, off, sneed, label, vtmp, stmp, sleep=2):
    A(f"{label}:")
    A(f"  ds_read_b32 v{vtmp}, v{vaddr} offset:{off}")
    A(f"  s_waitcnt lgkmcnt(0)")
    A(f"  v_readfirstlane_b32 s{stmp}, v{vtmp}")
    A(f"  s_nop 3")
    A(f"  s_cmp_ge_u32 s{stmp}, s{sneed}")
    A(f"  s_cbranch_scc1 {label}_ok")
    A(f"  s_sleep {sleep}")
    A(f"  s_branch {label}")
    A(f"{label}_ok:")

def RR(st, i, k): return 16 + 32*st + 4*i + k
NSET = 4
def CA(st, r): return 80 + 2*st + r
def RK(st, r): return 88 + 2*st + r
def MK(st, r): return 64 + 4*st + 2*r
vCntB, vOne, vPerm, vL15, vTileJ, vOOB, vDescOff, vD0, vD1, vD2, vT0, vT1, vKB, vFlag = 96, 97, 98, 99, 100, 101, 102, 103, 104, 105, 106, 107, 108, 109

def ins_A(w, st):
    for r in range(2):
        A(f"  v_cmp_gt_i32 s[{MK(st,r)}:{MK(st,r)+1}], 0, v{w[r]}")
        A(f"  v_lshrrev_b32 v{CA(st,r)}, 22, v{w[r]}")
        A(f"  v_and_or_b32 v{CA(st,r)}, v{CA(st,r)}, s52, v{vCntB}")
    for r in range(2):
        A(f"  s_mov_b64 exec, s[{MK(st,r)}:{MK(st,r)+1}]")
        A(f"  ds_add_rtn_u32 v{RK(st,r)}, v{CA(st,r)}, v{vOne}")
    A(f"  s_mov_b64 exec, -1")

def ins_B(w, cw, st):
    for r in range(2):
        ca = CA(st,r); rk = RK(st,r)
        A(f"  s_mov_b64 exec, s[{MK(st,r)}:{MK(st,r)+1}]")
        A(f"  v_cmp_lt_u32 vcc, {CAP-1}, v{rk}")
        A(f"  v_min_u32 v{rk}, {CAP-1}, v{rk}")
        A(f"  v_mad_u32_u24 v{ca}, v{ca}, v{vKB}, s53")
        A(f"  s_or_b64 s[54:55], s[54:55], vcc")
        A(f"  v_lshl_add_u32 v{ca}, v{rk}, 2, v{ca}")
        A(f"  ds_write_b32 v{ca}, v{w[r]} offset:{WB}")
        A(f"  v_lshrrev_b32 v{rk}, 1, v{ca}")
        A(f"  ds_write_b16{'_d16_hi' if r else ''} v{rk}, v{cw}")
    A(f"  s_mov_b64 exec, -1")

def ins_set(st):
    ops = []
    def emitA(i):
        ins_A((RR(st,i,0), RR(st,i,1)), i % NSET); ops.extend([('a', i)]*2)
    def emitB(i):
        last = max(k for k, o in enumerate(ops) if o == ('a', i))
        A(f"  s_waitcnt lgkmcnt({min(len(ops) - 1 - last, 15)})")
        ins_B((RR(st,i,0), RR(st,i,1)), RR(st,i,2), i % NSET); ops.extend([('w', i)]*4)
    for i in range(NSET): emitA(i)
    for i in range(8):
        emitB(i)
        if i + NSET < 8: emitA(i + NSET)

def iw_T0(dst, c_sreg, add=0):
    A(f"  s_add_u32 s{dst}, s{c_sreg}, {add}")
    A(f"  s_and_b32 s{dst}, s{dst}, 1")
    A(f"  s_mul_i32 s{dst}, s{dst}, 250")
    A(f"  s_add_u32 s{dst}, s{dst}, s60")

def iw_issue_raw(st, desc, c_sreg, add):
    iw_T0(57, c_sreg, add)
    A(f"  s_mul_i32 s57, s57, {TILE_BYTES}")
    for i in range(8):
        A(f"  ds_bpermute_b32 v{RR(st,i,0)}, v{vPerm}, v{desc} offset:{16*i}")
    for i in range(8):
        d = RR(st,i,0)
        A(f"  s_waitcnt lgkmcnt({7-i})")
        A(f"  v_and_b32 v{vT0}, 0xffff, v{d}")
        A(f"  v_lshrrev_b32 v{vT1}, 16, v{d}")
        A(f"  v_add_u32 v{vT0}, v{vT0}, v{vL15}")
        A(f"  v_cmp_lt_u32 vcc, v{vT0}, v{vT1}")
        A(f"  v_mad_u32_u24 v{vT0}, v{vT0}, 12, v{vTileJ}")
        A(f"  s_nop 0")
        A(f"  v_cndmask_b32 v{vT0}, v{vOOB}, v{vT0}, vcc")
        if "sc1" in RAW_NT: A(f"  buffer_load_dwordx4 v[{d}:{d+3}], v{vT0}, s[12:15], s57 offen{RAW_NT}")
        else: A(f"  buffer_load_dwordx3 v[{d}:{d+2}], v{vT0}, s[12:15], s57 offen{RAW_NT}")
        if i < 7: A(f"  s_add_u32 s57, s57, {4*TILE_BYTES}")

def iw_desc_load(dst, c_sreg, add):
    A(f"  s_add_u32 s59, s{c_sreg}, {add}")
    A(f"  s_lshr_b32 s58, s59, 1")
    if os.environ.get("ROT", "0") == "1":
        A(f"  s_add_u32 s58, s58, s2"); A(f"  s_and_b32 s58, s58, 3")
    if os.environ.get("ROT", "0") == "2":
        A(f"  s_lshr_b32 s57, s2, 1"); A(f"  s_add_u32 s58, s58, s57"); A(f"  s_and_b32 s58, s58, 3")
    A(f"  s_lshl_b32 s58, s58, 8")
    A(f"  s_add_u32 s58, s58, s3")
    A(f"  s_lshl_b32 s58, s58, 9")
    A(f"  s_and_b32 s59, s59, 1")
    A(f"  s_mul_i32 s59, s59, 250")
    A(f"  s_add_u32 s59, s59, s60")
    A(f"  s_add_u32 s58, s58, s59")
    A(f"  s_lshl_b32 s58, s58, 2")
    A(f"  buffer_load_dword v{dst}, v{vDescOff}, s[16:19], s58 offen{RAW_NT}")

def iw_chunk(st):
    t = f"L_iw{st}"
    A(f"  s_lshr_b32 s87, s61, 1")
    A(f"  s_mul_i32 s87, s87, {NGW}")
    stampk(sreg=61, add=0)
    poll(vFlag, F_DONE + 4*st, 87, f"{t}_poll", vT0, 88, int(os.environ.get("ISLEEP", "4")))
    A(f"  v_mov_b32 v{vCntB}, {CNT + 512*st}")
    A(f"  s_mov_b32 s53, {(PB*st - (CNT + 512*st)*(BS//4)) & 0xffffffff:#x}")
    A(f"  s_waitcnt vmcnt(9)")
    stampk(sreg=61, add=8)
    ins_set(st)
    A(f"  v_and_b32 v{vT0}, 0xffff, v{vD0}")
    A(f"  v_lshrrev_b32 v{vT1}, 16, v{vD0}")
    A(f"  v_add_u32 v{vT0}, 16, v{vT0}")
    A(f"  v_cmp_lt_u32 s[80:81], v{vT0}, v{vT1}")
    iw_T0(86, 61)
    A(f"{t}_long:")
    A(f"  s_cmp_eq_u64 s[80:81], 0")
    A(f"  s_cbranch_scc1 {t}_long_done")
    A(f"  s_ff1_i32_b64 s82, s[80:81]")
    A(f"  s_bitset0_b64 s[80:81], s82")
    A(f"  v_readlane_b32 s83, v{vD0}, s82")
    A(f"  s_add_u32 s84, s86, s82")
    A(f"  s_mul_i32 s84, s84, {TILE_BYTES}")
    A(f"  s_lshr_b32 s85, s83, 16")
    A(f"  s_and_b32 s83, s83, 0xffff")
    A(f"  s_add_u32 s83, s83, 16")
    A(f"{t}_long_win:")
    A(f"  v_add_u32 v{vT0}, s83, v1")
    A(f"  v_cmp_gt_u32 vcc, s85, v{vT0}")
    A(f"  v_mul_u32_u24 v{vT0}, 12, v{vT0}")
    A(f"  s_nop 0")
    A(f"  v_cndmask_b32 v{vT0}, v{vOOB}, v{vT0}, vcc")
    L = RR(st,0,0)
    if "sc1" in RAW_NT: A(f"  buffer_load_dwordx4 v[{L}:{L+3}], v{vT0}, s[12:15], s84 offen{RAW_NT}")
    else: A(f"  buffer_load_dwordx3 v[{L}:{L+2}], v{vT0}, s[12:15], s84 offen")
    A(f"  s_waitcnt vmcnt(0)")
    ins_A((L, L+1), 0)
    A(f"  s_waitcnt lgkmcnt(0)")
    ins_B((L, L+1), L+2, 0)
    A(f"  s_add_u32 s83, s83, 64")
    A(f"  s_cmp_lt_u32 s83, s85")
    A(f"  s_cbranch_scc1 {t}_long_win")
    A(f"  s_branch {t}_long")
    A(f"{t}_long_done:")
    A(f"  s_cmp_eq_u64 s[54:55], 0")
    A(f"  s_cbranch_scc1 {t}_noovf")
    A(f"  ds_write_b32 v{vFlag}, v{vOne} offset:{F_OVF}")
    A(f"{t}_noovf:")
    A(f"  s_waitcnt lgkmcnt(0)")
    A(f"  s_mov_b64 exec, 1")
    A(f"  ds_add_u32 v{vFlag}, v{vOne} offset:{F_RDY + 4*st}")
    A(f"  s_mov_b64 exec, -1")
    stampk(sreg=61, add=16)
    if os.environ.get('IPRIO0'): A(f"  s_setprio {os.environ.get('IPRIO', '3')}")
    PFN = int(os.environ.get("PFN", "0"))
    if PFN and st == int(os.environ.get("PFST", "0")):
        A(f"  s_cmp_eq_u32 s61, {0 if st == 0 else 7}"); A(f"  s_cbranch_scc1 {t}_nopf")
        A(f"  s_add_u32 s82, s61, {0 if st == 0 else 1}"); A(f"  s_lshr_b32 s82, s82, 1")
        if os.environ.get("ROT", "0") == "1":
            A(f"  s_add_u32 s82, s82, s2"); A(f"  s_and_b32 s82, s82, 3")
        A(f"  s_mul_i32 s82, s82, 20165")
        A(f"  s_lshr_b32 s83, s2, 3"); A(f"  s_lshl_b32 s83, s83, 9"); A(f"  s_lshl_b32 s84, s60, 1"); A(f"  s_add_u32 s83, s83, s84")
        A(f"  v_add_u32 v{vT0}, s83, v1")
        A(f"  v_cmp_gt_u32 vcc, {PFN}, v{vT0}") if PFN <= 64 else (A(f"  s_mov_b32 s84, {PFN}"), A(f"  v_cmp_gt_u32 vcc, s84, v{vT0}"))
        A(f"  v_add_u32 v{vT0}, s82, v{vT0}"); A(f"  v_lshlrev_b32 v{vT0}, 7, v{vT0}")
        A(f"  v_cndmask_b32 v{vT0}, v{vOOB}, v{vT0}, vcc")
        A(f"  buffer_load_dword v110, v{vT0}, s[8:11], 0 offen")
        A(f"{t}_nopf:")
    A(f"  s_add_u32 s62, s61, 2")
    A(f"  s_cmp_ge_u32 s62, {NCH}")
    A(f"  s_cbranch_scc1 {t}_noraw")
    A(f"  s_waitcnt vmcnt(0)")
    iw_issue_raw(st, vD2, 61, 2)
    A(f"  s_add_u32 s62, s61, 3")
    A(f"  s_cmp_ge_u32 s62, {NCH}")
    A(f"  v_mov_b32 v{vD0}, v{vD1}")
    A(f"  v_mov_b32 v{vD1}, v{vD2}")
    A(f"  s_cbranch_scc1 {t}_nodesc")
    iw_desc_load(vD2, 61, 3)
    A(f"  s_branch {t}_nodesc")
    A(f"{t}_noraw:")
    A(f"  s_waitcnt vmcnt(0)")
    A(f"  v_mov_b32 v{vD0}, v{vD1}")
    A(f"{t}_nodesc:")
    A(f"  s_add_u32 s61, s61, 1")

def slow_parity():
    c0 = (0 - CNT*(BS//4)) & 0xffffffff
    c1 = (PB - (CNT + 512)*(BS//4)) & 0xffffffff
    A("  s_and_b32 s88, s61, 1"); A("  s_cmp_eq_u32 s88, 0")
    A(f"  s_cselect_b32 s53, {c0:#x}, s53") if False else None
    A(f"  s_mov_b32 s53, {c0:#x}"); A(f"  s_mov_b32 s89, {c1:#x}"); A("  s_cselect_b32 s53, s53, s89")
    A(f"  s_lshl_b32 s89, s88, 9"); A(f"  s_add_u32 s89, s89, {CNT}"); A(f"  v_mov_b32 v{vCntB}, s89")
    A(f"  s_lshl_b32 s89, s88, 2"); A(f"  v_add_u32 v{vT1}, s89, v{vFlag}")

def gen_iw_slow():
    A(f"  s_mov_b32 s87, {NIW * (NCH // 2)}")
    poll(vFlag, F_RDY + 4, 87, "L_sl_w", vT0, 88, 2)
    A(f"  ds_read_b32 v{vT0}, v{vFlag} offset:{F_OVF}"); A("  s_waitcnt lgkmcnt(0)")
    A(f"  v_readfirstlane_b32 s88, v{vT0}"); A("  s_nop 3"); A("  s_cmp_eq_u32 s88, 0"); A("  s_cbranch_scc1 L_iw_epi")
    A("  s_setprio 0")
    A("  s_mov_b32 s62, 0")
    A("L_sl_q:")
    iw_desc_load(vD0, 62, 0)
    iw_T0(86, 62)
    A("  s_mov_b32 s82, 0")
    A("  s_waitcnt vmcnt(0)")
    A("L_sl_tile:")
    A(f"  v_readlane_b32 s83, v{vD0}, s82")
    A("  s_add_u32 s84, s86, s82"); A(f"  s_mul_i32 s84, s84, {TILE_BYTES}")
    A("  s_lshr_b32 s85, s83, 16"); A("  s_and_b32 s83, s83, 0xffff")
    A("L_sl_win:")
    A("  s_cmp_ge_u32 s83, s85"); A("  s_cbranch_scc1 L_sl_next")
    slow_parity()
    A("  s_lshr_b32 s87, s61, 1"); A(f"  s_mul_i32 s87, s87, {NGW}")
    poll(vT1, F_DONE, 87, "L_sl_d", vT0, 88, 2)
    A(f"  v_add_u32 v{vT0}, s83, v1"); A(f"  v_cmp_gt_u32 vcc, s85, v{vT0}"); A("  v_cmp_gt_u32 s[80:81], 8, v1")
    A(f"  v_mul_u32_u24 v{vT0}, 12, v{vT0}"); A("  s_and_b64 vcc, vcc, s[80:81]"); A("  s_nop 1")
    A(f"  v_cndmask_b32 v{vT0}, v{vOOB}, v{vT0}, vcc")
    L = RR(0,0,0)
    A(f"  buffer_load_dwordx3 v[{L}:{L+2}], v{vT0}, s[12:15], s84 offen")
    A("  s_waitcnt vmcnt(0)")
    ins_A((L, L+1), 0); A("  s_waitcnt lgkmcnt(0)"); ins_B((L, L+1), L+2, 0)
    A("  s_waitcnt lgkmcnt(0)")
    A("  s_mov_b64 exec, 1"); A(f"  ds_add_u32 v{vT1}, v{vOne} offset:{F_RDY}"); A("  s_mov_b64 exec, -1")
    A("  s_add_u32 s61, s61, 1"); A("  s_add_u32 s83, s83, 8"); A("  s_branch L_sl_win")
    A("L_sl_next:")
    A("  s_add_u32 s82, s82, 1"); A("  s_cmp_lt_u32 s82, 32"); A("  s_cbranch_scc1 L_sl_tile")
    A("  s_add_u32 s62, s62, 1"); A(f"  s_cmp_lt_u32 s62, {NCH}"); A("  s_cbranch_scc1 L_sl_q")
    A("  s_mov_b32 s63, 1")
    A("L_sl_idle:")
    A(f"  ds_read_b32 v{vT0}, v{vFlag} offset:{F_LAST}"); A("  s_waitcnt lgkmcnt(0)")
    A(f"  v_readfirstlane_b32 s88, v{vT0}"); A("  s_nop 3")
    A("  s_cmp_eq_u32 s88, 0"); A("  s_cbranch_scc1 L_sl_cont")
    A("  s_cmp_ge_u32 s61, s88"); A("  s_cbranch_scc1 L_iw_epi")
    A("L_sl_cont:")
    slow_parity()
    A("  s_lshr_b32 s87, s61, 1"); A(f"  s_mul_i32 s87, s87, {NGW}")
    A(f"  ds_read_b32 v{vT0}, v{vT1} offset:{F_DONE}"); A("  s_waitcnt lgkmcnt(0)")
    A(f"  v_readfirstlane_b32 s88, v{vT0}"); A("  s_nop 3")
    A("  s_cmp_ge_u32 s88, s87"); A("  s_cbranch_scc1 L_sl_go")
    A("  s_sleep 2"); A("  s_branch L_sl_idle")
    A("L_sl_go:")
    A("  s_cmp_eq_u32 s63, 0"); A("  s_cbranch_scc1 L_sl_sig")
    A("  s_mov_b32 s63, 0")
    A("  s_mov_b64 exec, 1"); A(f"  ds_add_rtn_u32 v{vT0}, v{vFlag}, v{vOne} offset:{F_NDONE}"); A("  s_waitcnt lgkmcnt(0)")
    A(f"  v_readfirstlane_b32 s88, v{vT0}"); A("  s_mov_b64 exec, -1"); A("  s_nop 2")
    A(f"  s_cmp_lg_u32 s88, {NIW-1}"); A("  s_cbranch_scc1 L_sl_sig")
    A("  s_add_u32 s88, s61, 1"); A(f"  v_mov_b32 v{vT0}, s88"); A(f"  ds_write_b32 v{vFlag}, v{vT0} offset:{F_LAST}"); A("  s_waitcnt lgkmcnt(0)")
    A("L_sl_sig:")
    A("  s_mov_b64 exec, 1"); A(f"  ds_add_u32 v{vT1}, v{vOne} offset:{F_RDY}"); A("  s_mov_b64 exec, -1")
    A("  s_add_u32 s61, s61, 1"); A("  s_branch L_sl_idle")

def gen_iwave():
    A("L_k2_iwave:")
    A(f"  s_setprio {os.environ.get('IPRIO0', os.environ.get('IPRIO', '3'))}")
    A("  s_sub_u32 s60, s35, 8")
    A("  s_lshl_b32 s60, s60, 5")
    A("  s_mov_b32 s52, 0x1fc")
    A("  s_mov_b64 s[54:55], 0")
    A(f"  v_mov_b32 v{vOOB}, {OOB:#x}")
    A(f"  v_add_u32 v{vDescOff}, s60, v1")
    A(f"  v_cmp_gt_u32 vcc, 250, v{vDescOff}")
    A(f"  v_cmp_gt_u32 s[40:41], 32, v1")
    A(f"  v_lshlrev_b32 v{vDescOff}, 2, v1")
    A(f"  s_and_b64 vcc, vcc, s[40:41]")
    A(f"  s_nop 1")
    A(f"  v_cndmask_b32 v{vDescOff}, v{vOOB}, v{vDescOff}, vcc")
    A("  s_mov_b32 s61, 0")
    if F0:
        A(f"  v_mov_b32 v{vFlag}, {FLG}")
        A("  s_barrier")
        A("  s_cmp_lg_u32 s35, 8"); A("  s_cbranch_scc1 L_i_lpoll")
        A("L_i_nw:")
        A(f"  ds_read_b64 v[16:17], v{vFlag} offset:24"); A("  s_waitcnt lgkmcnt(0)")
        A("  v_readfirstlane_b32 s28, v16"); A("  v_readfirstlane_b32 s29, v17"); A("  s_nop 3")
        A("  s_cmp_lg_u32 s28, 0"); A("  s_cbranch_scc1 L_i_nok")
        A("  s_cmp_eq_u32 s97, 0"); A("  s_cbranch_scc1 L_i_nok"); A("  s_sub_u32 s97, s97, 1")
        A("  s_sleep 2"); A("  s_branch L_i_nw")
        A("L_i_nok:")
        A("  s_and_b32 s62, s2, 7"); A("  s_lshl_b32 s62, s62, 13")
        A(f"  v_lshlrev_b32 v{vT1}, 3, v1")
        A("L_i_rpoll:")
        for k in range(8):
            if k == 7: A("  s_bfm_b64 exec, 52, 0")
            A(f"  buffer_load_dwordx2 v[{16+2*k}:{17+2*k}], v{vT1}, s[24:27], s62 offen offset:{512*k} sc1")
        A("  s_mov_b64 exec, -1"); A("  s_waitcnt vmcnt(0)"); A("  s_mov_b64 s[64:65], -1")
        for k in range(8):
            if k == 7: A("  s_bfm_b64 exec, 52, 0")
            A(f"  v_cmp_ne_u64 vcc, s[28:29], v[{16+2*k}:{17+2*k}]")
            A(f"  s_cmp_eq_u64 vcc, 0"); A(f"  s_cselect_b64 s[64:65], s[64:65], 0")
        A("  s_mov_b64 exec, -1")
        A("  s_cmp_lg_u64 s[64:65], 0"); A("  s_cbranch_scc1 L_i_rok")
        A("  s_cmp_eq_u32 s97, 0"); A("  s_cbranch_scc1 L_i_rok"); A("  s_sub_u32 s97, s97, 1")
        A(f"  s_sleep {os.environ.get('RSLEEP', '8')}"); A("  s_branch L_i_rpoll")
        A("L_i_rok:")
        A(f"  v_mov_b32 v{vT0}, 1"); A(f"  ds_write_b32 v{vFlag}, v{vT0} offset:20")
        A("  s_branch L_i_rdone")
        A("L_i_lpoll:")
        A("  s_mov_b32 s62, 1")
        poll(vFlag, 20, 62, "L_i_lp", vT0, 63, 2)
        A("L_i_rdone:")
        stampk(k=42)
    iw_desc_load(vD0, 61, 0)
    iw_desc_load(vD1, 61, 1)
    iw_desc_load(vD2, 61, 2)
    A(f"  v_mov_b32 v{vOne}, 1")
    A(f"  v_mov_b32 v{vKB}, {BS//4}")
    A(f"  v_lshrrev_b32 v{vPerm}, 4, v1")
    A(f"  v_mov_b32 v{vTileJ}, {TILE_BYTES}")
    A(f"  v_mul_lo_u32 v{vTileJ}, v{vTileJ}, v{vPerm}")
    A(f"  v_lshlrev_b32 v{vPerm}, 2, v{vPerm}")
    A(f"  v_and_b32 v{vL15}, 15, v1")
    A(f"  v_mov_b32 v{vFlag}, {FLG}")
    A("  s_waitcnt vmcnt(2)")
    iw_issue_raw(0, vD0, 61, 0)
    A("  s_waitcnt vmcnt(9)")
    out[-1] = "  s_waitcnt vmcnt(9)"
    iw_issue_raw(1, vD1, 61, 1)
    if not F0: A("  s_barrier")
    A("  s_waitcnt vmcnt(8)")
    A("L_iw_loop:")
    iw_chunk(0)
    iw_chunk(1)
    A(f"  s_cmp_lt_u32 s61, {NCH}")
    A("  s_cbranch_scc1 L_iw_loop")
    gen_iw_slow()
    A("L_iw_epi:")
    gen_epilogue()
    stamp_flush()
    A("  s_endpgm")

D = int(os.environ.get("GD", "2")); U = D + 1; LEAD = D + 2; MINT = D + 3
assert U % 3 == 0
B1A, B1B, DA, DB, A2 = 18, 22, 26, 30, 34
XR = lambda u: 38 + 4*(u % U)
WR = lambda u: 38 + 4*U + (u % U)
CR = lambda u: 38 + 5*U + (u % U)
B2 = lambda p: 38 + 6*U + 4*(p % 3)
assert 38 + 6*U + 12 <= 88
ACC = lambda j: 88 + 4*j
vLane4, vHalf16, vSelW, vSelR, vZero, vList, vG, vA, vA2, vS, vFl, vOne1, vBin, vLA = 2, 3, 4, 5, 6, 7, 8, 9, 10, 11, 12, 13, 14, 16
vF0 = DA
T0, T1, T2, T3 = DA, DA+1, DA+2, DA+3
sM1 = 44; sT = 45; sD = 46; sLeft = 47
sNB = 48
sTot = 58; sCI = 59; sCC = 60; sEnd = 61
sNBn = 64
sLo = 80

def g_body(j, u):
    A(f"L_g_{j}_{u}:")
    if os.environ.get("GPRIO", "") == "iter": A(f"  s_setprio {u % 3}")
    if os.environ.get("GPRIO", "") == "iter1": A(f"  s_setprio {1 + u % 3}")
    if os.environ.get("GPRIO", "") == "iter2": A(f"  s_setprio {(u + j) % 4}")
    if os.environ.get("GPRIO", "") == "iter3": A(f"  s_setprio {[1, 3, 2][u % 3]}" )
    A(f"  s_waitcnt lgkmcnt(6)")
    A(f"  v_and_or_b32 v{vG}, v{WR(u+D)}, s{sM1}, v{vHalf16}")
    if "noload" not in EXP:
        A(f"  buffer_load_dwordx4 {vr(XR(u+D))}, v{vG}, s[8:11], 0 offen")
        A(f"  s_waitcnt vmcnt({D})")
    A(f"  v_mfma_f32_16x16x32_bf16 {vr(DA)}, {vr(XR(u))}, {vr(B1A)}, 0")
    A(f"  v_mfma_f32_16x16x32_bf16 {vr(DB)}, {vr(XR(u))}, {vr(B1B)}, 0")
    A(f"  v_readlane_b32 s{sD}, v{vList}, s{sT}")
    A(f"  s_add_u32 s{sT}, s{sT}, 1")
    A(f"  v_and_or_b32 v{vA2}, v{WR(u+2)}, 30, v{vSelW}")
    A(f"  v_add_u32 v{vA}, s{sD}, v{vLane4}")
    A(f"  ds_write_b16 v{vS}, v{vZero}")
    A(f"  ds_write_b16 v{vA2}, v{CR(u+2)}")
    A(f"  v_mov_b32 v{vS}, v{vA2}")
    A(f"  ds_read_b64_tr_b16 {vr(B2(u+2),2)}, v{vSelR}")
    A(f"  ds_read_b64_tr_b16 {vr(B2(u+2)+2,2)}, v{vSelR} offset:512")
    A(f"  ds_read_b32 v{WR(u+D+2)}, v{vA} offset:{WB}")
    A(f"  v_lshrrev_b32 v{vA}, 1, v{vA}")
    A(f"  ds_read_u16 v{CR(u+D+2)}, v{vA}")
    A(f"  v_cvt_pk_bf16_f32 v{A2}, v{DA}, v{DA+1}")
    A(f"  v_cvt_pk_bf16_f32 v{A2+1}, v{DA+2}, v{DA+3}")
    A(f"  v_cvt_pk_bf16_f32 v{A2+2}, v{DB}, v{DB+1}")
    A(f"  v_cvt_pk_bf16_f32 v{A2+3}, v{DB+2}, v{DB+3}")
    A(f"  s_cmp_eq_u32 s{sT}, s{sTot}")
    A(f"  s_cbranch_scc1 L_gc_{j}_{u}")
    A(f"L_gb_{j}_{u}:")
    A(f"  s_sub_u32 s{sLeft}, s{sLeft}, 1")
    A(f"  v_mfma_f32_16x16x32_bf16 {vr(ACC(j))}, {vr(A2)}, {vr(B2(u))}, {vr(ACC(j))}")
    A(f"  s_cbranch_scc1 L_gn_{j+1}_{(u+1)%U}")
    if u == U-1:
        A(f"  s_branch L_g_{j}_0")

def g_callstub(j, u):
    A(f"L_gc_{j}_{u}:")
    A(f"  s_call_b64 s[30:31], L_setup")
    A(f"  s_branch L_gb_{j}_{u}")

def g_next(j, u):
    A(f"L_gn_{j}_{u}:")
    if j == GPW:
        A(f"  s_add_u32 s{sCC}, s{sCC}, 1")
        stampk(sreg=sCC, add=0)
        A(f"  s_cmp_eq_u32 s{sCC}, s{sEnd}")
        A(f"  s_cbranch_scc1 L_g_end")
        A(f"  s_cmp_lg_u32 s{sCC}, {NCH}")
        A(f"  s_cbranch_scc1 L_gz_{u}")
        A(f"  s_nop 7")
        for jj in range(GPW):
            for k in range(4): A(f"  v_mov_b32 v{ACC(jj)+k}, 0")
        A(f"L_gz_{u}:")
        for k in range(0, GPW, 2):
            A(f"  s_mov_b64 s[{sNB+k}:{sNB+k+1}], s[{sNBn+k}:{sNBn+k+1}]")
        A(f"  s_branch L_gn_0_{u}")
        return
    A(f"  s_sub_u32 s{sLeft}, s{sNB+j}, 1")
    A(f"  s_cbranch_scc1 L_gn_{j+1}_{u}")
    A(f"  s_branch L_g_{j}_{u}")

def fill_own_bins(sreg_p):
    for k in range(4):
        A(f"  v_mov_b32 v{vF0+k}, {DUMMY_W:#x}")
        A(f"  v_mov_b32 v{vF0+4+k}, 0")
    A(f"  s_mul_i32 s76, s{sreg_p}, {PB}")
    A(f"  s_mul_i32 s77, s35, {GPW*BS}")
    A(f"  s_add_u32 s76, s76, s77")
    A(f"  v_add_u32 v{vA}, s76, v{vLA}")
    for k in range(5):
        A(f"  ds_write_b128 v{vA}, {vr(vF0)} offset:{WB + 1024*k}")
    A(f"  s_mov_b64 exec, 0x3ff")
    A(f"  ds_write_b128 v{vA}, {vr(vF0)} offset:{WB + 5120}")
    A(f"  s_mov_b64 exec, -1")
    A(f"  s_lshr_b32 s76, s76, 1")
    A(f"  v_add_u32 v{vA}, s76, v{vLA}")
    A(f"  ds_write_b128 v{vA}, {vr(vF0+4)}")
    A(f"  ds_write_b128 v{vA}, {vr(vF0+4)} offset:1024")
    A(f"  s_mov_b64 exec, 0x{(1<<37)-1:x}") if False else None
    A(f"  s_bfm_b64 exec, 37, 0")
    A(f"  ds_write_b128 v{vA}, {vr(vF0+4)} offset:2048")
    A(f"  s_mov_b64 exec, -1")

def g_setup():
    A("L_setup:")
    A(f"  s_waitcnt lgkmcnt(0)")
    stampk(sreg=sCI, add=17)
    A(f"  s_cmp_lt_i32 s{sCI}, 0")
    A(f"  s_cbranch_scc1 L_su_nosig")
    A(f"  s_and_b32 s75, s{sCI}, 1")
    fill_own_bins(75)
    A(f"  s_lshl_b32 s75, s75, 2")
    A(f"  v_add_u32 v{vA}, s75, v{vFl}")
    A(f"  s_waitcnt lgkmcnt(0)")
    A(f"  s_mov_b64 exec, 1")
    A(f"  ds_add_u32 v{vA}, v{vOne1} offset:{F_DONE}")
    A(f"  s_mov_b64 exec, -1")
    A("L_su_nosig:")
    A(f"  s_add_u32 s{sCI}, s{sCI}, 1")
    A(f"  v_lshrrev_b32 v{vG}, 2, v{vLA}")
    A(f"  s_lshl_b32 s76, s35, 8")
    A(f"  s_add_u32 s76, s76, {LIST}")
    A(f"  v_add_u32 v{vG}, s76, v{vG}")
    A(f"  s_cmp_lg_u32 s{sCI}, {NCH}")
    A(f"  s_cbranch_scc1 L_su_noovf")
    A(f"  ds_read_b32 v{vA2}, v{vFl} offset:{F_OVF}"); A(f"  s_waitcnt lgkmcnt(0)")
    A(f"  v_readfirstlane_b32 s77, v{vA2}"); A(f"  s_nop 3"); A(f"  s_cmp_eq_u32 s77, 0"); A(f"  s_cbranch_scc1 L_su_noovf")
    A(f"  s_mov_b32 s{sEnd}, 0x7fffffff")
    A("L_su_noovf:")
    A(f"  s_cmp_lt_u32 s{sCI}, s{sEnd}")
    A(f"  s_cbranch_scc1 L_su_real")
    A(f"  v_mov_b32 v{vList}, {DUMMY_X}")
    A(f"  s_mov_b32 s{sTot}, 0x7fffffff")
    A(f"  s_mov_b32 s{sT}, 0")
    A(f"  s_setpc_b64 s[30:31]")
    A("L_su_real:")
    A(f"  v_mov_b32 v{vList}, {DUMMY_X}")
    A(f"  ds_write_b32 v{vG}, v{vList}")
    A(f"  s_and_b32 s75, s{sCI}, 1")
    A(f"  s_lshl_b32 s77, s75, 2")
    A(f"  v_add_u32 v{vA}, s77, v{vFl}")
    A(f"  s_lshr_b32 s77, s{sCI}, 1")
    A(f"  s_add_u32 s77, s77, 1")
    A(f"  s_mul_i32 s77, s77, {NIW}")
    poll(vA, F_RDY, 77, "L_su_poll", vA2, 78, 2)
    A(f"  s_cmp_lt_u32 s{sCI}, {NCH}"); A(f"  s_cbranch_scc1 L_su_nolast")
    A(f"  ds_read_b32 v{vA2}, v{vFl} offset:{F_LAST}"); A(f"  s_waitcnt lgkmcnt(0)")
    A(f"  v_readfirstlane_b32 s77, v{vA2}"); A(f"  s_add_u32 s78, s{sCI}, 1"); A(f"  s_nop 2")
    A(f"  s_cmp_eq_u32 s77, s78"); A(f"  s_cselect_b32 s{sEnd}, s78, s{sEnd}")
    A("L_su_nolast:")
    A(f"  s_lshl_b32 s77, s75, 9")
    A(f"  s_mul_i32 s78, s35, {GPW*4}")
    A(f"  s_add_u32 s77, s77, s78")
    A(f"  s_add_u32 s77, s77, {CNT}")
    A(f"  v_lshrrev_b32 v{vA}, 2, v{vLA}")
    A(f"  v_add_u32 v{vA}, s77, v{vA}")
    A(f"  s_mov_b64 exec, 0x3ff")
    A(f"  v_mov_b32 v{T0}, 0")
    A(f"  s_mov_b64 exec, -1")
    A(f"  v_mov_b32 v{T0}, 0")
    A(f"  s_mov_b64 exec, 0x3ff")
    A(f"  ds_read_b32 v{T0}, v{vA}")
    A(f"  s_waitcnt lgkmcnt(0)")
    A(f"  ds_write_b32 v{vA}, v{vZero}")
    A(f"  s_mov_b64 exec, -1")
    A(f"  v_min_u32 v{T0}, {CAP}, v{T0}")
    A(f"  v_add_u32 v{T0}, 31, v{T0}")
    A(f"  v_lshrrev_b32 v{T0}, 5, v{T0}")
    A(f"  v_mov_b32 v{T1}, v{T0}")
    A(f"  s_mul_i32 s77, s75, {PB}")
    A(f"  s_mul_i32 s78, s35, {GPW*BS}")
    for sh in (1, 2, 4, 8):
        A(f"  s_nop 0") if sh > 1 else A(f"  s_add_u32 s77, s77, s78")
        A(f"  v_add_u32_dpp v{T1}, v{T1}, v{T1} row_shr:{sh} row_mask:0xf bank_mask:0xf bound_ctrl:0")
        A(f"  s_nop 0")
    A(f"  v_add_u32 v{T2}, s77, v{vBin}")
    A(f"  v_sub_u32 v{T3}, v{T1}, v{T0}")
    A(f"  v_lshl_add_u32 v{T3}, v{T3}, 2, s76")
    for i in range(4):
        A(f"  v_cmp_lt_u32 vcc, {i}, v{T0}")
        A(f"  s_and_saveexec_b64 s[78:79], vcc")
        A(f"  ds_write_b32 v{T3}, v{T2} offset:{4*i}")
        A(f"  s_mov_b64 exec, s[78:79]")
        if i < 3: A(f"  v_add_u32 v{T2}, 128, v{T2}")
    A(f"  ds_read_b32 v{vList}, v{vG}")
    for j in range(GPW):
        A(f"  v_readlane_b32 s{sNBn+j}, v{T0}, {j}")
    A(f"  v_readlane_b32 s77, v{T1}, {GPW-1}")
    A(f"  s_nop 2")
    A(f"  s_max_u32 s{sTot}, s77, {MINT}")
    A(f"  s_sub_u32 s77, s{sTot}, s77")
    A(f"  s_add_u32 s{sNBn+GPW-1}, s{sNBn+GPW-1}, s77")
    A(f"  s_mov_b32 s{sT}, 0")
    A(f"  s_waitcnt lgkmcnt(0)")
    A(f"  s_setpc_b64 s[30:31]")

def gen_gwave():
    A(f"  s_load_dwordx2 s[38:39], s[0:1], 72")
    PFL = int(os.environ.get("PFL", "0"))
    if PFL:
        A("  s_lshr_b32 s40, s2, 3"); A("  s_lshl_b32 s40, s40, 9"); A("  s_lshl_b32 s41, s35, 6"); A("  s_add_u32 s40, s40, s41")
        A("  v_add_u32 v16, s40, v1"); A("  v_lshlrev_b32 v16, 7, v16")
        for k in range((PFL + 16383) // 16384):
            A(f"  s_mov_b32 s42, {k*16384*128}")
            A(f"  buffer_load_dword v{76+k}, v16, s[8:11], s42 offen")
    lds_init()
    A(f"  v_and_b32 v{vLane4}, 31, v1")
    A(f"  v_lshlrev_b32 v{vLane4}, 2, v{vLane4}")
    A(f"  v_lshrrev_b32 v{vHalf16}, 5, v1")
    A(f"  v_lshlrev_b32 v{vHalf16}, 4, v{vHalf16}")
    A(f"  v_lshlrev_b32 v{vLA}, 4, v1")
    A(f"  v_mul_u32_u24 v{vBin}, {BS}, v1")
    A(f"  s_mov_b32 s{sM1}, {DUMMY_W:#x}")
    A(f"  s_lshl_b32 s40, s35, 10")
    A(f"  s_add_u32 s40, s40, {SEL}")
    A(f"  v_and_b32 v20, 31, v1")
    A(f"  v_lshl_add_u32 v{vSelW}, v20, 5, s40")
    A(f"  v_lshl_add_u32 v{vSelR}, v1, 3, s40")
    srd(28, 38, 512)
    A(f"  v_lshrrev_b32 v19, 4, v1")
    A(f"  v_and_b32 v18, 15, v1")
    A(f"  v_lshrrev_b32 v20, 1, v19")
    A(f"  v_lshlrev_b32 v20, 8, v20")
    A(f"  v_lshl_add_u32 v20, v18, 1, v20")
    for jj in range(8):
        A(f"  buffer_load_ushort v{DA+jj}, v20, s[28:31], 0 offen offset:{32*jj}")
    A(f"  v_mov_b32 v{vZero}, 0")
    A(f"  v_mov_b32 v{vFl}, {FLG}")
    A(f"  v_mov_b32 v{vOne1}, 1")
    A(f"  v_mov_b32 v{vS}, v{vSelW}")
    A(f"  v_and_b32 v21, 1, v19")
    A(f"  v_cmp_eq_u32 s[40:41], 0, v21")
    for u in range(U):
        for k in range(4):
            A(f"  v_mov_b32 v{XR(u)+k}, 0")
        A(f"  v_mov_b32 v{WR(u)}, {DUMMY_W:#x}")
        A(f"  v_mov_b32 v{CR(u)}, 0")
    for p in range(3):
        for k in range(4):
            A(f"  v_mov_b32 v{B2(p)+k}, 0")
    for j in range(GPW):
        for k in range(4):
            A(f"  v_mov_b32 v{ACC(j)+k}, 0")
    A(f"  s_waitcnt vmcnt(0)")
    for k in range(4):
        A(f"  v_lshl_or_b32 v{DA+k}, v{DA+1+2*k}, 16, v{DA+2*k}")
    for k in range(4):
        A(f"  v_cndmask_b32 v{B1A+k}, v{vZero}, v{DA+k}, s[40:41]")
        A(f"  v_cndmask_b32 v{B1B+k}, v{DA+k}, v{vZero}, s[40:41]")
    A("  s_barrier")
    if F0:
        A("  s_cmp_lg_u32 s35, 0"); A("  s_cbranch_scc1 L_g_nonon")
        A("  v_mov_b32 v76, s60"); A("  v_mov_b32 v77, s61")
        A(f"  ds_write_b64 v{vFl}, v[76:77] offset:24")
        A("L_g_nonon:")
    LATE = os.environ.get("GLATE", "0") == "1"
    if os.environ.get("GPRIO", "") == "st1" and not LATE: A("  s_setprio 1")
    A(f"  s_mov_b32 s{sCI}, -1")
    A(f"  s_mov_b32 s{sCC}, 0")
    A(f"  s_mov_b32 s{sEnd}, {NCH}")
    A(f"  s_call_b64 s[30:31], L_setup")
    if os.environ.get("GPRIO", "") == "st1" and LATE: A("  s_setprio 1")
    for k in range(0, GPW, 2):
        A(f"  s_mov_b64 s[{sNB+k}:{sNB+k+1}], s[{sNBn+k}:{sNBn+k+1}]")
    A(f"  s_add_u32 s{sLeft}, s{sNB}, {LEAD-1}")
    for j in range(GPW):
        for u in range(U):
            g_body(j, u)
    for j in range(GPW):
        for u in range(U):
            g_callstub(j, u)
    for j in range(0, GPW+1):
        for u in range(U):
            g_next(j, u)
    g_setup()
    A("L_g_end:")
    A("  s_waitcnt vmcnt(0) lgkmcnt(0)")
    A("  s_nop 7")
    A(f"  s_mul_i32 s76, s35, {GPW*BS}")
    A(f"  s_add_u32 s76, s76, {WB}")
    A(f"  v_add_u32 v{vA}, s76, v{vLA}")
    for j in range(GPW):
        A(f"  ds_write_b128 v{vA}, {vr(ACC(j))} offset:{(j//5)*PB + (j%5)*1024}")
    A(f"  s_lshl_b32 s76, s35, 2")
    A(f"  v_add_u32 v{vA}, s76, v{vFl}")
    A(f"  s_waitcnt lgkmcnt(0)")
    A(f"  s_mov_b64 exec, 1")
    A(f"  ds_write_b32 v{vA}, v{vOne1} offset:{F_FIN}")
    A(f"  s_mov_b64 exec, -1")
    A(f"  s_waitcnt lgkmcnt(0)")
    stamp_flush()

def gen_epilogue():
    A("  s_load_dwordx2 s[36:37], s[0:1], 24")
    A("  s_load_dwordx2 s[38:39], s[0:1], 40")
    A("  s_load_dwordx4 s[40:43], s[0:1], 56")
    A("  s_load_dwordx4 s[44:47], s[0:1], 80")
    A("  s_waitcnt lgkmcnt(0)")
    srd(12, 36, E*2); srd(16, 46, E*32); srd(20, 38, 16); srd(24, 40, 256); srd(28, 42, 256); srd(48, 44, 512)
    n, q = 2, 3
    A(f"  v_and_b32 v{n}, 15, v1"); A(f"  v_lshrrev_b32 v{q}, 4, v1")
    A(f"  v_lshlrev_b32 v4, 6, v{q}"); A(f"  v_lshl_add_u32 v4, v{n}, 1, v4")
    A("  buffer_load_ushort v96, v4, s[28:31], 0 offen"); A("  buffer_load_ushort v97, v4, s[28:31], 0 offen offset:32")
    A("  buffer_load_ushort v98, v4, s[24:27], 0 offen"); A("  buffer_load_ushort v99, v4, s[24:27], 0 offen offset:32")
    A(f"  v_lshlrev_b32 v4, 7, v{q}"); A(f"  v_lshl_add_u32 v4, v{n}, 1, v4")
    for k in range(4): A(f"  buffer_load_ushort v{100+k}, v4, s[48:51], 0 offen offset:{32*k}")
    A(f"  v_lshlrev_b32 v4, 2, v{q}")
    A("  buffer_load_ushort v104, v4, s[20:23], 0 offen"); A("  buffer_load_ushort v105, v4, s[20:23], 0 offen offset:2")
    A("  s_sub_u32 s52, s35, 8"); A(f"  s_mul_i32 s52, s52, {GPW*16}")
    A(f"  v_add_u32 v5, s52, v{n}")
    A("  s_mul_i32 s53, s3, 1250")
    for j in range(GPW):
        A(f"  v_add_u32 v6, s53, v5")
        if j: A(f"  v_add_u32 v6, {16*j}, v6")
        A(f"  v_lshlrev_b32 v7, 1, v6")
        A(f"  buffer_load_ushort v{16+8*j}, v7, s[12:15], 0 offen")
        A(f"  v_lshlrev_b32 v7, 5, v6")
        A(f"  v_lshl_add_u32 v7, v{q}, 3, v7")
        A(f"  buffer_load_dwordx2 v[{22+8*j}:{23+8*j}], v7, s[8:11], 0 offen")
    A(f"  s_waitcnt vmcnt({2*GPW})")
    A("  v_lshl_or_b32 v108, v97, 16, v96"); A("  v_lshl_or_b32 v112, v99, 16, v98")
    A("  v_lshl_or_b32 v116, v101, 16, v100"); A("  v_lshl_or_b32 v117, v103, 16, v102")
    A("  v_mov_b32 v118, v116"); A("  v_mov_b32 v119, v117")
    for r in (109, 110, 111, 113, 114, 115, 121, 122, 123): A(f"  v_mov_b32 v{r}, 0")
    A("  v_lshlrev_b32 v104, 16, v104"); A("  v_lshlrev_b32 v105, 16, v105")
    A("  s_mov_b32 s54, 0xffff0000"); A(f"  s_mov_b32 s55, {f2u(-10.0):#x}"); A(f"  s_mov_b32 s56, {f2u(LOG2E):#x}")
    A("  s_waitcnt vmcnt(0)")
    for j in range(GPW):
        b = 16 + 8*j
        A(f"  v_lshlrev_b32 v8, 16, v{b}")
        A(f"  v_sub_f32 v9, v8, v104"); A(f"  v_sub_f32 v10, v8, v105")
        for step, op in enumerate(["sq", "m10", "exp"]):
            A(f"  v_cvt_pk_bf16_f32 v11, v9, v10")
            A(f"  v_lshlrev_b32 v9, 16, v11"); A(f"  v_and_b32 v10, s54, v11")
            if op == "sq":
                A(f"  v_mul_f32 v9, v9, v9"); A(f"  v_mul_f32 v10, v10, v10")
            elif op == "m10":
                A(f"  v_mul_f32 v9, s55, v9"); A(f"  v_mul_f32 v10, s55, v10")
            else:
                A(f"  v_mul_f32 v9, s56, v9"); A(f"  v_mul_f32 v10, s56, v10")
                A(f"  v_exp_f32 v9, v9"); A(f"  v_exp_f32 v10, v10"); A(f"  s_nop 0")
        A(f"  v_cvt_pk_bf16_f32 v120, v9, v10")
        A(f"  s_nop 1")
        A(f"  v_mfma_f32_16x16x32_bf16 v[{b}:{b+3}], v[108:111], v[120:123], 0")
        A(f"  v_mfma_f32_16x16x32_bf16 v[96:99], v[112:115], v[120:123], 0")
        A(f"  s_nop 7")
        A(f"  v_cvt_pk_bf16_f32 v{b+4}, v96, v97")
        A(f"  v_cvt_pk_bf16_f32 v{b+5}, v98, v99")
    stampk(k=40)
    A("  s_sub_u32 s57, s35, 8"); A("  s_lshl_b32 s58, s57, 2")
    A(f"  v_mov_b32 v4, {FLG}"); A("  v_add_u32 v4, s58, v4")
    A("  s_mov_b32 s59, 1")
    poll(4, F_FIN, 59, "L_ep_poll", 6, 58, int(os.environ.get("ESLEEP", "2")))
    stampk(k=41)
    A(f"  s_mul_i32 s57, s57, {GPW*BS}"); A(f"  s_add_u32 s57, s57, {WB}")
    A("  v_lshlrev_b32 v4, 4, v1"); A("  v_add_u32 v4, s57, v4")
    A(f"  v_mov_b32 v124, {OOB:#x}"); A("  s_movk_i32 s57, 1250")
    for j in range(GPW):
        b = 16 + 8*j
        acc = 96 + 4*(j % 2)
        if j == 0:
            A(f"  ds_read_b128 v[96:99], v4 offset:0")
        if j + 1 < GPW:
            jn = j + 1
            A(f"  ds_read_b128 v[{96+4*(jn%2)}:{99+4*(jn%2)}], v4 offset:{(jn//5)*PB + (jn%5)*1024}")
            A(f"  s_waitcnt lgkmcnt(1)")
        else:
            A(f"  s_waitcnt lgkmcnt(0)")
        for k in range(4): A(f"  v_mul_f32 v{8+k}, v{acc+k}, v{b+k}")
        A(f"  v_cvt_pk_bf16_f32 v104, v8, v9"); A(f"  v_cvt_pk_bf16_f32 v105, v10, v11")
        A(f"  v_lshlrev_b32 v12, 16, v104"); A(f"  v_and_b32 v13, s54, v104")
        A(f"  v_lshlrev_b32 v14, 16, v105"); A(f"  v_and_b32 v125, s54, v105")
        A(f"  v_sub_f32 v8, v8, v12"); A(f"  v_sub_f32 v9, v9, v13"); A(f"  v_sub_f32 v10, v10, v14"); A(f"  v_sub_f32 v11, v11, v125")
        A(f"  v_cvt_pk_bf16_f32 v106, v8, v9"); A(f"  v_cvt_pk_bf16_f32 v107, v10, v11")
        A(f"  v_add_u32 v6, {16*j}, v5")
        A(f"  v_cmp_gt_u32 vcc, s57, v6")
        A(f"  v_mfma_f32_16x16x32_bf16 v[108:111], v[116:119], v[104:107], 0")
        A(f"  v_add_u32 v6, s53, v6"); A(f"  v_lshlrev_b32 v6, 5, v6"); A(f"  v_lshl_add_u32 v6, v{q}, 3, v6")
        A(f"  v_cndmask_b32 v6, v124, v6, vcc")
        A(f"  v_lshlrev_b32 v8, 16, v{b+4}"); A(f"  v_and_b32 v9, s54, v{b+4}"); A(f"  v_lshlrev_b32 v10, 16, v{b+5}"); A(f"  v_and_b32 v11, s54, v{b+5}")
        A(f"  v_lshlrev_b32 v12, 16, v{b+6}"); A(f"  v_and_b32 v13, s54, v{b+6}"); A(f"  v_lshlrev_b32 v14, 16, v{b+7}"); A(f"  v_and_b32 v125, s54, v{b+7}")
        A(f"  v_fma_f32 v12, v108, v8, v12"); A(f"  v_fma_f32 v13, v109, v9, v13"); A(f"  v_fma_f32 v14, v110, v10, v14"); A(f"  v_fma_f32 v125, v111, v11, v125")
        A(f"  v_cvt_pk_bf16_f32 v{b+4}, v12, v13"); A(f"  v_cvt_pk_bf16_f32 v{b+5}, v14, v125")
        A(f"  buffer_store_dwordx2 v[{b+4}:{b+5}], v6, s[16:19], 0 offen")

def gen_k2():
    k2_prologue()
    gen_gwave()
    A("L_k2_end:")
    A("  s_endpgm")
    gen_iwave()

if __name__ == "__main__":
    A(f"; @launch kernel=k1_kernel grid=(256,1,1) block=(1024,1,1) lds={gen.K1_LDS}")
    A(f"; @launch kernel=k2_kernel grid=(256,1,1) block=(1024,1,1) lds={K2_LDS}")
    A('.amdgcn_target "amdgcn-amd-amdhsa--gfx950"')
    A(".text")
    gen.STAMP = False
    gen_k1()
    gen_k2()
    A('.section .rodata,"a"')
    A(".p2align 6")
    desc_block("k1_kernel", 128)
    A(".p2align 6")
    desc_block("k2_kernel", 128, 100)
    lines = [l for l in out if l is not None]
    open(sys.argv[1], "w").write("\n".join(lines) + "\n")
```

```python
from gen import *
import gen, os, sys

CAP = 128
BS = 528
NGW = 8; GPW = 10; NIW = 8
PB = 80 * BS
WB = PB
SEL = 126976
LIST = SEL + NGW * 1024
CNT = LIST + NGW * 256
FLG = CNT + 1024
K2_LDS = FLG + 128
assert SEL >= 3 * PB and SEL % 1024 == 0 and CNT % 512 == 0
F_OVF, F_RDY, F_DONE, F_FIN, F_NDONE, F_LAST = 0, 4, 12, 32, 64, 68
DUMMY_X = 79 * BS
DUMMY_W = 0x00FFFFE0
OOB = 0x7FFFFF00
LOG2E = 1.4426950408889634
EXP = set(os.environ.get("EXP", "").split(","))
RAW_NT = os.environ.get("RAW_NT", "")
NCH = 8
F0 = False

def vr(b, n=4): return f"v[{b}:{b+n-1}]"
STAMP = os.environ.get("STAMP", "0") == "1"
def stamp_init():
    if not STAMP: return
    A("  s_memtime s[90:91]"); A("  s_memrealtime s[92:93]"); A("  s_waitcnt lgkmcnt(0)"); A("  v_mov_b32 v15, 0")
def stampk(k=None, sreg=None, add=0):
    if not STAMP: return
    A("  s_memtime s[94:95]"); A("  s_waitcnt lgkmcnt(0)"); A("  s_sub_u32 s94, s94, s90")
    if k is not None:
        A(f"  v_writelane_b32 v15, s94, {k}")
    else:
        A(f"  s_add_u32 s95, s{sreg}, {add}"); A("  s_mov_b32 m0, s95"); A("  v_writelane_b32 v15, s94, m0")
def stamp_flush():
    if not STAMP: return
    A("  s_memtime s[94:95]"); A("  s_waitcnt lgkmcnt(0)"); A("  s_sub_u32 s94, s94, s90"); A("  v_writelane_b32 v15, s94, 32")
    A("  s_memrealtime s[94:95]"); A("  s_waitcnt lgkmcnt(0)")
    A("  v_writelane_b32 v15, s92, 34"); A("  v_writelane_b32 v15, s94, 35")
    A("  s_load_dwordx2 s[44:45], s[0:1], 104"); A("  s_waitcnt lgkmcnt(0)")
    srd(48, 44, 256*16*256, 128 << 20)
    A("  s_lshl_b32 s44, s2, 4"); A("  s_add_u32 s44, s44, s35"); A("  s_lshl_b32 s44, s44, 8")
    A("  v_lshlrev_b32 v4, 2, v1"); A("  buffer_store_dword v15, v4, s[48:51], s44 offen"); A("  s_waitcnt vmcnt(0)")

def k2_prologue():
    A(".p2align 8"); A(".globl k2_kernel"); A(".type k2_kernel,@function"); A("k2_kernel:")
    A("  s_cmp_ge_u32 s2, 256"); A("  s_cbranch_scc1 L_k2_end")
    stamp_init()
    A("  s_load_dwordx2 s[4:5], s[0:1], 0")
    A("  s_load_dwordx2 s[6:7], s[0:1], 104")
    A("  s_and_b32 s3, s2, 7"); A("  s_lshl_b32 s3, s3, 5"); A("  s_lshr_b32 s36, s2, 3"); A("  s_add_u32 s3, s3, s36")
    A("  v_lshrrev_b32 v4, 6, v0"); A("  v_and_b32 v1, 63, v0"); A("  v_readfirstlane_b32 s35, v4")
    A("  s_waitcnt lgkmcnt(0)")
    srd(8, 4, E*32)
    srd(12, 6, NT*TILE_BYTES)
    srd(16, 6, NBIN*DESC_ROW, DESC_OFF)
    A("  s_cmp_ge_u32 s35, 8"); A("  s_cbranch_scc1 L_k2_iwave")

def lds_init():
    for r in (8, 9, 10, 11): A(f"  v_mov_b32 v{r}, 0")
    A("  v_lshlrev_b32 v5, 4, v0")
    def region(base, nbytes):
        n16 = nbytes // 16
        k = 0
        cur = None
        while k * 512 < n16:
            addr = base + k * 8192
            seg = addr // 65536
            if seg != cur:
                A(f"  v_add_u32 v6, {seg * 65536}, v5"); cur = seg
            off = addr - seg * 65536
            if (k + 1) * 512 <= n16:
                A(f"  ds_write_b128 v6, v[8:11] offset:{off}")
            else:
                A(f"  v_cmp_gt_u32 vcc, {n16 - k*512}, v0"); A("  s_and_saveexec_b64 s[40:41], vcc")
                A(f"  ds_write_b128 v6, v[8:11] offset:{off}"); A("  s_mov_b64 exec, s[40:41]")
            k += 1
    region(SEL, K2_LDS - SEL)
    region(0, PB)
    for r in (8, 9, 10, 11): A(f"  v_mov_b32 v{r}, {DUMMY_W:#x}")
    region(WB, 2 * PB)
    A("  s_waitcnt lgkmcnt(0)")

def poll(vaddr, off, sneed, label, vtmp, stmp, sleep=2):
    A(f"{label}:")
    A(f"  ds_read_b32 v{vtmp}, v{vaddr} offset:{off}")
    A(f"  s_waitcnt lgkmcnt(0)")
    A(f"  v_readfirstlane_b32 s{stmp}, v{vtmp}")
    A(f"  s_nop 3")
    A(f"  s_cmp_ge_u32 s{stmp}, s{sneed}")
    A(f"  s_cbranch_scc1 {label}_ok")
    A(f"  s_sleep {sleep}")
    A(f"  s_branch {label}")
    A(f"{label}_ok:")

def RR(st, i, k): return 16 + 32*st + 4*i + k
NSET = 4
def CA(st, r): return 80 + 2*st + r
def RK(st, r): return 88 + 2*st + r
def MK(st, r): return 64 + 4*st + 2*r
vCntB, vOne, vPerm, vL15, vTileJ, vOOB, vDescOff, vD0, vD1, vD2, vT0, vT1, vKB, vFlag = 96, 97, 98, 99, 100, 101, 102, 103, 104, 105, 106, 107, 108, 109

def ins_A(w, st):
    for r in range(2):
        A(f"  v_cmp_gt_i32 s[{MK(st,r)}:{MK(st,r)+1}], 0, v{w[r]}")
        A(f"  v_lshrrev_b32 v{CA(st,r)}, 22, v{w[r]}")
        A(f"  v_and_or_b32 v{CA(st,r)}, v{CA(st,r)}, s52, v{vCntB}")
    for r in range(2):
        A(f"  s_mov_b64 exec, s[{MK(st,r)}:{MK(st,r)+1}]")
        A(f"  ds_add_rtn_u32 v{RK(st,r)}, v{CA(st,r)}, v{vOne}")
    A(f"  s_mov_b64 exec, -1")

def ins_B(w, cw, st):
    for r in range(2):
        ca = CA(st,r); rk = RK(st,r)
        A(f"  s_mov_b64 exec, s[{MK(st,r)}:{MK(st,r)+1}]")
        A(f"  v_cmp_lt_u32 vcc, {CAP-1}, v{rk}")
        A(f"  v_min_u32 v{rk}, {CAP-1}, v{rk}")
        A(f"  v_mad_u32_u24 v{ca}, v{ca}, v{vKB}, s53")
        A(f"  s_or_b64 s[54:55], s[54:55], vcc")
        A(f"  v_lshl_add_u32 v{ca}, v{rk}, 2, v{ca}")
        A(f"  ds_write_b32 v{ca}, v{w[r]} offset:{WB}")
        A(f"  v_lshrrev_b32 v{rk}, 1, v{ca}")
        A(f"  ds_write_b16{'_d16_hi' if r else ''} v{rk}, v{cw}")
    A(f"  s_mov_b64 exec, -1")

def ins_set(st):
    ops = []
    def emitA(i):
        ins_A((RR(st,i,0), RR(st,i,1)), i % NSET); ops.extend([('a', i)]*2)
    def emitB(i):
        last = max(k for k, o in enumerate(ops) if o == ('a', i))
        A(f"  s_waitcnt lgkmcnt({min(len(ops) - 1 - last, 15)})")
        ins_B((RR(st,i,0), RR(st,i,1)), RR(st,i,2), i % NSET); ops.extend([('w', i)]*4)
    for i in range(NSET): emitA(i)
    for i in range(8):
        emitB(i)
        if i + NSET < 8: emitA(i + NSET)

def iw_T0(dst, c_sreg, add=0):
    A(f"  s_add_u32 s{dst}, s{c_sreg}, {add}")
    if os.environ.get("CROT"): A(f"  s_add_u32 s{dst}, s{dst}, s51")
    A(f"  s_and_b32 s{dst}, s{dst}, 1")
    A(f"  s_mul_i32 s{dst}, s{dst}, 250")
    A(f"  s_add_u32 s{dst}, s{dst}, s60")

def iw_issue_raw(st, desc, c_sreg, add):
    iw_T0(57, c_sreg, add)
    A(f"  s_mul_i32 s57, s57, {TILE_BYTES}")
    for i in range(8):
        A(f"  ds_bpermute_b32 v{RR(st,i,0)}, v{vPerm}, v{desc} offset:{16*i}")
    for i in range(8):
        d = RR(st,i,0)
        A(f"  s_waitcnt lgkmcnt({7-i})")
        A(f"  v_and_b32 v{vT0}, 0xffff, v{d}")
        A(f"  v_lshrrev_b32 v{vT1}, 16, v{d}")
        A(f"  v_add_u32 v{vT0}, v{vT0}, v{vL15}")
        A(f"  v_cmp_lt_u32 vcc, v{vT0}, v{vT1}")
        A(f"  v_mad_u32_u24 v{vT0}, v{vT0}, 12, v{vTileJ}")
        A(f"  s_nop 0")
        A(f"  v_cndmask_b32 v{vT0}, v{vOOB}, v{vT0}, vcc")
        if "sc1" in RAW_NT: A(f"  buffer_load_dwordx4 v[{d}:{d+3}], v{vT0}, s[12:15], s57 offen{RAW_NT}")
        else: A(f"  buffer_load_dwordx3 v[{d}:{d+2}], v{vT0}, s[12:15], s57 offen{RAW_NT}")
        if i < 7: A(f"  s_add_u32 s57, s57, {4*TILE_BYTES}")

def iw_desc_load(dst, c_sreg, add):
    A(f"  s_add_u32 s59, s{c_sreg}, {add}")
    if os.environ.get("CROT"): A(f"  s_add_u32 s59, s59, s51")
    A(f"  s_lshr_b32 s58, s59, 1")
    if os.environ.get("CROT"): A(f"  s_and_b32 s58, s58, 3")
    if os.environ.get("ROT", "0") == "1":
        A(f"  s_add_u32 s58, s58, s2"); A(f"  s_and_b32 s58, s58, 3")
    if os.environ.get("ROT", "0") == "2":
        A(f"  s_lshr_b32 s57, s2, 1"); A(f"  s_add_u32 s58, s58, s57"); A(f"  s_and_b32 s58, s58, 3")
    A(f"  s_lshl_b32 s58, s58, 8")
    A(f"  s_add_u32 s58, s58, s3")
    A(f"  s_lshl_b32 s58, s58, 9")
    A(f"  s_and_b32 s59, s59, 1")
    A(f"  s_mul_i32 s59, s59, 250")
    A(f"  s_add_u32 s59, s59, s60")
    A(f"  s_add_u32 s58, s58, s59")
    A(f"  s_lshl_b32 s58, s58, 2")
    A(f"  buffer_load_dword v{dst}, v{vDescOff}, s[16:19], s58 offen{RAW_NT}")

def iw_chunk(st):
    t = f"L_iw{st}"
    A(f"  s_lshr_b32 s87, s61, 1")
    A(f"  s_mul_i32 s87, s87, {NGW}")
    stampk(sreg=61, add=0)
    poll(vFlag, F_DONE + 4*st, 87, f"{t}_poll", vT0, 88, int(os.environ.get("ISLEEP", "4")))
    A(f"  v_mov_b32 v{vCntB}, {CNT + 512*st}")
    A(f"  s_mov_b32 s53, {(PB*st - (CNT + 512*st)*(BS//4)) & 0xffffffff:#x}")
    A(f"  s_waitcnt vmcnt(9)")
    stampk(sreg=61, add=8)
    ins_set(st)
    A(f"  v_and_b32 v{vT0}, 0xffff, v{vD0}")
    A(f"  v_lshrrev_b32 v{vT1}, 16, v{vD0}")
    A(f"  v_add_u32 v{vT0}, 16, v{vT0}")
    A(f"  v_cmp_lt_u32 s[80:81], v{vT0}, v{vT1}")
    iw_T0(86, 61)
    A(f"{t}_long:")
    A(f"  s_cmp_eq_u64 s[80:81], 0")
    A(f"  s_cbranch_scc1 {t}_long_done")
    A(f"  s_ff1_i32_b64 s82, s[80:81]")
    A(f"  s_bitset0_b64 s[80:81], s82")
    A(f"  v_readlane_b32 s83, v{vD0}, s82")
    A(f"  s_add_u32 s84, s86, s82")
    A(f"  s_mul_i32 s84, s84, {TILE_BYTES}")
    A(f"  s_lshr_b32 s85, s83, 16")
    A(f"  s_and_b32 s83, s83, 0xffff")
    A(f"  s_add_u32 s83, s83, 16")
    A(f"{t}_long_win:")
    A(f"  v_add_u32 v{vT0}, s83, v1")
    A(f"  v_cmp_gt_u32 vcc, s85, v{vT0}")
    A(f"  v_mul_u32_u24 v{vT0}, 12, v{vT0}")
    A(f"  s_nop 0")
    A(f"  v_cndmask_b32 v{vT0}, v{vOOB}, v{vT0}, vcc")
    L = RR(st,0,0)
    if "sc1" in RAW_NT: A(f"  buffer_load_dwordx4 v[{L}:{L+3}], v{vT0}, s[12:15], s84 offen{RAW_NT}")
    else: A(f"  buffer_load_dwordx3 v[{L}:{L+2}], v{vT0}, s[12:15], s84 offen")
    A(f"  s_waitcnt vmcnt(0)")
    ins_A((L, L+1), 0)
    A(f"  s_waitcnt lgkmcnt(0)")
    ins_B((L, L+1), L+2, 0)
    A(f"  s_add_u32 s83, s83, 64")
    A(f"  s_cmp_lt_u32 s83, s85")
    A(f"  s_cbranch_scc1 {t}_long_win")
    A(f"  s_branch {t}_long")
    A(f"{t}_long_done:")
    A(f"  s_cmp_eq_u64 s[54:55], 0")
    A(f"  s_cbranch_scc1 {t}_noovf")
    A(f"  ds_write_b32 v{vFlag}, v{vOne} offset:{F_OVF}")
    A(f"{t}_noovf:")
    A(f"  s_waitcnt lgkmcnt(0)")
    A(f"  s_mov_b64 exec, 1")
    A(f"  ds_add_u32 v{vFlag}, v{vOne} offset:{F_RDY + 4*st}")
    A(f"  s_mov_b64 exec, -1")
    stampk(sreg=61, add=16)
    if os.environ.get('IPRIO0'): A(f"  s_setprio {os.environ.get('IPRIO', '3')}")
    PFN = int(os.environ.get("PFN", "0"))
    if PFN and st == int(os.environ.get("PFST", "0")):
        A(f"  s_cmp_eq_u32 s61, {0 if st == 0 else 7}"); A(f"  s_cbranch_scc1 {t}_nopf")
        A(f"  s_add_u32 s82, s61, {0 if st == 0 else 1}"); A(f"  s_lshr_b32 s82, s82, 1")
        if os.environ.get("ROT", "0") == "1":
            A(f"  s_add_u32 s82, s82, s2"); A(f"  s_and_b32 s82, s82, 3")
        A(f"  s_mul_i32 s82, s82, 20165")
        A(f"  s_lshr_b32 s83, s2, 3"); A(f"  s_lshl_b32 s83, s83, 9"); A(f"  s_lshl_b32 s84, s60, 1"); A(f"  s_add_u32 s83, s83, s84")
        A(f"  v_add_u32 v{vT0}, s83, v1")
        A(f"  v_cmp_gt_u32 vcc, {PFN}, v{vT0}") if PFN <= 64 else (A(f"  s_mov_b32 s84, {PFN}"), A(f"  v_cmp_gt_u32 vcc, s84, v{vT0}"))
        A(f"  v_add_u32 v{vT0}, s82, v{vT0}"); A(f"  v_lshlrev_b32 v{vT0}, 7, v{vT0}")
        A(f"  v_cndmask_b32 v{vT0}, v{vOOB}, v{vT0}, vcc")
        A(f"  buffer_load_dword v110, v{vT0}, s[8:11], 0 offen")
        A(f"{t}_nopf:")
    A(f"  s_add_u32 s62, s61, 2")
    A(f"  s_cmp_ge_u32 s62, {NCH}")
    A(f"  s_cbranch_scc1 {t}_noraw")
    A(f"  s_waitcnt vmcnt(0)")
    iw_issue_raw(st, vD2, 61, 2)
    A(f"  s_add_u32 s62, s61, 3")
    A(f"  s_cmp_ge_u32 s62, {NCH}")
    A(f"  v_mov_b32 v{vD0}, v{vD1}")
    A(f"  v_mov_b32 v{vD1}, v{vD2}")
    A(f"  s_cbranch_scc1 {t}_nodesc")
    iw_desc_load(vD2, 61, 3)
    A(f"  s_branch {t}_nodesc")
    A(f"{t}_noraw:")
    A(f"  s_waitcnt vmcnt(0)")
    A(f"  v_mov_b32 v{vD0}, v{vD1}")
    A(f"{t}_nodesc:")
    A(f"  s_add_u32 s61, s61, 1")

def slow_parity():
    c0 = (0 - CNT*(BS//4)) & 0xffffffff
    c1 = (PB - (CNT + 512)*(BS//4)) & 0xffffffff
    A("  s_and_b32 s88, s61, 1"); A("  s_cmp_eq_u32 s88, 0")
    A(f"  s_cselect_b32 s53, {c0:#x}, s53") if False else None
    A(f"  s_mov_b32 s53, {c0:#x}"); A(f"  s_mov_b32 s89, {c1:#x}"); A("  s_cselect_b32 s53, s53, s89")
    A(f"  s_lshl_b32 s89, s88, 9"); A(f"  s_add_u32 s89, s89, {CNT}"); A(f"  v_mov_b32 v{vCntB}, s89")
    A(f"  s_lshl_b32 s89, s88, 2"); A(f"  v_add_u32 v{vT1}, s89, v{vFlag}")

def gen_iw_slow():
    A(f"  s_mov_b32 s87, {NIW * (NCH // 2)}")
    poll(vFlag, F_RDY + 4, 87, "L_sl_w", vT0, 88, 2)
    A(f"  ds_read_b32 v{vT0}, v{vFlag} offset:{F_OVF}"); A("  s_waitcnt lgkmcnt(0)")
    A(f"  v_readfirstlane_b32 s88, v{vT0}"); A("  s_nop 3"); A("  s_cmp_eq_u32 s88, 0"); A("  s_cbranch_scc1 L_iw_epi")
    A("  s_setprio 0")
    A("  s_mov_b32 s62, 0")
    A("L_sl_q:")
    iw_desc_load(vD0, 62, 0)
    iw_T0(86, 62)
    A("  s_mov_b32 s82, 0")
    A("  s_waitcnt vmcnt(0)")
    A("L_sl_tile:")
    A(f"  v_readlane_b32 s83, v{vD0}, s82")
    A("  s_add_u32 s84, s86, s82"); A(f"  s_mul_i32 s84, s84, {TILE_BYTES}")
    A("  s_lshr_b32 s85, s83, 16"); A("  s_and_b32 s83, s83, 0xffff")
    A("L_sl_win:")
    A("  s_cmp_ge_u32 s83, s85"); A("  s_cbranch_scc1 L_sl_next")
    slow_parity()
    A("  s_lshr_b32 s87, s61, 1"); A(f"  s_mul_i32 s87, s87, {NGW}")
    poll(vT1, F_DONE, 87, "L_sl_d", vT0, 88, 2)
    A(f"  v_add_u32 v{vT0}, s83, v1"); A(f"  v_cmp_gt_u32 vcc, s85, v{vT0}"); A("  v_cmp_gt_u32 s[80:81], 8, v1")
    A(f"  v_mul_u32_u24 v{vT0}, 12, v{vT0}"); A("  s_and_b64 vcc, vcc, s[80:81]"); A("  s_nop 1")
    A(f"  v_cndmask_b32 v{vT0}, v{vOOB}, v{vT0}, vcc")
    L = RR(0,0,0)
    A(f"  buffer_load_dwordx3 v[{L}:{L+2}], v{vT0}, s[12:15], s84 offen")
    A("  s_waitcnt vmcnt(0)")
    ins_A((L, L+1), 0); A("  s_waitcnt lgkmcnt(0)"); ins_B((L, L+1), L+2, 0)
    A("  s_waitcnt lgkmcnt(0)")
    A("  s_mov_b64 exec, 1"); A(f"  ds_add_u32 v{vT1}, v{vOne} offset:{F_RDY}"); A("  s_mov_b64 exec, -1")
    A("  s_add_u32 s61, s61, 1"); A("  s_add_u32 s83, s83, 8"); A("  s_branch L_sl_win")
    A("L_sl_next:")
    A("  s_add_u32 s82, s82, 1"); A("  s_cmp_lt_u32 s82, 32"); A("  s_cbranch_scc1 L_sl_tile")
    A("  s_add_u32 s62, s62, 1"); A(f"  s_cmp_lt_u32 s62, {NCH}"); A("  s_cbranch_scc1 L_sl_q")
    A("  s_mov_b32 s63, 1")
    A("L_sl_idle:")
    A(f"  ds_read_b32 v{vT0}, v{vFlag} offset:{F_LAST}"); A("  s_waitcnt lgkmcnt(0)")
    A(f"  v_readfirstlane_b32 s88, v{vT0}"); A("  s_nop 3")
    A("  s_cmp_eq_u32 s88, 0"); A("  s_cbranch_scc1 L_sl_cont")
    A("  s_cmp_ge_u32 s61, s88"); A("  s_cbranch_scc1 L_iw_epi")
    A("L_sl_cont:")
    slow_parity()
    A("  s_lshr_b32 s87, s61, 1"); A(f"  s_mul_i32 s87, s87, {NGW}")
    A(f"  ds_read_b32 v{vT0}, v{vT1} offset:{F_DONE}"); A("  s_waitcnt lgkmcnt(0)")
    A(f"  v_readfirstlane_b32 s88, v{vT0}"); A("  s_nop 3")
    A("  s_cmp_ge_u32 s88, s87"); A("  s_cbranch_scc1 L_sl_go")
    A("  s_sleep 2"); A("  s_branch L_sl_idle")
    A("L_sl_go:")
    A("  s_cmp_eq_u32 s63, 0"); A("  s_cbranch_scc1 L_sl_sig")
    A("  s_mov_b32 s63, 0")
    A("  s_mov_b64 exec, 1"); A(f"  ds_add_rtn_u32 v{vT0}, v{vFlag}, v{vOne} offset:{F_NDONE}"); A("  s_waitcnt lgkmcnt(0)")
    A(f"  v_readfirstlane_b32 s88, v{vT0}"); A("  s_mov_b64 exec, -1"); A("  s_nop 2")
    A(f"  s_cmp_lg_u32 s88, {NIW-1}"); A("  s_cbranch_scc1 L_sl_sig")
    A("  s_add_u32 s88, s61, 1"); A(f"  v_mov_b32 v{vT0}, s88"); A(f"  ds_write_b32 v{vFlag}, v{vT0} offset:{F_LAST}"); A("  s_waitcnt lgkmcnt(0)")
    A("L_sl_sig:")
    A("  s_mov_b64 exec, 1"); A(f"  ds_add_u32 v{vT1}, v{vOne} offset:{F_RDY}"); A("  s_mov_b64 exec, -1")
    A("  s_add_u32 s61, s61, 1"); A("  s_branch L_sl_idle")

def gen_iwave():
    A("L_k2_iwave:")
    A(f"  s_setprio {os.environ.get('IPRIO0', os.environ.get('IPRIO', '3'))}")
    A("  s_sub_u32 s60, s35, 8")
    A("  s_lshl_b32 s60, s60, 5")
    A("  s_mov_b32 s52, 0x1fc")
    if os.environ.get("CROT"):
        A(f"  s_lshr_b32 s51, s2, {os.environ['CROT']}"); A("  s_and_b32 s51, s51, 1")
    A("  s_mov_b64 s[54:55], 0")
    A(f"  v_mov_b32 v{vOOB}, {OOB:#x}")
    A(f"  v_add_u32 v{vDescOff}, s60, v1")
    A(f"  v_cmp_gt_u32 vcc, 250, v{vDescOff}")
    A(f"  v_cmp_gt_u32 s[40:41], 32, v1")
    A(f"  v_lshlrev_b32 v{vDescOff}, 2, v1")
    A(f"  s_and_b64 vcc, vcc, s[40:41]")
    A(f"  s_nop 1")
    A(f"  v_cndmask_b32 v{vDescOff}, v{vOOB}, v{vDescOff}, vcc")
    A("  s_mov_b32 s61, 0")
    if F0:
        A(f"  v_mov_b32 v{vFlag}, {FLG}")
        A("  s_barrier")
        A("  s_cmp_lg_u32 s35, 8"); A("  s_cbranch_scc1 L_i_lpoll")
        A("L_i_nw:")
        A(f"  ds_read_b64 v[16:17], v{vFlag} offset:24"); A("  s_waitcnt lgkmcnt(0)")
        A("  v_readfirstlane_b32 s28, v16"); A("  v_readfirstlane_b32 s29, v17"); A("  s_nop 3")
        A("  s_cmp_lg_u32 s28, 0"); A("  s_cbranch_scc1 L_i_nok")
        A("  s_cmp_eq_u32 s97, 0"); A("  s_cbranch_scc1 L_i_nok"); A("  s_sub_u32 s97, s97, 1")
        A("  s_sleep 2"); A("  s_branch L_i_nw")
        A("L_i_nok:")
        A("  s_and_b32 s62, s2, 7"); A("  s_lshl_b32 s62, s62, 13")
        A(f"  v_lshlrev_b32 v{vT1}, 3, v1")
        A("L_i_rpoll:")
        for k in range(8):
            if k == 7: A("  s_bfm_b64 exec, 52, 0")
            A(f"  buffer_load_dwordx2 v[{16+2*k}:{17+2*k}], v{vT1}, s[24:27], s62 offen offset:{512*k} sc1")
        A("  s_mov_b64 exec, -1"); A("  s_waitcnt vmcnt(0)"); A("  s_mov_b64 s[64:65], -1")
        for k in range(8):
            if k == 7: A("  s_bfm_b64 exec, 52, 0")
            A(f"  v_cmp_ne_u64 vcc, s[28:29], v[{16+2*k}:{17+2*k}]")
            A(f"  s_cmp_eq_u64 vcc, 0"); A(f"  s_cselect_b64 s[64:65], s[64:65], 0")
        A("  s_mov_b64 exec, -1")
        A("  s_cmp_lg_u64 s[64:65], 0"); A("  s_cbranch_scc1 L_i_rok")
        A("  s_cmp_eq_u32 s97, 0"); A("  s_cbranch_scc1 L_i_rok"); A("  s_sub_u32 s97, s97, 1")
        A(f"  s_sleep {os.environ.get('RSLEEP', '8')}"); A("  s_branch L_i_rpoll")
        A("L_i_rok:")
        A(f"  v_mov_b32 v{vT0}, 1"); A(f"  ds_write_b32 v{vFlag}, v{vT0} offset:20")
        A("  s_branch L_i_rdone")
        A("L_i_lpoll:")
        A("  s_mov_b32 s62, 1")
        poll(vFlag, 20, 62, "L_i_lp", vT0, 63, 2)
        A("L_i_rdone:")
        stampk(k=42)
    iw_desc_load(vD0, 61, 0)
    iw_desc_load(vD1, 61, 1)
    iw_desc_load(vD2, 61, 2)
    A(f"  v_mov_b32 v{vOne}, 1")
    A(f"  v_mov_b32 v{vKB}, {BS//4}")
    A(f"  v_lshrrev_b32 v{vPerm}, 4, v1")
    A(f"  v_mov_b32 v{vTileJ}, {TILE_BYTES}")
    A(f"  v_mul_lo_u32 v{vTileJ}, v{vTileJ}, v{vPerm}")
    A(f"  v_lshlrev_b32 v{vPerm}, 2, v{vPerm}")
    A(f"  v_and_b32 v{vL15}, 15, v1")
    A(f"  v_mov_b32 v{vFlag}, {FLG}")
    A("  s_waitcnt vmcnt(2)")
    iw_issue_raw(0, vD0, 61, 0)
    A("  s_waitcnt vmcnt(9)")
    out[-1] = "  s_waitcnt vmcnt(9)"
    iw_issue_raw(1, vD1, 61, 1)
    if not F0: A("  s_barrier")
    A("  s_waitcnt vmcnt(8)")
    A("L_iw_loop:")
    iw_chunk(0)
    iw_chunk(1)
    A(f"  s_cmp_lt_u32 s61, {NCH}")
    A("  s_cbranch_scc1 L_iw_loop")
    gen_iw_slow()
    A("L_iw_epi:")
    gen_epilogue()
    stamp_flush()
    A("  s_endpgm")

D = int(os.environ.get("GD", "2")); U = D + 1; LEAD = D + 2; MINT = D + 3
assert U % 3 == 0
B1A, B1B, DA, DB, A2 = 18, 22, 26, 30, 34
XR = lambda u: 38 + 4*(u % U)
WR = lambda u: 38 + 4*U + (u % U)
CR = lambda u: 38 + 5*U + (u % U)
B2 = lambda p: 38 + 6*U + 4*(p % 3)
assert 38 + 6*U + 12 <= 88
ACC = lambda j: 88 + 4*j
vLane4, vHalf16, vSelW, vSelR, vZero, vList, vG, vA, vA2, vS, vFl, vOne1, vBin, vLA = 2, 3, 4, 5, 6, 7, 8, 9, 10, 11, 12, 13, 14, 16
vF0 = DA
T0, T1, T2, T3 = DA, DA+1, DA+2, DA+3
sM1 = 44; sT = 45; sD = 46; sLeft = 47
sNB = 48
sTot = 58; sCI = 59; sCC = 60; sEnd = 61
sNBn = 64
sLo = 80

def g_body(j, u):
    A(f"L_g_{j}_{u}:")
    if os.environ.get("GPRIO", "") == "iter": A(f"  s_setprio {u % 3}")
    if os.environ.get("GPRIO", "") == "iter1": A(f"  s_setprio {1 + u % 3}")
    if os.environ.get("GPRIO", "") == "iter2": A(f"  s_setprio {(u + j) % 4}")
    if os.environ.get("GPRIO", "") == "iter3": A(f"  s_setprio {[1, 3, 2][u % 3]}" )
    A(f"  s_waitcnt lgkmcnt(6)")
    A(f"  v_and_or_b32 v{vG}, v{WR(u+D)}, s{sM1}, v{vHalf16}")
    if "noload" not in EXP:
        A(f"  buffer_load_dwordx4 {vr(XR(u+D))}, v{vG}, s[8:11], 0 offen")
        A(f"  s_waitcnt vmcnt({D})")
    A(f"  v_mfma_f32_16x16x32_bf16 {vr(DA)}, {vr(XR(u))}, {vr(B1A)}, 0")
    A(f"  v_mfma_f32_16x16x32_bf16 {vr(DB)}, {vr(XR(u))}, {vr(B1B)}, 0")
    A(f"  v_readlane_b32 s{sD}, v{vList}, s{sT}")
    A(f"  s_add_u32 s{sT}, s{sT}, 1")
    A(f"  v_and_or_b32 v{vA2}, v{WR(u+2)}, 30, v{vSelW}")
    A(f"  v_add_u32 v{vA}, s{sD}, v{vLane4}")
    A(f"  ds_write_b16 v{vS}, v{vZero}")
    A(f"  ds_write_b16 v{vA2}, v{CR(u+2)}")
    A(f"  v_mov_b32 v{vS}, v{vA2}")
    A(f"  ds_read_b64_tr_b16 {vr(B2(u+2),2)}, v{vSelR}")
    A(f"  ds_read_b64_tr_b16 {vr(B2(u+2)+2,2)}, v{vSelR} offset:512")
    A(f"  ds_read_b32 v{WR(u+D+2)}, v{vA} offset:{WB}")
    A(f"  v_lshrrev_b32 v{vA}, 1, v{vA}")
    A(f"  ds_read_u16 v{CR(u+D+2)}, v{vA}")
    A(f"  v_cvt_pk_bf16_f32 v{A2}, v{DA}, v{DA+1}")
    A(f"  v_cvt_pk_bf16_f32 v{A2+1}, v{DA+2}, v{DA+3}")
    A(f"  v_cvt_pk_bf16_f32 v{A2+2}, v{DB}, v{DB+1}")
    A(f"  v_cvt_pk_bf16_f32 v{A2+3}, v{DB+2}, v{DB+3}")
    A(f"  s_cmp_eq_u32 s{sT}, s{sTot}")
    A(f"  s_cbranch_scc1 L_gc_{j}_{u}")
    A(f"L_gb_{j}_{u}:")
    A(f"  s_sub_u32 s{sLeft}, s{sLeft}, 1")
    A(f"  v_mfma_f32_16x16x32_bf16 {vr(ACC(j))}, {vr(A2)}, {vr(B2(u))}, {vr(ACC(j))}")
    A(f"  s_cbranch_scc1 L_gn_{j+1}_{(u+1)%U}")
    if u == U-1:
        A(f"  s_branch L_g_{j}_0")

def g_callstub(j, u):
    A(f"L_gc_{j}_{u}:")
    A(f"  s_call_b64 s[30:31], L_setup")
    A(f"  s_branch L_gb_{j}_{u}")

def g_next(j, u):
    A(f"L_gn_{j}_{u}:")
    if j == GPW:
        A(f"  s_add_u32 s{sCC}, s{sCC}, 1")
        stampk(sreg=sCC, add=0)
        A(f"  s_cmp_eq_u32 s{sCC}, s{sEnd}")
        A(f"  s_cbranch_scc1 L_g_end")
        A(f"  s_cmp_lg_u32 s{sCC}, {NCH}")
        A(f"  s_cbranch_scc1 L_gz_{u}")
        A(f"  s_nop 7")
        for jj in range(GPW):
            for k in range(4): A(f"  v_mov_b32 v{ACC(jj)+k}, 0")
        A(f"L_gz_{u}:")
        for k in range(0, GPW, 2):
            A(f"  s_mov_b64 s[{sNB+k}:{sNB+k+1}], s[{sNBn+k}:{sNBn+k+1}]")
        A(f"  s_branch L_gn_0_{u}")
        return
    A(f"  s_sub_u32 s{sLeft}, s{sNB+j}, 1")
    A(f"  s_cbranch_scc1 L_gn_{j+1}_{u}")
    A(f"  s_branch L_g_{j}_{u}")

def fill_own_bins(sreg_p):
    for k in range(4):
        A(f"  v_mov_b32 v{vF0+k}, {DUMMY_W:#x}")
        A(f"  v_mov_b32 v{vF0+4+k}, 0")
    A(f"  s_mul_i32 s76, s{sreg_p}, {PB}")
    A(f"  s_mul_i32 s77, s35, {GPW*BS}")
    A(f"  s_add_u32 s76, s76, s77")
    A(f"  v_add_u32 v{vA}, s76, v{vLA}")
    for k in range(5):
        A(f"  ds_write_b128 v{vA}, {vr(vF0)} offset:{WB + 1024*k}")
    A(f"  s_mov_b64 exec, 0x3ff")
    A(f"  ds_write_b128 v{vA}, {vr(vF0)} offset:{WB + 5120}")
    A(f"  s_mov_b64 exec, -1")
    A(f"  s_lshr_b32 s76, s76, 1")
    A(f"  v_add_u32 v{vA}, s76, v{vLA}")
    A(f"  ds_write_b128 v{vA}, {vr(vF0+4)}")
    A(f"  ds_write_b128 v{vA}, {vr(vF0+4)} offset:1024")
    A(f"  s_mov_b64 exec, 0x{(1<<37)-1:x}") if False else None
    A(f"  s_bfm_b64 exec, 37, 0")
    A(f"  ds_write_b128 v{vA}, {vr(vF0+4)} offset:2048")
    A(f"  s_mov_b64 exec, -1")

def g_setup():
    A("L_setup:")
    A(f"  s_waitcnt lgkmcnt(0)")
    stampk(sreg=sCI, add=17)
    A(f"  s_cmp_lt_i32 s{sCI}, 0")
    A(f"  s_cbranch_scc1 L_su_nosig")
    A(f"  s_and_b32 s75, s{sCI}, 1")
    fill_own_bins(75)
    A(f"  s_lshl_b32 s75, s75, 2")
    A(f"  v_add_u32 v{vA}, s75, v{vFl}")
    A(f"  s_waitcnt lgkmcnt(0)")
    A(f"  s_mov_b64 exec, 1")
    A(f"  ds_add_u32 v{vA}, v{vOne1} offset:{F_DONE}")
    A(f"  s_mov_b64 exec, -1")
    A("L_su_nosig:")
    A(f"  s_add_u32 s{sCI}, s{sCI}, 1")
    A(f"  v_lshrrev_b32 v{vG}, 2, v{vLA}")
    A(f"  s_lshl_b32 s76, s35, 8")
    A(f"  s_add_u32 s76, s76, {LIST}")
    A(f"  v_add_u32 v{vG}, s76, v{vG}")
    A(f"  s_cmp_lg_u32 s{sCI}, {NCH}")
    A(f"  s_cbranch_scc1 L_su_noovf")
    A(f"  ds_read_b32 v{vA2}, v{vFl} offset:{F_OVF}"); A(f"  s_waitcnt lgkmcnt(0)")
    A(f"  v_readfirstlane_b32 s77, v{vA2}"); A(f"  s_nop 3"); A(f"  s_cmp_eq_u32 s77, 0"); A(f"  s_cbranch_scc1 L_su_noovf")
    A(f"  s_mov_b32 s{sEnd}, 0x7fffffff")
    A("L_su_noovf:")
    A(f"  s_cmp_lt_u32 s{sCI}, s{sEnd}")
    A(f"  s_cbranch_scc1 L_su_real")
    A(f"  v_mov_b32 v{vList}, {DUMMY_X}")
    A(f"  s_mov_b32 s{sTot}, 0x7fffffff")
    A(f"  s_mov_b32 s{sT}, 0")
    A(f"  s_setpc_b64 s[30:31]")
    A("L_su_real:")
    A(f"  v_mov_b32 v{vList}, {DUMMY_X}")
    A(f"  ds_write_b32 v{vG}, v{vList}")
    A(f"  s_and_b32 s75, s{sCI}, 1")
    A(f"  s_lshl_b32 s77, s75, 2")
    A(f"  v_add_u32 v{vA}, s77, v{vFl}")
    A(f"  s_lshr_b32 s77, s{sCI}, 1")
    A(f"  s_add_u32 s77, s77, 1")
    A(f"  s_mul_i32 s77, s77, {NIW}")
    poll(vA, F_RDY, 77, "L_su_poll", vA2, 78, 2)
    A(f"  s_cmp_lt_u32 s{sCI}, {NCH}"); A(f"  s_cbranch_scc1 L_su_nolast")
    A(f"  ds_read_b32 v{vA2}, v{vFl} offset:{F_LAST}"); A(f"  s_waitcnt lgkmcnt(0)")
    A(f"  v_readfirstlane_b32 s77, v{vA2}"); A(f"  s_add_u32 s78, s{sCI}, 1"); A(f"  s_nop 2")
    A(f"  s_cmp_eq_u32 s77, s78"); A(f"  s_cselect_b32 s{sEnd}, s78, s{sEnd}")
    A("L_su_nolast:")
    A(f"  s_lshl_b32 s77, s75, 9")
    A(f"  s_mul_i32 s78, s35, {GPW*4}")
    A(f"  s_add_u32 s77, s77, s78")
    A(f"  s_add_u32 s77, s77, {CNT}")
    A(f"  v_lshrrev_b32 v{vA}, 2, v{vLA}")
    A(f"  v_add_u32 v{vA}, s77, v{vA}")
    A(f"  s_mov_b64 exec, 0x3ff")
    A(f"  v_mov_b32 v{T0}, 0")
    A(f"  s_mov_b64 exec, -1")
    A(f"  v_mov_b32 v{T0}, 0")
    A(f"  s_mov_b64 exec, 0x3ff")
    A(f"  ds_read_b32 v{T0}, v{vA}")
    A(f"  s_waitcnt lgkmcnt(0)")
    A(f"  ds_write_b32 v{vA}, v{vZero}")
    A(f"  s_mov_b64 exec, -1")
    A(f"  v_min_u32 v{T0}, {CAP}, v{T0}")
    A(f"  v_add_u32 v{T0}, 31, v{T0}")
    A(f"  v_lshrrev_b32 v{T0}, 5, v{T0}")
    A(f"  v_mov_b32 v{T1}, v{T0}")
    A(f"  s_mul_i32 s77, s75, {PB}")
    A(f"  s_mul_i32 s78, s35, {GPW*BS}")
    for sh in (1, 2, 4, 8):
        A(f"  s_nop 0") if sh > 1 else A(f"  s_add_u32 s77, s77, s78")
        A(f"  v_add_u32_dpp v{T1}, v{T1}, v{T1} row_shr:{sh} row_mask:0xf bank_mask:0xf bound_ctrl:0")
        A(f"  s_nop 0")
    A(f"  v_add_u32 v{T2}, s77, v{vBin}")
    A(f"  v_sub_u32 v{T3}, v{T1}, v{T0}")
    A(f"  v_lshl_add_u32 v{T3}, v{T3}, 2, s76")
    for i in range(4):
        A(f"  v_cmp_lt_u32 vcc, {i}, v{T0}")
        A(f"  s_and_saveexec_b64 s[78:79], vcc")
        A(f"  ds_write_b32 v{T3}, v{T2} offset:{4*i}")
        A(f"  s_mov_b64 exec, s[78:79]")
        if i < 3: A(f"  v_add_u32 v{T2}, 128, v{T2}")
    A(f"  ds_read_b32 v{vList}, v{vG}")
    for j in range(GPW):
        A(f"  v_readlane_b32 s{sNBn+j}, v{T0}, {j}")
    A(f"  v_readlane_b32 s77, v{T1}, {GPW-1}")
    A(f"  s_nop 2")
    A(f"  s_max_u32 s{sTot}, s77, {MINT}")
    A(f"  s_sub_u32 s77, s{sTot}, s77")
    A(f"  s_add_u32 s{sNBn+GPW-1}, s{sNBn+GPW-1}, s77")
    A(f"  s_mov_b32 s{sT}, 0")
    A(f"  s_waitcnt lgkmcnt(0)")
    A(f"  s_setpc_b64 s[30:31]")

def gen_gwave():
    A(f"  s_load_dwordx2 s[38:39], s[0:1], 72")
    PFL = int(os.environ.get("PFL", "0"))
    if PFL:
        A("  s_lshr_b32 s40, s2, 3"); A("  s_lshl_b32 s40, s40, 9"); A("  s_lshl_b32 s41, s35, 6"); A("  s_add_u32 s40, s40, s41")
        A("  v_add_u32 v16, s40, v1"); A("  v_lshlrev_b32 v16, 7, v16")
        for k in range((PFL + 16383) // 16384):
            A(f"  s_mov_b32 s42, {k*16384*128}")
            A(f"  buffer_load_dword v{76+k}, v16, s[8:11], s42 offen")
    lds_init()
    A(f"  v_and_b32 v{vLane4}, 31, v1")
    A(f"  v_lshlrev_b32 v{vLane4}, 2, v{vLane4}")
    A(f"  v_lshrrev_b32 v{vHalf16}, 5, v1")
    A(f"  v_lshlrev_b32 v{vHalf16}, 4, v{vHalf16}")
    A(f"  v_lshlrev_b32 v{vLA}, 4, v1")
    A(f"  v_mul_u32_u24 v{vBin}, {BS}, v1")
    A(f"  s_mov_b32 s{sM1}, {DUMMY_W:#x}")
    A(f"  s_lshl_b32 s40, s35, 10")
    A(f"  s_add_u32 s40, s40, {SEL}")
    A(f"  v_and_b32 v20, 31, v1")
    A(f"  v_lshl_add_u32 v{vSelW}, v20, 5, s40")
    A(f"  v_lshl_add_u32 v{vSelR}, v1, 3, s40")
    srd(28, 38, 512)
    A(f"  v_lshrrev_b32 v19, 4, v1")
    A(f"  v_and_b32 v18, 15, v1")
    A(f"  v_lshrrev_b32 v20, 1, v19")
    A(f"  v_lshlrev_b32 v20, 8, v20")
    A(f"  v_lshl_add_u32 v20, v18, 1, v20")
    for jj in range(8):
        A(f"  buffer_load_ushort v{DA+jj}, v20, s[28:31], 0 offen offset:{32*jj}")
    A(f"  v_mov_b32 v{vZero}, 0")
    A(f"  v_mov_b32 v{vFl}, {FLG}")
    A(f"  v_mov_b32 v{vOne1}, 1")
    A(f"  v_mov_b32 v{vS}, v{vSelW}")
    A(f"  v_and_b32 v21, 1, v19")
    A(f"  v_cmp_eq_u32 s[40:41], 0, v21")
    for u in range(U):
        for k in range(4):
            A(f"  v_mov_b32 v{XR(u)+k}, 0")
        A(f"  v_mov_b32 v{WR(u)}, {DUMMY_W:#x}")
        A(f"  v_mov_b32 v{CR(u)}, 0")
    for p in range(3):
        for k in range(4):
            A(f"  v_mov_b32 v{B2(p)+k}, 0")
    for j in range(GPW):
        for k in range(4):
            A(f"  v_mov_b32 v{ACC(j)+k}, 0")
    A(f"  s_waitcnt vmcnt(0)")
    for k in range(4):
        A(f"  v_lshl_or_b32 v{DA+k}, v{DA+1+2*k}, 16, v{DA+2*k}")
    for k in range(4):
        A(f"  v_cndmask_b32 v{B1A+k}, v{vZero}, v{DA+k}, s[40:41]")
        A(f"  v_cndmask_b32 v{B1B+k}, v{DA+k}, v{vZero}, s[40:41]")
    A("  s_barrier")
    if F0:
        A("  s_cmp_lg_u32 s35, 0"); A("  s_cbranch_scc1 L_g_nonon")
        A("  v_mov_b32 v76, s60"); A("  v_mov_b32 v77, s61")
        A(f"  ds_write_b64 v{vFl}, v[76:77] offset:24")
        A("L_g_nonon:")
    LATE = os.environ.get("GLATE", "0") == "1"
    if os.environ.get("GPRIO", "") == "st1" and not LATE: A("  s_setprio 1")
    A(f"  s_mov_b32 s{sCI}, -1")
    A(f"  s_mov_b32 s{sCC}, 0")
    A(f"  s_mov_b32 s{sEnd}, {NCH}")
    A(f"  s_call_b64 s[30:31], L_setup")
    if os.environ.get("GPRIO", "") == "st1" and LATE: A("  s_setprio 1")
    for k in range(0, GPW, 2):
        A(f"  s_mov_b64 s[{sNB+k}:{sNB+k+1}], s[{sNBn+k}:{sNBn+k+1}]")
    A(f"  s_add_u32 s{sLeft}, s{sNB}, {LEAD-1}")
    for j in range(GPW):
        for u in range(U):
            g_body(j, u)
    for j in range(GPW):
        for u in range(U):
            g_callstub(j, u)
    for j in range(0, GPW+1):
        for u in range(U):
            g_next(j, u)
    g_setup()
    A("L_g_end:")
    A("  s_waitcnt vmcnt(0) lgkmcnt(0)")
    A("  s_nop 7")
    A(f"  s_mul_i32 s76, s35, {GPW*BS}")
    A(f"  s_add_u32 s76, s76, {WB}")
    A(f"  v_add_u32 v{vA}, s76, v{vLA}")
    for j in range(GPW):
        A(f"  ds_write_b128 v{vA}, {vr(ACC(j))} offset:{(j//5)*PB + (j%5)*1024}")
    A(f"  s_lshl_b32 s76, s35, 2")
    A(f"  v_add_u32 v{vA}, s76, v{vFl}")
    A(f"  s_waitcnt lgkmcnt(0)")
    A(f"  s_mov_b64 exec, 1")
    A(f"  ds_write_b32 v{vA}, v{vOne1} offset:{F_FIN}")
    A(f"  s_mov_b64 exec, -1")
    A(f"  s_waitcnt lgkmcnt(0)")
    stamp_flush()

def gen_epilogue():
    A("  s_load_dwordx2 s[36:37], s[0:1], 24")
    A("  s_load_dwordx2 s[38:39], s[0:1], 40")
    A("  s_load_dwordx4 s[40:43], s[0:1], 56")
    A("  s_load_dwordx4 s[44:47], s[0:1], 80")
    A("  s_waitcnt lgkmcnt(0)")
    srd(12, 36, E*2); srd(16, 46, E*32); srd(20, 38, 16); srd(24, 40, 256); srd(28, 42, 256); srd(48, 44, 512)
    n, q = 2, 3
    A(f"  v_and_b32 v{n}, 15, v1"); A(f"  v_lshrrev_b32 v{q}, 4, v1")
    A(f"  v_lshlrev_b32 v4, 6, v{q}"); A(f"  v_lshl_add_u32 v4, v{n}, 1, v4")
    A("  buffer_load_ushort v96, v4, s[28:31], 0 offen"); A("  buffer_load_ushort v97, v4, s[28:31], 0 offen offset:32")
    A("  buffer_load_ushort v98, v4, s[24:27], 0 offen"); A("  buffer_load_ushort v99, v4, s[24:27], 0 offen offset:32")
    A(f"  v_lshlrev_b32 v4, 7, v{q}"); A(f"  v_lshl_add_u32 v4, v{n}, 1, v4")
    for k in range(4): A(f"  buffer_load_ushort v{100+k}, v4, s[48:51], 0 offen offset:{32*k}")
    A(f"  v_lshlrev_b32 v4, 2, v{q}")
    A("  buffer_load_ushort v104, v4, s[20:23], 0 offen"); A("  buffer_load_ushort v105, v4, s[20:23], 0 offen offset:2")
    A("  s_sub_u32 s52, s35, 8"); A(f"  s_mul_i32 s52, s52, {GPW*16}")
    A(f"  v_add_u32 v5, s52, v{n}")
    A("  s_mul_i32 s53, s3, 1250")
    for j in range(GPW):
        A(f"  v_add_u32 v6, s53, v5")
        if j: A(f"  v_add_u32 v6, {16*j}, v6")
        A(f"  v_lshlrev_b32 v7, 1, v6")
        A(f"  buffer_load_ushort v{16+8*j}, v7, s[12:15], 0 offen")
        A(f"  v_lshlrev_b32 v7, 5, v6")
        A(f"  v_lshl_add_u32 v7, v{q}, 3, v7")
        A(f"  buffer_load_dwordx2 v[{22+8*j}:{23+8*j}], v7, s[8:11], 0 offen")
    A(f"  s_waitcnt vmcnt({2*GPW})")
    A("  v_lshl_or_b32 v108, v97, 16, v96"); A("  v_lshl_or_b32 v112, v99, 16, v98")
    A("  v_lshl_or_b32 v116, v101, 16, v100"); A("  v_lshl_or_b32 v117, v103, 16, v102")
    A("  v_mov_b32 v118, v116"); A("  v_mov_b32 v119, v117")
    for r in (109, 110, 111, 113, 114, 115, 121, 122, 123): A(f"  v_mov_b32 v{r}, 0")
    A("  v_lshlrev_b32 v104, 16, v104"); A("  v_lshlrev_b32 v105, 16, v105")
    A("  s_mov_b32 s54, 0xffff0000"); A(f"  s_mov_b32 s55, {f2u(-10.0):#x}"); A(f"  s_mov_b32 s56, {f2u(LOG2E):#x}")
    A("  s_waitcnt vmcnt(0)")
    for j in range(GPW):
        b = 16 + 8*j
        A(f"  v_lshlrev_b32 v8, 16, v{b}")
        A(f"  v_sub_f32 v9, v8, v104"); A(f"  v_sub_f32 v10, v8, v105")
        for step, op in enumerate(["sq", "m10", "exp"]):
            A(f"  v_cvt_pk_bf16_f32 v11, v9, v10")
            A(f"  v_lshlrev_b32 v9, 16, v11"); A(f"  v_and_b32 v10, s54, v11")
            if op == "sq":
                A(f"  v_mul_f32 v9, v9, v9"); A(f"  v_mul_f32 v10, v10, v10")
            elif op == "m10":
                A(f"  v_mul_f32 v9, s55, v9"); A(f"  v_mul_f32 v10, s55, v10")
            else:
                A(f"  v_mul_f32 v9, s56, v9"); A(f"  v_mul_f32 v10, s56, v10")
                A(f"  v_exp_f32 v9, v9"); A(f"  v_exp_f32 v10, v10"); A(f"  s_nop 0")
        A(f"  v_cvt_pk_bf16_f32 v120, v9, v10")
        A(f"  s_nop 1")
        A(f"  v_mfma_f32_16x16x32_bf16 v[{b}:{b+3}], v[108:111], v[120:123], 0")
        A(f"  v_mfma_f32_16x16x32_bf16 v[96:99], v[112:115], v[120:123], 0")
        A(f"  s_nop 7")
        A(f"  v_cvt_pk_bf16_f32 v{b+4}, v96, v97")
        A(f"  v_cvt_pk_bf16_f32 v{b+5}, v98, v99")
    stampk(k=40)
    A("  s_sub_u32 s57, s35, 8"); A("  s_lshl_b32 s58, s57, 2")
    A(f"  v_mov_b32 v4, {FLG}"); A("  v_add_u32 v4, s58, v4")
    A("  s_mov_b32 s59, 1")
    poll(4, F_FIN, 59, "L_ep_poll", 6, 58, int(os.environ.get("ESLEEP", "2")))
    stampk(k=41)
    A(f"  s_mul_i32 s57, s57, {GPW*BS}"); A(f"  s_add_u32 s57, s57, {WB}")
    A("  v_lshlrev_b32 v4, 4, v1"); A("  v_add_u32 v4, s57, v4")
    A(f"  v_mov_b32 v124, {OOB:#x}"); A("  s_movk_i32 s57, 1250")
    for j in range(GPW):
        b = 16 + 8*j
        acc = 96 + 4*(j % 2)
        if j == 0:
            A(f"  ds_read_b128 v[96:99], v4 offset:0")
        if j + 1 < GPW:
            jn = j + 1
            A(f"  ds_read_b128 v[{96+4*(jn%2)}:{99+4*(jn%2)}], v4 offset:{(jn//5)*PB + (jn%5)*1024}")
            A(f"  s_waitcnt lgkmcnt(1)")
        else:
            A(f"  s_waitcnt lgkmcnt(0)")
        for k in range(4): A(f"  v_mul_f32 v{8+k}, v{acc+k}, v{b+k}")
        A(f"  v_cvt_pk_bf16_f32 v104, v8, v9"); A(f"  v_cvt_pk_bf16_f32 v105, v10, v11")
        A(f"  v_lshlrev_b32 v12, 16, v104"); A(f"  v_and_b32 v13, s54, v104")
        A(f"  v_lshlrev_b32 v14, 16, v105"); A(f"  v_and_b32 v125, s54, v105")
        A(f"  v_sub_f32 v8, v8, v12"); A(f"  v_sub_f32 v9, v9, v13"); A(f"  v_sub_f32 v10, v10, v14"); A(f"  v_sub_f32 v11, v11, v125")
        A(f"  v_cvt_pk_bf16_f32 v106, v8, v9"); A(f"  v_cvt_pk_bf16_f32 v107, v10, v11")
        A(f"  v_add_u32 v6, {16*j}, v5")
        A(f"  v_cmp_gt_u32 vcc, s57, v6")
        A(f"  v_mfma_f32_16x16x32_bf16 v[108:111], v[116:119], v[104:107], 0")
        A(f"  v_add_u32 v6, s53, v6"); A(f"  v_lshlrev_b32 v6, 5, v6"); A(f"  v_lshl_add_u32 v6, v{q}, 3, v6")
        A(f"  v_cndmask_b32 v6, v124, v6, vcc")
        A(f"  v_lshlrev_b32 v8, 16, v{b+4}"); A(f"  v_and_b32 v9, s54, v{b+4}"); A(f"  v_lshlrev_b32 v10, 16, v{b+5}"); A(f"  v_and_b32 v11, s54, v{b+5}")
        A(f"  v_lshlrev_b32 v12, 16, v{b+6}"); A(f"  v_and_b32 v13, s54, v{b+6}"); A(f"  v_lshlrev_b32 v14, 16, v{b+7}"); A(f"  v_and_b32 v125, s54, v{b+7}")
        A(f"  v_fma_f32 v12, v108, v8, v12"); A(f"  v_fma_f32 v13, v109, v9, v13"); A(f"  v_fma_f32 v14, v110, v10, v14"); A(f"  v_fma_f32 v125, v111, v11, v125")
        A(f"  v_cvt_pk_bf16_f32 v{b+4}, v12, v13"); A(f"  v_cvt_pk_bf16_f32 v{b+5}, v14, v125")
        A(f"  buffer_store_dwordx2 v[{b+4}:{b+5}], v6, s[16:19], 0 offen")

def gen_k2():
    k2_prologue()
    gen_gwave()
    A("L_k2_end:")
    A("  s_endpgm")
    gen_iwave()

if __name__ == "__main__":
    A(f"; @launch kernel=k1_kernel grid=(256,1,1) block=(1024,1,1) lds={gen.K1_LDS}")
    A(f"; @launch kernel=k2_kernel grid=(256,1,1) block=(1024,1,1) lds={K2_LDS}")
    A('.amdgcn_target "amdgcn-amd-amdhsa--gfx950"')
    A(".text")
    gen.STAMP = False
    gen_k1()
    gen_k2()
    A('.section .rodata,"a"')
    A(".p2align 6")
    desc_block("k1_kernel", 128)
    A(".p2align 6")
    desc_block("k2_kernel", 128, 100)
    lines = [l for l in out if l is not None]
    open(sys.argv[1], "w").write("\n".join(lines) + "\n")
```

```python
from gen import *
import gen, os, sys

CAP = 128
BS = 528
NGW = 8; GPW = 10; NIW = 8
PB = 80 * BS
WB = PB
SEL = 126976
LIST = SEL + NGW * 1024
CNT = LIST + NGW * 256
FLG = CNT + 1024
DMA = os.environ.get("DMA", "0") == "1"
RING = FLG + 128 + ((-(FLG + 128)) % 1024)
K2_LDS = (RING + NGW * 3072) if DMA else (FLG + 128)
assert SEL >= 3 * PB and SEL % 1024 == 0 and CNT % 512 == 0
F_OVF, F_RDY, F_DONE, F_FIN, F_NDONE, F_LAST = 0, 4, 12, 32, 64, 68
DUMMY_X = 79 * BS
DUMMY_W = 0x00FFFFE0
OOB = 0x7FFFFF00
LOG2E = 1.4426950408889634
EXP = set(os.environ.get("EXP", "").split(","))
RAW_NT = os.environ.get("RAW_NT", "")
NCH = 8
F0 = False

def vr(b, n=4): return f"v[{b}:{b+n-1}]"
STAMP = os.environ.get("STAMP", "0") == "1"
def stamp_init():
    if not STAMP: return
    A("  s_memtime s[90:91]"); A("  s_memrealtime s[92:93]"); A("  s_waitcnt lgkmcnt(0)"); A("  v_mov_b32 v15, 0")
def stampk(k=None, sreg=None, add=0):
    if not STAMP: return
    A("  s_memtime s[94:95]"); A("  s_waitcnt lgkmcnt(0)"); A("  s_sub_u32 s94, s94, s90")
    if k is not None:
        A(f"  v_writelane_b32 v15, s94, {k}")
    else:
        A(f"  s_add_u32 s95, s{sreg}, {add}"); A("  s_mov_b32 m0, s95"); A("  v_writelane_b32 v15, s94, m0")
def stamp_flush():
    if not STAMP: return
    A("  s_memtime s[94:95]"); A("  s_waitcnt lgkmcnt(0)"); A("  s_sub_u32 s94, s94, s90"); A("  v_writelane_b32 v15, s94, 32")
    A("  s_memrealtime s[94:95]"); A("  s_waitcnt lgkmcnt(0)")
    A("  v_writelane_b32 v15, s92, 34"); A("  v_writelane_b32 v15, s94, 35")
    A("  s_load_dwordx2 s[44:45], s[0:1], 104"); A("  s_waitcnt lgkmcnt(0)")
    srd(48, 44, 256*16*256, 128 << 20)
    A("  s_lshl_b32 s44, s2, 4"); A("  s_add_u32 s44, s44, s35"); A("  s_lshl_b32 s44, s44, 8")
    A("  v_lshlrev_b32 v4, 2, v1"); A("  buffer_store_dword v15, v4, s[48:51], s44 offen"); A("  s_waitcnt vmcnt(0)")

def k2_prologue():
    A(".p2align 8"); A(".globl k2_kernel"); A(".type k2_kernel,@function"); A("k2_kernel:")
    A("  s_cmp_ge_u32 s2, 256"); A("  s_cbranch_scc1 L_k2_end")
    stamp_init()
    A("  s_load_dwordx2 s[4:5], s[0:1], 0")
    A("  s_load_dwordx2 s[6:7], s[0:1], 104")
    A("  s_and_b32 s3, s2, 7"); A("  s_lshl_b32 s3, s3, 5"); A("  s_lshr_b32 s36, s2, 3"); A("  s_add_u32 s3, s3, s36")
    A("  v_lshrrev_b32 v4, 6, v0"); A("  v_and_b32 v1, 63, v0"); A("  v_readfirstlane_b32 s35, v4")
    A("  s_waitcnt lgkmcnt(0)")
    srd(8, 4, E*32)
    srd(12, 6, NT*TILE_BYTES)
    srd(16, 6, NBIN*DESC_ROW, DESC_OFF)
    A("  s_cmp_ge_u32 s35, 8"); A("  s_cbranch_scc1 L_k2_iwave")

def lds_init():
    for r in (8, 9, 10, 11): A(f"  v_mov_b32 v{r}, 0")
    A("  v_lshlrev_b32 v5, 4, v0")
    def region(base, nbytes):
        n16 = nbytes // 16
        k = 0
        cur = None
        while k * 512 < n16:
            addr = base + k * 8192
            seg = addr // 65536
            if seg != cur:
                A(f"  v_add_u32 v6, {seg * 65536}, v5"); cur = seg
            off = addr - seg * 65536
            if (k + 1) * 512 <= n16:
                A(f"  ds_write_b128 v6, v[8:11] offset:{off}")
            else:
                A(f"  v_cmp_gt_u32 vcc, {n16 - k*512}, v0"); A("  s_and_saveexec_b64 s[40:41], vcc")
                A(f"  ds_write_b128 v6, v[8:11] offset:{off}"); A("  s_mov_b64 exec, s[40:41]")
            k += 1
    region(SEL, K2_LDS - SEL)
    region(0, PB)
    for r in (8, 9, 10, 11): A(f"  v_mov_b32 v{r}, {DUMMY_W:#x}")
    region(WB, 2 * PB)
    A("  s_waitcnt lgkmcnt(0)")

def poll(vaddr, off, sneed, label, vtmp, stmp, sleep=2):
    A(f"{label}:")
    A(f"  ds_read_b32 v{vtmp}, v{vaddr} offset:{off}")
    A(f"  s_waitcnt lgkmcnt(0)")
    A(f"  v_readfirstlane_b32 s{stmp}, v{vtmp}")
    A(f"  s_nop 3")
    A(f"  s_cmp_ge_u32 s{stmp}, s{sneed}")
    A(f"  s_cbranch_scc1 {label}_ok")
    A(f"  s_sleep {sleep}")
    A(f"  s_branch {label}")
    A(f"{label}_ok:")

def RR(st, i, k): return 16 + 32*st + 4*i + k
NSET = 4
def CA(st, r): return 80 + 2*st + r
def RK(st, r): return 88 + 2*st + r
def MK(st, r): return 64 + 4*st + 2*r
vCntB, vOne, vPerm, vL15, vTileJ, vOOB, vDescOff, vD0, vD1, vD2, vT0, vT1, vKB, vFlag = 96, 97, 98, 99, 100, 101, 102, 103, 104, 105, 106, 107, 108, 109

def ins_A(w, st):
    for r in range(2):
        A(f"  v_cmp_gt_i32 s[{MK(st,r)}:{MK(st,r)+1}], 0, v{w[r]}")
        A(f"  v_lshrrev_b32 v{CA(st,r)}, 22, v{w[r]}")
        A(f"  v_and_or_b32 v{CA(st,r)}, v{CA(st,r)}, s52, v{vCntB}")
    for r in range(2):
        A(f"  s_mov_b64 exec, s[{MK(st,r)}:{MK(st,r)+1}]")
        A(f"  ds_add_rtn_u32 v{RK(st,r)}, v{CA(st,r)}, v{vOne}")
    A(f"  s_mov_b64 exec, -1")

def ins_B(w, cw, st):
    for r in range(2):
        ca = CA(st,r); rk = RK(st,r)
        A(f"  s_mov_b64 exec, s[{MK(st,r)}:{MK(st,r)+1}]")
        A(f"  v_cmp_lt_u32 vcc, {CAP-1}, v{rk}")
        A(f"  v_min_u32 v{rk}, {CAP-1}, v{rk}")
        A(f"  v_mad_u32_u24 v{ca}, v{ca}, v{vKB}, s53")
        A(f"  s_or_b64 s[54:55], s[54:55], vcc")
        A(f"  v_lshl_add_u32 v{ca}, v{rk}, 2, v{ca}")
        A(f"  ds_write_b32 v{ca}, v{w[r]} offset:{WB}")
        A(f"  v_lshrrev_b32 v{rk}, 1, v{ca}")
        A(f"  ds_write_b16{'_d16_hi' if r else ''} v{rk}, v{cw}")
    A(f"  s_mov_b64 exec, -1")

def ins_set(st):
    ops = []
    def emitA(i):
        ins_A((RR(st,i,0), RR(st,i,1)), i % NSET); ops.extend([('a', i)]*2)
    def emitB(i):
        last = max(k for k, o in enumerate(ops) if o == ('a', i))
        A(f"  s_waitcnt lgkmcnt({min(len(ops) - 1 - last, 15)})")
        ins_B((RR(st,i,0), RR(st,i,1)), RR(st,i,2), i % NSET); ops.extend([('w', i)]*4)
    for i in range(NSET): emitA(i)
    for i in range(8):
        emitB(i)
        if i + NSET < 8: emitA(i + NSET)

def iw_T0(dst, c_sreg, add=0):
    A(f"  s_add_u32 s{dst}, s{c_sreg}, {add}")
    if os.environ.get("CROT"): A(f"  s_add_u32 s{dst}, s{dst}, s51")
    A(f"  s_and_b32 s{dst}, s{dst}, 1")
    A(f"  s_mul_i32 s{dst}, s{dst}, 250")
    A(f"  s_add_u32 s{dst}, s{dst}, s60")

def iw_issue_raw(st, desc, c_sreg, add):
    iw_T0(57, c_sreg, add)
    A(f"  s_mul_i32 s57, s57, {TILE_BYTES}")
    for i in range(8):
        A(f"  ds_bpermute_b32 v{RR(st,i,0)}, v{vPerm}, v{desc} offset:{16*i}")
    for i in range(8):
        d = RR(st,i,0)
        A(f"  s_waitcnt lgkmcnt({7-i})")
        A(f"  v_and_b32 v{vT0}, 0xffff, v{d}")
        A(f"  v_lshrrev_b32 v{vT1}, 16, v{d}")
        A(f"  v_add_u32 v{vT0}, v{vT0}, v{vL15}")
        A(f"  v_cmp_lt_u32 vcc, v{vT0}, v{vT1}")
        A(f"  v_mad_u32_u24 v{vT0}, v{vT0}, 12, v{vTileJ}")
        A(f"  s_nop 0")
        A(f"  v_cndmask_b32 v{vT0}, v{vOOB}, v{vT0}, vcc")
        if "sc1" in RAW_NT: A(f"  buffer_load_dwordx4 v[{d}:{d+3}], v{vT0}, s[12:15], s57 offen{RAW_NT}")
        else: A(f"  buffer_load_dwordx3 v[{d}:{d+2}], v{vT0}, s[12:15], s57 offen{RAW_NT}")
        if i < 7: A(f"  s_add_u32 s57, s57, {4*TILE_BYTES}")

def iw_desc_load(dst, c_sreg, add):
    A(f"  s_add_u32 s59, s{c_sreg}, {add}")
    if os.environ.get("CROT"): A(f"  s_add_u32 s59, s59, s51")
    A(f"  s_lshr_b32 s58, s59, 1")
    if os.environ.get("CROT"): A(f"  s_and_b32 s58, s58, 3")
    if os.environ.get("ROT", "0") == "1":
        A(f"  s_add_u32 s58, s58, s2"); A(f"  s_and_b32 s58, s58, 3")
    if os.environ.get("ROT", "0") == "2":
        A(f"  s_lshr_b32 s57, s2, 1"); A(f"  s_add_u32 s58, s58, s57"); A(f"  s_and_b32 s58, s58, 3")
    A(f"  s_lshl_b32 s58, s58, 8")
    A(f"  s_add_u32 s58, s58, s3")
    A(f"  s_lshl_b32 s58, s58, 9")
    A(f"  s_and_b32 s59, s59, 1")
    A(f"  s_mul_i32 s59, s59, 250")
    A(f"  s_add_u32 s59, s59, s60")
    A(f"  s_add_u32 s58, s58, s59")
    A(f"  s_lshl_b32 s58, s58, 2")
    A(f"  buffer_load_dword v{dst}, v{vDescOff}, s[16:19], s58 offen{RAW_NT}")

def iw_chunk(st):
    t = f"L_iw{st}"
    A(f"  s_lshr_b32 s87, s61, 1")
    A(f"  s_mul_i32 s87, s87, {NGW}")
    stampk(sreg=61, add=0)
    poll(vFlag, F_DONE + 4*st, 87, f"{t}_poll", vT0, 88, int(os.environ.get("ISLEEP", "4")))
    A(f"  v_mov_b32 v{vCntB}, {CNT + 512*st}")
    A(f"  s_mov_b32 s53, {(PB*st - (CNT + 512*st)*(BS//4)) & 0xffffffff:#x}")
    A(f"  s_waitcnt vmcnt(9)")
    stampk(sreg=61, add=8)
    ins_set(st)
    A(f"  v_and_b32 v{vT0}, 0xffff, v{vD0}")
    A(f"  v_lshrrev_b32 v{vT1}, 16, v{vD0}")
    A(f"  v_add_u32 v{vT0}, 16, v{vT0}")
    A(f"  v_cmp_lt_u32 s[80:81], v{vT0}, v{vT1}")
    iw_T0(86, 61)
    A(f"{t}_long:")
    A(f"  s_cmp_eq_u64 s[80:81], 0")
    A(f"  s_cbranch_scc1 {t}_long_done")
    A(f"  s_ff1_i32_b64 s82, s[80:81]")
    A(f"  s_bitset0_b64 s[80:81], s82")
    A(f"  v_readlane_b32 s83, v{vD0}, s82")
    A(f"  s_add_u32 s84, s86, s82")
    A(f"  s_mul_i32 s84, s84, {TILE_BYTES}")
    A(f"  s_lshr_b32 s85, s83, 16")
    A(f"  s_and_b32 s83, s83, 0xffff")
    A(f"  s_add_u32 s83, s83, 16")
    A(f"{t}_long_win:")
    A(f"  v_add_u32 v{vT0}, s83, v1")
    A(f"  v_cmp_gt_u32 vcc, s85, v{vT0}")
    A(f"  v_mul_u32_u24 v{vT0}, 12, v{vT0}")
    A(f"  s_nop 0")
    A(f"  v_cndmask_b32 v{vT0}, v{vOOB}, v{vT0}, vcc")
    L = RR(st,0,0)
    if "sc1" in RAW_NT: A(f"  buffer_load_dwordx4 v[{L}:{L+3}], v{vT0}, s[12:15], s84 offen{RAW_NT}")
    else: A(f"  buffer_load_dwordx3 v[{L}:{L+2}], v{vT0}, s[12:15], s84 offen")
    A(f"  s_waitcnt vmcnt(0)")
    ins_A((L, L+1), 0)
    A(f"  s_waitcnt lgkmcnt(0)")
    ins_B((L, L+1), L+2, 0)
    A(f"  s_add_u32 s83, s83, 64")
    A(f"  s_cmp_lt_u32 s83, s85")
    A(f"  s_cbranch_scc1 {t}_long_win")
    A(f"  s_branch {t}_long")
    A(f"{t}_long_done:")
    A(f"  s_cmp_eq_u64 s[54:55], 0")
    A(f"  s_cbranch_scc1 {t}_noovf")
    A(f"  ds_write_b32 v{vFlag}, v{vOne} offset:{F_OVF}")
    A(f"{t}_noovf:")
    A(f"  s_waitcnt lgkmcnt(0)")
    A(f"  s_mov_b64 exec, 1")
    A(f"  ds_add_u32 v{vFlag}, v{vOne} offset:{F_RDY + 4*st}")
    A(f"  s_mov_b64 exec, -1")
    stampk(sreg=61, add=16)
    if os.environ.get('IPRIO0'): A(f"  s_setprio {os.environ.get('IPRIO', '3')}")
    PFN = int(os.environ.get("PFN", "0"))
    if PFN and st == int(os.environ.get("PFST", "0")):
        A(f"  s_cmp_eq_u32 s61, {0 if st == 0 else 7}"); A(f"  s_cbranch_scc1 {t}_nopf")
        A(f"  s_add_u32 s82, s61, {0 if st == 0 else 1}"); A(f"  s_lshr_b32 s82, s82, 1")
        if os.environ.get("ROT", "0") == "1":
            A(f"  s_add_u32 s82, s82, s2"); A(f"  s_and_b32 s82, s82, 3")
        A(f"  s_mul_i32 s82, s82, 20165")
        A(f"  s_lshr_b32 s83, s2, 3"); A(f"  s_lshl_b32 s83, s83, 9"); A(f"  s_lshl_b32 s84, s60, 1"); A(f"  s_add_u32 s83, s83, s84")
        A(f"  v_add_u32 v{vT0}, s83, v1")
        A(f"  v_cmp_gt_u32 vcc, {PFN}, v{vT0}") if PFN <= 64 else (A(f"  s_mov_b32 s84, {PFN}"), A(f"  v_cmp_gt_u32 vcc, s84, v{vT0}"))
        A(f"  v_add_u32 v{vT0}, s82, v{vT0}"); A(f"  v_lshlrev_b32 v{vT0}, 7, v{vT0}")
        A(f"  v_cndmask_b32 v{vT0}, v{vOOB}, v{vT0}, vcc")
        A(f"  buffer_load_dword v110, v{vT0}, s[8:11], 0 offen")
        A(f"{t}_nopf:")
    A(f"  s_add_u32 s62, s61, 2")
    A(f"  s_cmp_ge_u32 s62, {NCH}")
    A(f"  s_cbranch_scc1 {t}_noraw")
    A(f"  s_waitcnt vmcnt(0)")
    iw_issue_raw(st, vD2, 61, 2)
    A(f"  s_add_u32 s62, s61, 3")
    A(f"  s_cmp_ge_u32 s62, {NCH}")
    A(f"  v_mov_b32 v{vD0}, v{vD1}")
    A(f"  v_mov_b32 v{vD1}, v{vD2}")
    A(f"  s_cbranch_scc1 {t}_nodesc")
    iw_desc_load(vD2, 61, 3)
    A(f"  s_branch {t}_nodesc")
    A(f"{t}_noraw:")
    A(f"  s_waitcnt vmcnt(0)")
    A(f"  v_mov_b32 v{vD0}, v{vD1}")
    A(f"{t}_nodesc:")
    A(f"  s_add_u32 s61, s61, 1")

def slow_parity():
    c0 = (0 - CNT*(BS//4)) & 0xffffffff
    c1 = (PB - (CNT + 512)*(BS//4)) & 0xffffffff
    A("  s_and_b32 s88, s61, 1"); A("  s_cmp_eq_u32 s88, 0")
    A(f"  s_cselect_b32 s53, {c0:#x}, s53") if False else None
    A(f"  s_mov_b32 s53, {c0:#x}"); A(f"  s_mov_b32 s89, {c1:#x}"); A("  s_cselect_b32 s53, s53, s89")
    A(f"  s_lshl_b32 s89, s88, 9"); A(f"  s_add_u32 s89, s89, {CNT}"); A(f"  v_mov_b32 v{vCntB}, s89")
    A(f"  s_lshl_b32 s89, s88, 2"); A(f"  v_add_u32 v{vT1}, s89, v{vFlag}")

def gen_iw_slow():
    A(f"  s_mov_b32 s87, {NIW * (NCH // 2)}")
    poll(vFlag, F_RDY + 4, 87, "L_sl_w", vT0, 88, 2)
    A(f"  ds_read_b32 v{vT0}, v{vFlag} offset:{F_OVF}"); A("  s_waitcnt lgkmcnt(0)")
    A(f"  v_readfirstlane_b32 s88, v{vT0}"); A("  s_nop 3"); A("  s_cmp_eq_u32 s88, 0"); A("  s_cbranch_scc1 L_iw_epi")
    A("  s_setprio 0")
    A("  s_mov_b32 s62, 0")
    A("L_sl_q:")
    iw_desc_load(vD0, 62, 0)
    iw_T0(86, 62)
    A("  s_mov_b32 s82, 0")
    A("  s_waitcnt vmcnt(0)")
    A("L_sl_tile:")
    A(f"  v_readlane_b32 s83, v{vD0}, s82")
    A("  s_add_u32 s84, s86, s82"); A(f"  s_mul_i32 s84, s84, {TILE_BYTES}")
    A("  s_lshr_b32 s85, s83, 16"); A("  s_and_b32 s83, s83, 0xffff")
    A("L_sl_win:")
    A("  s_cmp_ge_u32 s83, s85"); A("  s_cbranch_scc1 L_sl_next")
    slow_parity()
    A("  s_lshr_b32 s87, s61, 1"); A(f"  s_mul_i32 s87, s87, {NGW}")
    poll(vT1, F_DONE, 87, "L_sl_d", vT0, 88, 2)
    A(f"  v_add_u32 v{vT0}, s83, v1"); A(f"  v_cmp_gt_u32 vcc, s85, v{vT0}"); A("  v_cmp_gt_u32 s[80:81], 8, v1")
    A(f"  v_mul_u32_u24 v{vT0}, 12, v{vT0}"); A("  s_and_b64 vcc, vcc, s[80:81]"); A("  s_nop 1")
    A(f"  v_cndmask_b32 v{vT0}, v{vOOB}, v{vT0}, vcc")
    L = RR(0,0,0)
    A(f"  buffer_load_dwordx3 v[{L}:{L+2}], v{vT0}, s[12:15], s84 offen")
    A("  s_waitcnt vmcnt(0)")
    ins_A((L, L+1), 0); A("  s_waitcnt lgkmcnt(0)"); ins_B((L, L+1), L+2, 0)
    A("  s_waitcnt lgkmcnt(0)")
    A("  s_mov_b64 exec, 1"); A(f"  ds_add_u32 v{vT1}, v{vOne} offset:{F_RDY}"); A("  s_mov_b64 exec, -1")
    A("  s_add_u32 s61, s61, 1"); A("  s_add_u32 s83, s83, 8"); A("  s_branch L_sl_win")
    A("L_sl_next:")
    A("  s_add_u32 s82, s82, 1"); A("  s_cmp_lt_u32 s82, 32"); A("  s_cbranch_scc1 L_sl_tile")
    A("  s_add_u32 s62, s62, 1"); A(f"  s_cmp_lt_u32 s62, {NCH}"); A("  s_cbranch_scc1 L_sl_q")
    A("  s_mov_b32 s63, 1")
    A("L_sl_idle:")
    A(f"  ds_read_b32 v{vT0}, v{vFlag} offset:{F_LAST}"); A("  s_waitcnt lgkmcnt(0)")
    A(f"  v_readfirstlane_b32 s88, v{vT0}"); A("  s_nop 3")
    A("  s_cmp_eq_u32 s88, 0"); A("  s_cbranch_scc1 L_sl_cont")
    A("  s_cmp_ge_u32 s61, s88"); A("  s_cbranch_scc1 L_iw_epi")
    A("L_sl_cont:")
    slow_parity()
    A("  s_lshr_b32 s87, s61, 1"); A(f"  s_mul_i32 s87, s87, {NGW}")
    A(f"  ds_read_b32 v{vT0}, v{vT1} offset:{F_DONE}"); A("  s_waitcnt lgkmcnt(0)")
    A(f"  v_readfirstlane_b32 s88, v{vT0}"); A("  s_nop 3")
    A("  s_cmp_ge_u32 s88, s87"); A("  s_cbranch_scc1 L_sl_go")
    A("  s_sleep 2"); A("  s_branch L_sl_idle")
    A("L_sl_go:")
    A("  s_cmp_eq_u32 s63, 0"); A("  s_cbranch_scc1 L_sl_sig")
    A("  s_mov_b32 s63, 0")
    A("  s_mov_b64 exec, 1"); A(f"  ds_add_rtn_u32 v{vT0}, v{vFlag}, v{vOne} offset:{F_NDONE}"); A("  s_waitcnt lgkmcnt(0)")
    A(f"  v_readfirstlane_b32 s88, v{vT0}"); A("  s_mov_b64 exec, -1"); A("  s_nop 2")
    A(f"  s_cmp_lg_u32 s88, {NIW-1}"); A("  s_cbranch_scc1 L_sl_sig")
    A("  s_add_u32 s88, s61, 1"); A(f"  v_mov_b32 v{vT0}, s88"); A(f"  ds_write_b32 v{vFlag}, v{vT0} offset:{F_LAST}"); A("  s_waitcnt lgkmcnt(0)")
    A("L_sl_sig:")
    A("  s_mov_b64 exec, 1"); A(f"  ds_add_u32 v{vT1}, v{vOne} offset:{F_RDY}"); A("  s_mov_b64 exec, -1")
    A("  s_add_u32 s61, s61, 1"); A("  s_branch L_sl_idle")

def gen_iwave():
    A("L_k2_iwave:")
    A(f"  s_setprio {os.environ.get('IPRIO0', os.environ.get('IPRIO', '3'))}")
    A("  s_sub_u32 s60, s35, 8")
    A("  s_lshl_b32 s60, s60, 5")
    A("  s_mov_b32 s52, 0x1fc")
    if os.environ.get("CROT"):
        A(f"  s_lshr_b32 s51, s2, {os.environ['CROT']}"); A("  s_and_b32 s51, s51, 1")
    A("  s_mov_b64 s[54:55], 0")
    A(f"  v_mov_b32 v{vOOB}, {OOB:#x}")
    A(f"  v_add_u32 v{vDescOff}, s60, v1")
    A(f"  v_cmp_gt_u32 vcc, 250, v{vDescOff}")
    A(f"  v_cmp_gt_u32 s[40:41], 32, v1")
    A(f"  v_lshlrev_b32 v{vDescOff}, 2, v1")
    A(f"  s_and_b64 vcc, vcc, s[40:41]")
    A(f"  s_nop 1")
    A(f"  v_cndmask_b32 v{vDescOff}, v{vOOB}, v{vDescOff}, vcc")
    A("  s_mov_b32 s61, 0")
    if F0:
        A(f"  v_mov_b32 v{vFlag}, {FLG}")
        A("  s_barrier")
        A("  s_cmp_lg_u32 s35, 8"); A("  s_cbranch_scc1 L_i_lpoll")
        A("L_i_nw:")
        A(f"  ds_read_b64 v[16:17], v{vFlag} offset:24"); A("  s_waitcnt lgkmcnt(0)")
        A("  v_readfirstlane_b32 s28, v16"); A("  v_readfirstlane_b32 s29, v17"); A("  s_nop 3")
        A("  s_cmp_lg_u32 s28, 0"); A("  s_cbranch_scc1 L_i_nok")
        A("  s_cmp_eq_u32 s97, 0"); A("  s_cbranch_scc1 L_i_nok"); A("  s_sub_u32 s97, s97, 1")
        A("  s_sleep 2"); A("  s_branch L_i_nw")
        A("L_i_nok:")
        A("  s_and_b32 s62, s2, 7"); A("  s_lshl_b32 s62, s62, 13")
        A(f"  v_lshlrev_b32 v{vT1}, 3, v1")
        A("L_i_rpoll:")
        for k in range(8):
            if k == 7: A("  s_bfm_b64 exec, 52, 0")
            A(f"  buffer_load_dwordx2 v[{16+2*k}:{17+2*k}], v{vT1}, s[24:27], s62 offen offset:{512*k} sc1")
        A("  s_mov_b64 exec, -1"); A("  s_waitcnt vmcnt(0)"); A("  s_mov_b64 s[64:65], -1")
        for k in range(8):
            if k == 7: A("  s_bfm_b64 exec, 52, 0")
            A(f"  v_cmp_ne_u64 vcc, s[28:29], v[{16+2*k}:{17+2*k}]")
            A(f"  s_cmp_eq_u64 vcc, 0"); A(f"  s_cselect_b64 s[64:65], s[64:65], 0")
        A("  s_mov_b64 exec, -1")
        A("  s_cmp_lg_u64 s[64:65], 0"); A("  s_cbranch_scc1 L_i_rok")
        A("  s_cmp_eq_u32 s97, 0"); A("  s_cbranch_scc1 L_i_rok"); A("  s_sub_u32 s97, s97, 1")
        A(f"  s_sleep {os.environ.get('RSLEEP', '8')}"); A("  s_branch L_i_rpoll")
        A("L_i_rok:")
        A(f"  v_mov_b32 v{vT0}, 1"); A(f"  ds_write_b32 v{vFlag}, v{vT0} offset:20")
        A("  s_branch L_i_rdone")
        A("L_i_lpoll:")
        A("  s_mov_b32 s62, 1")
        poll(vFlag, 20, 62, "L_i_lp", vT0, 63, 2)
        A("L_i_rdone:")
        stampk(k=42)
    iw_desc_load(vD0, 61, 0)
    iw_desc_load(vD1, 61, 1)
    iw_desc_load(vD2, 61, 2)
    A(f"  v_mov_b32 v{vOne}, 1")
    A(f"  v_mov_b32 v{vKB}, {BS//4}")
    A(f"  v_lshrrev_b32 v{vPerm}, 4, v1")
    A(f"  v_mov_b32 v{vTileJ}, {TILE_BYTES}")
    A(f"  v_mul_lo_u32 v{vTileJ}, v{vTileJ}, v{vPerm}")
    A(f"  v_lshlrev_b32 v{vPerm}, 2, v{vPerm}")
    A(f"  v_and_b32 v{vL15}, 15, v1")
    A(f"  v_mov_b32 v{vFlag}, {FLG}")
    A("  s_waitcnt vmcnt(2)")
    iw_issue_raw(0, vD0, 61, 0)
    A("  s_waitcnt vmcnt(9)")
    out[-1] = "  s_waitcnt vmcnt(9)"
    iw_issue_raw(1, vD1, 61, 1)
    if not F0: A("  s_barrier")
    A("  s_waitcnt vmcnt(8)")
    A("L_iw_loop:")
    iw_chunk(0)
    iw_chunk(1)
    A(f"  s_cmp_lt_u32 s61, {NCH}")
    A("  s_cbranch_scc1 L_iw_loop")
    gen_iw_slow()
    A("L_iw_epi:")
    gen_epilogue()
    stamp_flush()
    A("  s_endpgm")

D = int(os.environ.get("GD", "2")); U = D + 1; LEAD = D + 2; MINT = D + 3
assert U % 3 == 0
B1A, B1B, DA, DB, A2 = 18, 22, 26, 30, 34
XR = lambda u: 38 + 4*(u % U)
WR = lambda u: 38 + 4*U + (u % U)
CR = lambda u: 38 + 5*U + (u % U)
B2 = lambda p: 38 + 6*U + 4*(p % 3)
assert 38 + 6*U + 12 <= 88
ACC = lambda j: 88 + 4*j
vLane4, vHalf16, vSelW, vSelR, vZero, vList, vG, vA, vA2, vS, vFl, vOne1, vBin, vLA = 2, 3, 4, 5, 6, 7, 8, 9, 10, 11, 12, 13, 14, 16
vF0 = DA if not DMA else 68
T0, T1, T2, T3 = vF0, vF0+1, vF0+2, vF0+3
sM1 = 44; sT = 45; sD = 46; sLeft = 47
sNB = 48
sTot = 58; sCI = 59; sCC = 60; sEnd = 61
sNBn = 64
sRing = 82
vRingR = 17
sLo = 80

def g_body(j, u):
    A(f"L_g_{j}_{u}:")
    if os.environ.get("GPRIO", "") == "iter": A(f"  s_setprio {u % 3}")
    if os.environ.get("GPRIO", "") == "iter1": A(f"  s_setprio {1 + u % 3}")
    if os.environ.get("GPRIO", "") == "iter2": A(f"  s_setprio {(u + j) % 4}")
    if os.environ.get("GPRIO", "") == "iter3": A(f"  s_setprio {[1, 3, 2][u % 3]}" )
    A(f"  s_waitcnt lgkmcnt(6)")
    A(f"  v_and_or_b32 v{vG}, v{WR(u+D)}, s{sM1}, v{vHalf16}")
    if "noload" not in EXP:
        A(f"  buffer_load_dwordx4 {vr(XR(u+D))}, v{vG}, s[8:11], 0 offen")
        A(f"  s_waitcnt vmcnt({D})")
    A(f"  v_mfma_f32_16x16x32_bf16 {vr(DA)}, {vr(XR(u))}, {vr(B1A)}, 0")
    A(f"  v_mfma_f32_16x16x32_bf16 {vr(DB)}, {vr(XR(u))}, {vr(B1B)}, 0")
    A(f"  v_readlane_b32 s{sD}, v{vList}, s{sT}")
    A(f"  s_add_u32 s{sT}, s{sT}, 1")
    A(f"  v_and_or_b32 v{vA2}, v{WR(u+2)}, 30, v{vSelW}")
    A(f"  v_add_u32 v{vA}, s{sD}, v{vLane4}")
    A(f"  ds_write_b16 v{vS}, v{vZero}")
    A(f"  ds_write_b16 v{vA2}, v{CR(u+2)}")
    A(f"  v_mov_b32 v{vS}, v{vA2}")
    A(f"  ds_read_b64_tr_b16 {vr(B2(u+2),2)}, v{vSelR}")
    A(f"  ds_read_b64_tr_b16 {vr(B2(u+2)+2,2)}, v{vSelR} offset:512")
    A(f"  ds_read_b32 v{WR(u+D+2)}, v{vA} offset:{WB}")
    A(f"  v_lshrrev_b32 v{vA}, 1, v{vA}")
    A(f"  ds_read_u16 v{CR(u+D+2)}, v{vA}")
    A(f"  v_cvt_pk_bf16_f32 v{A2}, v{DA}, v{DA+1}")
    A(f"  v_cvt_pk_bf16_f32 v{A2+1}, v{DA+2}, v{DA+3}")
    A(f"  v_cvt_pk_bf16_f32 v{A2+2}, v{DB}, v{DB+1}")
    A(f"  v_cvt_pk_bf16_f32 v{A2+3}, v{DB+2}, v{DB+3}")
    A(f"  s_cmp_eq_u32 s{sT}, s{sTot}")
    A(f"  s_cbranch_scc1 L_gc_{j}_{u}")
    A(f"L_gb_{j}_{u}:")
    A(f"  s_sub_u32 s{sLeft}, s{sLeft}, 1")
    A(f"  v_mfma_f32_16x16x32_bf16 {vr(ACC(j))}, {vr(A2)}, {vr(B2(u))}, {vr(ACC(j))}")
    A(f"  s_cbranch_scc1 L_gn_{j+1}_{(u+1)%U}")
    if u == U-1:
        A(f"  s_branch L_g_{j}_0")

def g_body_dma(j, u):
    A(f"L_g_{j}_{u}:")
    A(f"  s_waitcnt lgkmcnt(6)")
    A(f"  s_mov_b32 m0, s{sRing + (u+D) % 3}")
    A(f"  v_and_or_b32 v{vG}, v{WR(u+D)}, s{sM1}, v{vHalf16}")
    A(f"  buffer_load_dwordx4 v{vG}, s[8:11], 0 offen lds")
    A(f"  s_waitcnt vmcnt({D})")
    A(f"  ds_read_b64_tr_b16 {vr(DA,2)}, v{vRingR} offset:{(u % 3)*1024}")
    A(f"  ds_read_b64_tr_b16 {vr(DA+2,2)}, v{vRingR} offset:{(u % 3)*1024 + 512}")
    A(f"  v_readlane_b32 s{sD}, v{vList}, s{sT}")
    A(f"  s_add_u32 s{sT}, s{sT}, 1")
    A(f"  v_and_or_b32 v{vA2}, v{WR(u+2)}, 30, v{vSelW}")
    A(f"  v_add_u32 v{vA}, s{sD}, v{vLane4}")
    A(f"  ds_write_b16 v{vS}, v{vZero}")
    A(f"  ds_write_b16 v{vA2}, v{CR(u+2)}")
    A(f"  v_mov_b32 v{vS}, v{vA2}")
    A(f"  ds_read_b64_tr_b16 {vr(B2(u+2),2)}, v{vSelR}")
    A(f"  ds_read_b64_tr_b16 {vr(B2(u+2)+2,2)}, v{vSelR} offset:512")
    A(f"  ds_read_b32 v{WR(u+D+2)}, v{vA} offset:{WB}")
    A(f"  v_lshrrev_b32 v{vA}, 1, v{vA}")
    A(f"  ds_read_u16 v{CR(u+D+2)}, v{vA}")
    A(f"  s_cmp_eq_u32 s{sT}, s{sTot}")
    A(f"  s_cbranch_scc1 L_gc_{j}_{u}")
    A(f"L_gb_{j}_{u}:")
    A(f"  s_sub_u32 s{sLeft}, s{sLeft}, 1")
    A(f"  s_waitcnt lgkmcnt(6)")
    A(f"  v_mfma_f32_16x16x32_bf16 {vr(ACC(j))}, {vr(DA)}, {vr(B2(u))}, {vr(ACC(j))}")
    A(f"  s_cbranch_scc1 L_gn_{j+1}_{(u+1)%U}")
    if u == U-1:
        A(f"  s_branch L_g_{j}_0")

def g_callstub(j, u):
    A(f"L_gc_{j}_{u}:")
    A(f"  s_call_b64 s[30:31], L_setup")
    A(f"  s_branch L_gb_{j}_{u}")

def g_next(j, u):
    A(f"L_gn_{j}_{u}:")
    if j == GPW:
        A(f"  s_add_u32 s{sCC}, s{sCC}, 1")
        stampk(sreg=sCC, add=0)
        A(f"  s_cmp_eq_u32 s{sCC}, s{sEnd}")
        A(f"  s_cbranch_scc1 L_g_end")
        A(f"  s_cmp_lg_u32 s{sCC}, {NCH}")
        A(f"  s_cbranch_scc1 L_gz_{u}")
        A(f"  s_nop 7")
        for jj in range(GPW):
            for k in range(4): A(f"  v_mov_b32 v{ACC(jj)+k}, 0")
        A(f"L_gz_{u}:")
        for k in range(0, GPW, 2):
            A(f"  s_mov_b64 s[{sNB+k}:{sNB+k+1}], s[{sNBn+k}:{sNBn+k+1}]")
        A(f"  s_branch L_gn_0_{u}")
        return
    A(f"  s_sub_u32 s{sLeft}, s{sNB+j}, 1")
    A(f"  s_cbranch_scc1 L_gn_{j+1}_{u}")
    A(f"  s_branch L_g_{j}_{u}")

def fill_own_bins(sreg_p):
    for k in range(4):
        A(f"  v_mov_b32 v{vF0+k}, {DUMMY_W:#x}")
        A(f"  v_mov_b32 v{vF0+4+k}, 0")
    A(f"  s_mul_i32 s76, s{sreg_p}, {PB}")
    A(f"  s_mul_i32 s77, s35, {GPW*BS}")
    A(f"  s_add_u32 s76, s76, s77")
    A(f"  v_add_u32 v{vA}, s76, v{vLA}")
    for k in range(5):
        A(f"  ds_write_b128 v{vA}, {vr(vF0)} offset:{WB + 1024*k}")
    A(f"  s_mov_b64 exec, 0x3ff")
    A(f"  ds_write_b128 v{vA}, {vr(vF0)} offset:{WB + 5120}")
    A(f"  s_mov_b64 exec, -1")
    A(f"  s_lshr_b32 s76, s76, 1")
    A(f"  v_add_u32 v{vA}, s76, v{vLA}")
    A(f"  ds_write_b128 v{vA}, {vr(vF0+4)}")
    A(f"  ds_write_b128 v{vA}, {vr(vF0+4)} offset:1024")
    A(f"  s_mov_b64 exec, 0x{(1<<37)-1:x}") if False else None
    A(f"  s_bfm_b64 exec, 37, 0")
    A(f"  ds_write_b128 v{vA}, {vr(vF0+4)} offset:2048")
    A(f"  s_mov_b64 exec, -1")

def g_setup():
    A("L_setup:")
    A(f"  s_waitcnt lgkmcnt(0)")
    stampk(sreg=sCI, add=17)
    A(f"  s_cmp_lt_i32 s{sCI}, 0")
    A(f"  s_cbranch_scc1 L_su_nosig")
    A(f"  s_and_b32 s75, s{sCI}, 1")
    fill_own_bins(75)
    A(f"  s_lshl_b32 s75, s75, 2")
    A(f"  v_add_u32 v{vA}, s75, v{vFl}")
    A(f"  s_waitcnt lgkmcnt(0)")
    A(f"  s_mov_b64 exec, 1")
    A(f"  ds_add_u32 v{vA}, v{vOne1} offset:{F_DONE}")
    A(f"  s_mov_b64 exec, -1")
    A("L_su_nosig:")
    A(f"  s_add_u32 s{sCI}, s{sCI}, 1")
    A(f"  v_lshrrev_b32 v{vG}, 2, v{vLA}")
    A(f"  s_lshl_b32 s76, s35, 8")
    A(f"  s_add_u32 s76, s76, {LIST}")
    A(f"  v_add_u32 v{vG}, s76, v{vG}")
    A(f"  s_cmp_lg_u32 s{sCI}, {NCH}")
    A(f"  s_cbranch_scc1 L_su_noovf")
    A(f"  ds_read_b32 v{vA2}, v{vFl} offset:{F_OVF}"); A(f"  s_waitcnt lgkmcnt(0)")
    A(f"  v_readfirstlane_b32 s77, v{vA2}"); A(f"  s_nop 3"); A(f"  s_cmp_eq_u32 s77, 0"); A(f"  s_cbranch_scc1 L_su_noovf")
    A(f"  s_mov_b32 s{sEnd}, 0x7fffffff")
    A("L_su_noovf:")
    A(f"  s_cmp_lt_u32 s{sCI}, s{sEnd}")
    A(f"  s_cbranch_scc1 L_su_real")
    A(f"  v_mov_b32 v{vList}, {DUMMY_X}")
    A(f"  s_mov_b32 s{sTot}, 0x7fffffff")
    A(f"  s_mov_b32 s{sT}, 0")
    A(f"  s_setpc_b64 s[30:31]")
    A("L_su_real:")
    A(f"  v_mov_b32 v{vList}, {DUMMY_X}")
    A(f"  ds_write_b32 v{vG}, v{vList}")
    A(f"  s_and_b32 s75, s{sCI}, 1")
    A(f"  s_lshl_b32 s77, s75, 2")
    A(f"  v_add_u32 v{vA}, s77, v{vFl}")
    A(f"  s_lshr_b32 s77, s{sCI}, 1")
    A(f"  s_add_u32 s77, s77, 1")
    A(f"  s_mul_i32 s77, s77, {NIW}")
    poll(vA, F_RDY, 77, "L_su_poll", vA2, 78, 2)
    A(f"  s_cmp_lt_u32 s{sCI}, {NCH}"); A(f"  s_cbranch_scc1 L_su_nolast")
    A(f"  ds_read_b32 v{vA2}, v{vFl} offset:{F_LAST}"); A(f"  s_waitcnt lgkmcnt(0)")
    A(f"  v_readfirstlane_b32 s77, v{vA2}"); A(f"  s_add_u32 s78, s{sCI}, 1"); A(f"  s_nop 2")
    A(f"  s_cmp_eq_u32 s77, s78"); A(f"  s_cselect_b32 s{sEnd}, s78, s{sEnd}")
    A("L_su_nolast:")
    A(f"  s_lshl_b32 s77, s75, 9")
    A(f"  s_mul_i32 s78, s35, {GPW*4}")
    A(f"  s_add_u32 s77, s77, s78")
    A(f"  s_add_u32 s77, s77, {CNT}")
    A(f"  v_lshrrev_b32 v{vA}, 2, v{vLA}")
    A(f"  v_add_u32 v{vA}, s77, v{vA}")
    A(f"  s_mov_b64 exec, 0x3ff")
    A(f"  v_mov_b32 v{T0}, 0")
    A(f"  s_mov_b64 exec, -1")
    A(f"  v_mov_b32 v{T0}, 0")
    A(f"  s_mov_b64 exec, 0x3ff")
    A(f"  ds_read_b32 v{T0}, v{vA}")
    A(f"  s_waitcnt lgkmcnt(0)")
    A(f"  ds_write_b32 v{vA}, v{vZero}")
    A(f"  s_mov_b64 exec, -1")
    A(f"  v_min_u32 v{T0}, {CAP}, v{T0}")
    A(f"  v_add_u32 v{T0}, 31, v{T0}")
    A(f"  v_lshrrev_b32 v{T0}, 5, v{T0}")
    A(f"  v_mov_b32 v{T1}, v{T0}")
    A(f"  s_mul_i32 s77, s75, {PB}")
    A(f"  s_mul_i32 s78, s35, {GPW*BS}")
    for sh in (1, 2, 4, 8):
        A(f"  s_nop 0") if sh > 1 else A(f"  s_add_u32 s77, s77, s78")
        A(f"  v_add_u32_dpp v{T1}, v{T1}, v{T1} row_shr:{sh} row_mask:0xf bank_mask:0xf bound_ctrl:0")
        A(f"  s_nop 0")
    A(f"  v_add_u32 v{T2}, s77, v{vBin}")
    A(f"  v_sub_u32 v{T3}, v{T1}, v{T0}")
    A(f"  v_lshl_add_u32 v{T3}, v{T3}, 2, s76")
    for i in range(4):
        A(f"  v_cmp_lt_u32 vcc, {i}, v{T0}")
        A(f"  s_and_saveexec_b64 s[78:79], vcc")
        A(f"  ds_write_b32 v{T3}, v{T2} offset:{4*i}")
        A(f"  s_mov_b64 exec, s[78:79]")
        if i < 3: A(f"  v_add_u32 v{T2}, 128, v{T2}")
    A(f"  ds_read_b32 v{vList}, v{vG}")
    for j in range(GPW):
        A(f"  v_readlane_b32 s{sNBn+j}, v{T0}, {j}")
    A(f"  v_readlane_b32 s77, v{T1}, {GPW-1}")
    A(f"  s_nop 2")
    A(f"  s_max_u32 s{sTot}, s77, {MINT}")
    A(f"  s_sub_u32 s77, s{sTot}, s77")
    A(f"  s_add_u32 s{sNBn+GPW-1}, s{sNBn+GPW-1}, s77")
    A(f"  s_mov_b32 s{sT}, 0")
    A(f"  s_waitcnt lgkmcnt(0)")
    A(f"  s_setpc_b64 s[30:31]")

def gen_gwave():
    A(f"  s_load_dwordx2 s[38:39], s[0:1], 72")
    PFL = int(os.environ.get("PFL", "0"))
    if PFL:
        A("  s_lshr_b32 s40, s2, 3"); A("  s_lshl_b32 s40, s40, 9"); A("  s_lshl_b32 s41, s35, 6"); A("  s_add_u32 s40, s40, s41")
        A("  v_add_u32 v16, s40, v1"); A("  v_lshlrev_b32 v16, 7, v16")
        for k in range((PFL + 16383) // 16384):
            A(f"  s_mov_b32 s42, {k*16384*128}")
            A(f"  buffer_load_dword v{76+k}, v16, s[8:11], s42 offen")
    lds_init()
    if DMA:
        A(f"  v_lshrrev_b32 v{vLane4}, 1, v1"); A(f"  v_lshlrev_b32 v{vLane4}, 2, v{vLane4}")
        A(f"  v_and_b32 v{vHalf16}, 1, v1"); A(f"  v_lshlrev_b32 v{vHalf16}, 4, v{vHalf16}")
        A(f"  s_mul_i32 s{sRing}, s35, 3072"); A(f"  s_add_u32 s{sRing}, s{sRing}, {RING}")
        A(f"  s_add_u32 s{sRing+1}, s{sRing}, 1024"); A(f"  s_add_u32 s{sRing+2}, s{sRing}, 2048")
        A(f"  v_lshl_add_u32 v{vRingR}, v1, 3, s{sRing}")
    else:
        A(f"  v_and_b32 v{vLane4}, 31, v1")
        A(f"  v_lshlrev_b32 v{vLane4}, 2, v{vLane4}")
        A(f"  v_lshrrev_b32 v{vHalf16}, 5, v1")
        A(f"  v_lshlrev_b32 v{vHalf16}, 4, v{vHalf16}")
    A(f"  v_lshlrev_b32 v{vLA}, 4, v1")
    A(f"  v_mul_u32_u24 v{vBin}, {BS}, v1")
    A(f"  s_mov_b32 s{sM1}, {DUMMY_W:#x}")
    A(f"  s_lshl_b32 s40, s35, 10")
    A(f"  s_add_u32 s40, s40, {SEL}")
    A(f"  v_and_b32 v20, 31, v1" if not DMA else f"  v_lshrrev_b32 v20, 1, v1")
    A(f"  v_lshl_add_u32 v{vSelW}, v20, 5, s40")
    A(f"  v_lshl_add_u32 v{vSelR}, v1, 3, s40")
    srd(28, 38, 512)
    A(f"  v_lshrrev_b32 v19, 4, v1")
    A(f"  v_and_b32 v18, 15, v1")
    A(f"  v_lshrrev_b32 v20, 1, v19")
    A(f"  v_lshlrev_b32 v20, 8, v20")
    A(f"  v_lshl_add_u32 v20, v18, 1, v20")
    for jj in range(8):
        A(f"  buffer_load_ushort v{DA+jj}, v20, s[28:31], 0 offen offset:{32*jj}")
    A(f"  v_mov_b32 v{vZero}, 0")
    A(f"  v_mov_b32 v{vFl}, {FLG}")
    A(f"  v_mov_b32 v{vOne1}, 1")
    A(f"  v_mov_b32 v{vS}, v{vSelW}")
    A(f"  v_and_b32 v21, 1, v19")
    A(f"  v_cmp_eq_u32 s[40:41], 0, v21")
    for u in range(U):
        for k in range(4):
            A(f"  v_mov_b32 v{XR(u)+k}, 0")
        A(f"  v_mov_b32 v{WR(u)}, {DUMMY_W:#x}")
        A(f"  v_mov_b32 v{CR(u)}, 0")
    for p in range(3):
        for k in range(4):
            A(f"  v_mov_b32 v{B2(p)+k}, 0")
    for j in range(GPW):
        for k in range(4):
            A(f"  v_mov_b32 v{ACC(j)+k}, 0")
    A(f"  s_waitcnt vmcnt(0)")
    for k in range(4):
        A(f"  v_lshl_or_b32 v{DA+k}, v{DA+1+2*k}, 16, v{DA+2*k}")
    for k in range(4):
        A(f"  v_cndmask_b32 v{B1A+k}, v{vZero}, v{DA+k}, s[40:41]")
        A(f"  v_cndmask_b32 v{B1B+k}, v{DA+k}, v{vZero}, s[40:41]")
    A("  s_barrier")
    if F0:
        A("  s_cmp_lg_u32 s35, 0"); A("  s_cbranch_scc1 L_g_nonon")
        A("  v_mov_b32 v76, s60"); A("  v_mov_b32 v77, s61")
        A(f"  ds_write_b64 v{vFl}, v[76:77] offset:24")
        A("L_g_nonon:")
    LATE = os.environ.get("GLATE", "0") == "1"
    if os.environ.get("GPRIO", "") == "st1" and not LATE: A("  s_setprio 1")
    A(f"  s_mov_b32 s{sCI}, -1")
    A(f"  s_mov_b32 s{sCC}, 0")
    A(f"  s_mov_b32 s{sEnd}, {NCH}")
    A(f"  s_call_b64 s[30:31], L_setup")
    if os.environ.get("GPRIO", "") == "st1" and LATE: A("  s_setprio 1")
    for k in range(0, GPW, 2):
        A(f"  s_mov_b64 s[{sNB+k}:{sNB+k+1}], s[{sNBn+k}:{sNBn+k+1}]")
    A(f"  s_add_u32 s{sLeft}, s{sNB}, {LEAD-1}")
    for j in range(GPW):
        for u in range(U):
            (g_body_dma if DMA else g_body)(j, u)
    for j in range(GPW):
        for u in range(U):
            g_callstub(j, u)
    for j in range(0, GPW+1):
        for u in range(U):
            g_next(j, u)
    g_setup()
    A("L_g_end:")
    A("  s_waitcnt vmcnt(0) lgkmcnt(0)")
    A("  s_nop 7")
    A(f"  s_mul_i32 s76, s35, {GPW*BS}")
    A(f"  s_add_u32 s76, s76, {WB}")
    A(f"  v_add_u32 v{vA}, s76, v{vLA}")
    for j in range(GPW):
        A(f"  ds_write_b128 v{vA}, {vr(ACC(j))} offset:{(j//5)*PB + (j%5)*1024}")
    A(f"  s_lshl_b32 s76, s35, 2")
    A(f"  v_add_u32 v{vA}, s76, v{vFl}")
    A(f"  s_waitcnt lgkmcnt(0)")
    A(f"  s_mov_b64 exec, 1")
    A(f"  ds_write_b32 v{vA}, v{vOne1} offset:{F_FIN}")
    A(f"  s_mov_b64 exec, -1")
    A(f"  s_waitcnt lgkmcnt(0)")
    stamp_flush()

def gen_epilogue():
    A("  s_load_dwordx2 s[36:37], s[0:1], 24")
    A("  s_load_dwordx2 s[38:39], s[0:1], 40")
    A("  s_load_dwordx4 s[40:43], s[0:1], 56")
    A("  s_load_dwordx4 s[44:47], s[0:1], 80")
    A("  s_waitcnt lgkmcnt(0)")
    srd(12, 36, E*2); srd(16, 46, E*32); srd(20, 38, 16); srd(24, 40, 256); srd(28, 42, 256); srd(48, 44, 512)
    n, q = 2, 3
    A(f"  v_and_b32 v{n}, 15, v1"); A(f"  v_lshrrev_b32 v{q}, 4, v1")
    A(f"  v_lshlrev_b32 v4, 6, v{q}"); A(f"  v_lshl_add_u32 v4, v{n}, 1, v4")
    A("  buffer_load_ushort v96, v4, s[28:31], 0 offen"); A("  buffer_load_ushort v97, v4, s[28:31], 0 offen offset:32")
    A("  buffer_load_ushort v98, v4, s[24:27], 0 offen"); A("  buffer_load_ushort v99, v4, s[24:27], 0 offen offset:32")
    A(f"  v_lshlrev_b32 v4, 7, v{q}"); A(f"  v_lshl_add_u32 v4, v{n}, 1, v4")
    for k in range(4): A(f"  buffer_load_ushort v{100+k}, v4, s[48:51], 0 offen offset:{32*k}")
    A(f"  v_lshlrev_b32 v4, 2, v{q}")
    A("  buffer_load_ushort v104, v4, s[20:23], 0 offen"); A("  buffer_load_ushort v105, v4, s[20:23], 0 offen offset:2")
    A("  s_sub_u32 s52, s35, 8"); A(f"  s_mul_i32 s52, s52, {GPW*16}")
    A(f"  v_add_u32 v5, s52, v{n}")
    A("  s_mul_i32 s53, s3, 1250")
    for j in range(GPW):
        A(f"  v_add_u32 v6, s53, v5")
        if j: A(f"  v_add_u32 v6, {16*j}, v6")
        A(f"  v_lshlrev_b32 v7, 1, v6")
        A(f"  buffer_load_ushort v{16+8*j}, v7, s[12:15], 0 offen")
        A(f"  v_lshlrev_b32 v7, 5, v6")
        A(f"  v_lshl_add_u32 v7, v{q}, 3, v7")
        A(f"  buffer_load_dwordx2 v[{22+8*j}:{23+8*j}], v7, s[8:11], 0 offen")
    A(f"  s_waitcnt vmcnt({2*GPW})")
    A("  v_lshl_or_b32 v108, v97, 16, v96"); A("  v_lshl_or_b32 v112, v99, 16, v98")
    A("  v_lshl_or_b32 v116, v101, 16, v100"); A("  v_lshl_or_b32 v117, v103, 16, v102")
    A("  v_mov_b32 v118, v116"); A("  v_mov_b32 v119, v117")
    for r in (109, 110, 111, 113, 114, 115, 121, 122, 123): A(f"  v_mov_b32 v{r}, 0")
    A("  v_lshlrev_b32 v104, 16, v104"); A("  v_lshlrev_b32 v105, 16, v105")
    A("  s_mov_b32 s54, 0xffff0000"); A(f"  s_mov_b32 s55, {f2u(-10.0):#x}"); A(f"  s_mov_b32 s56, {f2u(LOG2E):#x}")
    A("  s_waitcnt vmcnt(0)")
    for j in range(GPW):
        b = 16 + 8*j
        A(f"  v_lshlrev_b32 v8, 16, v{b}")
        A(f"  v_sub_f32 v9, v8, v104"); A(f"  v_sub_f32 v10, v8, v105")
        for step, op in enumerate(["sq", "m10", "exp"]):
            A(f"  v_cvt_pk_bf16_f32 v11, v9, v10")
            A(f"  v_lshlrev_b32 v9, 16, v11"); A(f"  v_and_b32 v10, s54, v11")
            if op == "sq":
                A(f"  v_mul_f32 v9, v9, v9"); A(f"  v_mul_f32 v10, v10, v10")
            elif op == "m10":
                A(f"  v_mul_f32 v9, s55, v9"); A(f"  v_mul_f32 v10, s55, v10")
            else:
                A(f"  v_mul_f32 v9, s56, v9"); A(f"  v_mul_f32 v10, s56, v10")
                A(f"  v_exp_f32 v9, v9"); A(f"  v_exp_f32 v10, v10"); A(f"  s_nop 0")
        A(f"  v_cvt_pk_bf16_f32 v120, v9, v10")
        A(f"  s_nop 1")
        A(f"  v_mfma_f32_16x16x32_bf16 v[{b}:{b+3}], v[108:111], v[120:123], 0")
        A(f"  v_mfma_f32_16x16x32_bf16 v[96:99], v[112:115], v[120:123], 0")
        A(f"  s_nop 7")
        A(f"  v_cvt_pk_bf16_f32 v{b+4}, v96, v97")
        A(f"  v_cvt_pk_bf16_f32 v{b+5}, v98, v99")
    stampk(k=40)
    if DMA:
        A("  s_load_dwordx2 s[36:37], s[0:1], 72"); A("  s_waitcnt lgkmcnt(0)")
        srd(20, 36, 512)
        A(f"  v_lshlrev_b32 v4, 7, v{q}"); A(f"  v_lshl_add_u32 v4, v{n}, 1, v4")
        for k in range(4): A(f"  buffer_load_ushort v{100+k}, v4, s[20:23], 0 offen offset:{32*k}")
        A("  s_waitcnt vmcnt(0)")
        A("  v_lshl_or_b32 v112, v101, 16, v100"); A("  v_lshl_or_b32 v113, v103, 16, v102")
        A("  v_mov_b32 v114, v112"); A("  v_mov_b32 v115, v113")
    A("  s_sub_u32 s57, s35, 8"); A("  s_lshl_b32 s58, s57, 2")
    A(f"  v_mov_b32 v4, {FLG}"); A("  v_add_u32 v4, s58, v4")
    A("  s_mov_b32 s59, 1")
    poll(4, F_FIN, 59, "L_ep_poll", 6, 58, int(os.environ.get("ESLEEP", "2")))
    stampk(k=41)
    A(f"  s_mul_i32 s57, s57, {GPW*BS}"); A(f"  s_add_u32 s57, s57, {WB}")
    A("  v_lshlrev_b32 v4, 4, v1"); A("  v_add_u32 v4, s57, v4")
    A(f"  v_mov_b32 v124, {OOB:#x}"); A("  s_movk_i32 s57, 1250")
    for j in range(GPW):
        b = 16 + 8*j
        acc = 96 + 4*(j % 2)
        if j == 0:
            A(f"  ds_read_b128 v[96:99], v4 offset:0")
        if j + 1 < GPW:
            jn = j + 1
            A(f"  ds_read_b128 v[{96+4*(jn%2)}:{99+4*(jn%2)}], v4 offset:{(jn//5)*PB + (jn%5)*1024}")
            A(f"  s_waitcnt lgkmcnt(1)")
        else:
            A(f"  s_waitcnt lgkmcnt(0)")
        if DMA:
            A(f"  v_cvt_pk_bf16_f32 v104, v{acc}, v{acc+1}"); A(f"  v_cvt_pk_bf16_f32 v105, v{acc+2}, v{acc+3}")
            A(f"  v_lshlrev_b32 v12, 16, v104"); A(f"  v_and_b32 v13, s54, v104"); A(f"  v_lshlrev_b32 v14, 16, v105"); A(f"  v_and_b32 v125, s54, v105")
            A(f"  v_sub_f32 v8, v{acc}, v12"); A(f"  v_sub_f32 v9, v{acc+1}, v13"); A(f"  v_sub_f32 v10, v{acc+2}, v14"); A(f"  v_sub_f32 v11, v{acc+3}, v125")
            A(f"  v_cvt_pk_bf16_f32 v106, v8, v9"); A(f"  v_cvt_pk_bf16_f32 v107, v10, v11")
            A(f"  s_nop 1")
            A(f"  v_mfma_f32_16x16x32_bf16 v[120:123], v[112:115], v[104:107], 0")
            A(f"  s_nop 7")
            for k in range(4): A(f"  v_mul_f32 v{8+k}, v{120+k}, v{b+k}")
        else:
            for k in range(4): A(f"  v_mul_f32 v{8+k}, v{acc+k}, v{b+k}")
        A(f"  v_cvt_pk_bf16_f32 v104, v8, v9"); A(f"  v_cvt_pk_bf16_f32 v105, v10, v11")
        A(f"  v_lshlrev_b32 v12, 16, v104"); A(f"  v_and_b32 v13, s54, v104")
        A(f"  v_lshlrev_b32 v14, 16, v105"); A(f"  v_and_b32 v125, s54, v105")
        A(f"  v_sub_f32 v8, v8, v12"); A(f"  v_sub_f32 v9, v9, v13"); A(f"  v_sub_f32 v10, v10, v14"); A(f"  v_sub_f32 v11, v11, v125")
        A(f"  v_cvt_pk_bf16_f32 v106, v8, v9"); A(f"  v_cvt_pk_bf16_f32 v107, v10, v11")
        A(f"  v_add_u32 v6, {16*j}, v5")
        A(f"  v_cmp_gt_u32 vcc, s57, v6")
        A(f"  v_mfma_f32_16x16x32_bf16 v[108:111], v[116:119], v[104:107], 0")
        A(f"  v_add_u32 v6, s53, v6"); A(f"  v_lshlrev_b32 v6, 5, v6"); A(f"  v_lshl_add_u32 v6, v{q}, 3, v6")
        A(f"  v_cndmask_b32 v6, v124, v6, vcc")
        A(f"  v_lshlrev_b32 v8, 16, v{b+4}"); A(f"  v_and_b32 v9, s54, v{b+4}"); A(f"  v_lshlrev_b32 v10, 16, v{b+5}"); A(f"  v_and_b32 v11, s54, v{b+5}")
        A(f"  v_lshlrev_b32 v12, 16, v{b+6}"); A(f"  v_and_b32 v13, s54, v{b+6}"); A(f"  v_lshlrev_b32 v14, 16, v{b+7}"); A(f"  v_and_b32 v125, s54, v{b+7}")
        A(f"  v_fma_f32 v12, v108, v8, v12"); A(f"  v_fma_f32 v13, v109, v9, v13"); A(f"  v_fma_f32 v14, v110, v10, v14"); A(f"  v_fma_f32 v125, v111, v11, v125")
        A(f"  v_cvt_pk_bf16_f32 v{b+4}, v12, v13"); A(f"  v_cvt_pk_bf16_f32 v{b+5}, v14, v125")
        A(f"  buffer_store_dwordx2 v[{b+4}:{b+5}], v6, s[16:19], 0 offen")

def gen_k2():
    k2_prologue()
    gen_gwave()
    A("L_k2_end:")
    A("  s_endpgm")
    gen_iwave()

if __name__ == "__main__":
    A(f"; @launch kernel=k1_kernel grid=(256,1,1) block=(1024,1,1) lds={gen.K1_LDS}")
    A(f"; @launch kernel=k2_kernel grid=(256,1,1) block=(1024,1,1) lds={K2_LDS}")
    A('.amdgcn_target "amdgcn-amd-amdhsa--gfx950"')
    A(".text")
    gen.STAMP = False
    gen_k1()
    gen_k2()
    A('.section .rodata,"a"')
    A(".p2align 6")
    desc_block("k1_kernel", 128)
    A(".p2align 6")
    desc_block("k2_kernel", 128, 100)
    lines = [l for l in out if l is not None]
    open(sys.argv[1], "w").write("\n".join(lines) + "\n")
```

```python
from gen import *
import gen, os, sys

CAP = 128
BS = 528
NGW = 8; GPW = 10; NIW = 8
PB = 80 * BS
WB = PB
SEL = 126976
LIST = SEL + NGW * 1024
CNT = LIST + NGW * 256
FLG = CNT + 1024
DMA = os.environ.get("DMA", "0") == "1"
RING = FLG + 128 + ((-(FLG + 128)) % 1024)
K2_LDS = (RING + NGW * 3072) if DMA else (FLG + 128)
assert SEL >= 3 * PB and SEL % 1024 == 0 and CNT % 512 == 0
F_OVF, F_RDY, F_DONE, F_FIN, F_NDONE, F_LAST = 0, 4, 12, 32, 64, 68
DUMMY_X = 79 * BS
DUMMY_W = 0x00FFFFE0
OOB = 0x7FFFFF00
LOG2E = 1.4426950408889634
EXP = set(os.environ.get("EXP", "").split(","))
RAW_NT = os.environ.get("RAW_NT", "")
NCH = 8
F0 = False

def vr(b, n=4): return f"v[{b}:{b+n-1}]"
STAMP = os.environ.get("STAMP", "0") == "1"
def stamp_init():
    if not STAMP: return
    A("  s_memtime s[90:91]"); A("  s_memrealtime s[92:93]"); A("  s_waitcnt lgkmcnt(0)"); A("  v_mov_b32 v15, 0")
def stampk(k=None, sreg=None, add=0):
    if not STAMP: return
    A("  s_memtime s[94:95]"); A("  s_waitcnt lgkmcnt(0)"); A("  s_sub_u32 s94, s94, s90")
    if k is not None:
        A(f"  v_writelane_b32 v15, s94, {k}")
    else:
        A(f"  s_add_u32 s95, s{sreg}, {add}"); A("  s_mov_b32 m0, s95"); A("  v_writelane_b32 v15, s94, m0")
def stamp_flush():
    if not STAMP: return
    A("  s_memtime s[94:95]"); A("  s_waitcnt lgkmcnt(0)"); A("  s_sub_u32 s94, s94, s90"); A("  v_writelane_b32 v15, s94, 32")
    A("  s_memrealtime s[94:95]"); A("  s_waitcnt lgkmcnt(0)")
    A("  v_writelane_b32 v15, s92, 34"); A("  v_writelane_b32 v15, s94, 35")
    A("  s_load_dwordx2 s[44:45], s[0:1], 104"); A("  s_waitcnt lgkmcnt(0)")
    srd(48, 44, 256*16*256, 128 << 20)
    A("  s_lshl_b32 s44, s2, 4"); A("  s_add_u32 s44, s44, s35"); A("  s_lshl_b32 s44, s44, 8")
    A("  v_lshlrev_b32 v4, 2, v1"); A("  buffer_store_dword v15, v4, s[48:51], s44 offen"); A("  s_waitcnt vmcnt(0)")

def k2_prologue():
    A(".p2align 8"); A(".globl k2_kernel"); A(".type k2_kernel,@function"); A("k2_kernel:")
    A("  s_cmp_ge_u32 s2, 256"); A("  s_cbranch_scc1 L_k2_end")
    stamp_init()
    A("  s_load_dwordx2 s[4:5], s[0:1], 0")
    A("  s_load_dwordx2 s[6:7], s[0:1], 104")
    A("  s_and_b32 s3, s2, 7"); A("  s_lshl_b32 s3, s3, 5"); A("  s_lshr_b32 s36, s2, 3"); A("  s_add_u32 s3, s3, s36")
    A("  v_lshrrev_b32 v4, 6, v0"); A("  v_and_b32 v1, 63, v0"); A("  v_readfirstlane_b32 s35, v4")
    A("  s_waitcnt lgkmcnt(0)")
    srd(8, 4, E*32)
    srd(12, 6, NT*TILE_BYTES)
    srd(16, 6, NBIN*DESC_ROW, DESC_OFF)
    A("  s_cmp_ge_u32 s35, 8"); A("  s_cbranch_scc1 L_k2_iwave")

def lds_init():
    for r in (8, 9, 10, 11): A(f"  v_mov_b32 v{r}, 0")
    A("  v_lshlrev_b32 v5, 4, v0")
    def region(base, nbytes):
        n16 = nbytes // 16
        k = 0
        cur = None
        while k * 512 < n16:
            addr = base + k * 8192
            seg = addr // 65536
            if seg != cur:
                A(f"  v_add_u32 v6, {seg * 65536}, v5"); cur = seg
            off = addr - seg * 65536
            if (k + 1) * 512 <= n16:
                A(f"  ds_write_b128 v6, v[8:11] offset:{off}")
            else:
                A(f"  v_cmp_gt_u32 vcc, {n16 - k*512}, v0"); A("  s_and_saveexec_b64 s[40:41], vcc")
                A(f"  ds_write_b128 v6, v[8:11] offset:{off}"); A("  s_mov_b64 exec, s[40:41]")
            k += 1
    region(SEL, K2_LDS - SEL)
    region(0, PB)
    for r in (8, 9, 10, 11): A(f"  v_mov_b32 v{r}, {DUMMY_W:#x}")
    region(WB, 2 * PB)
    A("  s_waitcnt lgkmcnt(0)")

def poll(vaddr, off, sneed, label, vtmp, stmp, sleep=2):
    A(f"{label}:")
    A(f"  ds_read_b32 v{vtmp}, v{vaddr} offset:{off}")
    A(f"  s_waitcnt lgkmcnt(0)")
    A(f"  v_readfirstlane_b32 s{stmp}, v{vtmp}")
    A(f"  s_nop 3")
    A(f"  s_cmp_ge_u32 s{stmp}, s{sneed}")
    A(f"  s_cbranch_scc1 {label}_ok")
    A(f"  s_sleep {sleep}")
    A(f"  s_branch {label}")
    A(f"{label}_ok:")

def RR(st, i, k): return 16 + 32*st + 4*i + k
NSET = 4
def CA(st, r): return 80 + 2*st + r
def RK(st, r): return 88 + 2*st + r
def MK(st, r): return 64 + 4*st + 2*r
vCntB, vOne, vPerm, vL15, vTileJ, vOOB, vDescOff, vD0, vD1, vD2, vT0, vT1, vKB, vFlag = 96, 97, 98, 99, 100, 101, 102, 103, 104, 105, 106, 107, 108, 109

def ins_A(w, st):
    for r in range(2):
        A(f"  v_cmp_gt_i32 s[{MK(st,r)}:{MK(st,r)+1}], 0, v{w[r]}")
        A(f"  v_lshrrev_b32 v{CA(st,r)}, 22, v{w[r]}")
        A(f"  v_and_or_b32 v{CA(st,r)}, v{CA(st,r)}, s52, v{vCntB}")
    for r in range(2):
        A(f"  s_mov_b64 exec, s[{MK(st,r)}:{MK(st,r)+1}]")
        A(f"  ds_add_rtn_u32 v{RK(st,r)}, v{CA(st,r)}, v{vOne}")
    A(f"  s_mov_b64 exec, -1")

def ins_B(w, cw, st):
    for r in range(2):
        ca = CA(st,r); rk = RK(st,r)
        A(f"  s_mov_b64 exec, s[{MK(st,r)}:{MK(st,r)+1}]")
        A(f"  v_cmp_lt_u32 vcc, {CAP-1}, v{rk}")
        A(f"  v_min_u32 v{rk}, {CAP-1}, v{rk}")
        A(f"  v_mad_u32_u24 v{ca}, v{ca}, v{vKB}, s53")
        A(f"  s_or_b64 s[54:55], s[54:55], vcc")
        A(f"  v_lshl_add_u32 v{ca}, v{rk}, 2, v{ca}")
        A(f"  ds_write_b32 v{ca}, v{w[r]} offset:{WB}")
        A(f"  v_lshrrev_b32 v{rk}, 1, v{ca}")
        A(f"  ds_write_b16{'_d16_hi' if r else ''} v{rk}, v{cw}")
    A(f"  s_mov_b64 exec, -1")

def ins_set(st):
    ops = []
    def emitA(i):
        ins_A((RR(st,i,0), RR(st,i,1)), i % NSET); ops.extend([('a', i)]*2)
    def emitB(i):
        last = max(k for k, o in enumerate(ops) if o == ('a', i))
        A(f"  s_waitcnt lgkmcnt({min(len(ops) - 1 - last, 15)})")
        ins_B((RR(st,i,0), RR(st,i,1)), RR(st,i,2), i % NSET); ops.extend([('w', i)]*4)
    for i in range(NSET): emitA(i)
    for i in range(8):
        emitB(i)
        if i + NSET < 8: emitA(i + NSET)

def iw_T0(dst, c_sreg, add=0):
    A(f"  s_add_u32 s{dst}, s{c_sreg}, {add}")
    if os.environ.get("CROT"): A(f"  s_add_u32 s{dst}, s{dst}, s51")
    A(f"  s_and_b32 s{dst}, s{dst}, 1")
    A(f"  s_mul_i32 s{dst}, s{dst}, 250")
    A(f"  s_add_u32 s{dst}, s{dst}, s60")

def iw_issue_raw(st, desc, c_sreg, add):
    iw_T0(57, c_sreg, add)
    A(f"  s_mul_i32 s57, s57, {TILE_BYTES}")
    for i in range(8):
        A(f"  ds_bpermute_b32 v{RR(st,i,0)}, v{vPerm}, v{desc} offset:{16*i}")
    for i in range(8):
        d = RR(st,i,0)
        A(f"  s_waitcnt lgkmcnt({7-i})")
        A(f"  v_and_b32 v{vT0}, 0xffff, v{d}")
        A(f"  v_lshrrev_b32 v{vT1}, 16, v{d}")
        A(f"  v_add_u32 v{vT0}, v{vT0}, v{vL15}")
        A(f"  v_cmp_lt_u32 vcc, v{vT0}, v{vT1}")
        A(f"  v_mad_u32_u24 v{vT0}, v{vT0}, 12, v{vTileJ}")
        A(f"  s_nop 0")
        A(f"  v_cndmask_b32 v{vT0}, v{vOOB}, v{vT0}, vcc")
        if "sc1" in RAW_NT: A(f"  buffer_load_dwordx4 v[{d}:{d+3}], v{vT0}, s[12:15], s57 offen{RAW_NT}")
        else: A(f"  buffer_load_dwordx3 v[{d}:{d+2}], v{vT0}, s[12:15], s57 offen{RAW_NT}")
        if i < 7: A(f"  s_add_u32 s57, s57, {4*TILE_BYTES}")

def iw_desc_load(dst, c_sreg, add):
    A(f"  s_add_u32 s59, s{c_sreg}, {add}")
    if os.environ.get("CROT"): A(f"  s_add_u32 s59, s59, s51")
    A(f"  s_lshr_b32 s58, s59, 1")
    if os.environ.get("CROT"): A(f"  s_and_b32 s58, s58, 3")
    if os.environ.get("ROT", "0") == "1":
        A(f"  s_add_u32 s58, s58, s2"); A(f"  s_and_b32 s58, s58, 3")
    if os.environ.get("ROT", "0") == "2":
        A(f"  s_lshr_b32 s57, s2, 1"); A(f"  s_add_u32 s58, s58, s57"); A(f"  s_and_b32 s58, s58, 3")
    A(f"  s_lshl_b32 s58, s58, 8")
    A(f"  s_add_u32 s58, s58, s3")
    A(f"  s_lshl_b32 s58, s58, 9")
    A(f"  s_and_b32 s59, s59, 1")
    A(f"  s_mul_i32 s59, s59, 250")
    A(f"  s_add_u32 s59, s59, s60")
    A(f"  s_add_u32 s58, s58, s59")
    A(f"  s_lshl_b32 s58, s58, 2")
    A(f"  buffer_load_dword v{dst}, v{vDescOff}, s[16:19], s58 offen{RAW_NT}")

def iw_chunk(st):
    t = f"L_iw{st}"
    A(f"  s_lshr_b32 s87, s61, 1")
    A(f"  s_mul_i32 s87, s87, {NGW}")
    stampk(sreg=61, add=0)
    poll(vFlag, F_DONE + 4*st, 87, f"{t}_poll", vT0, 88, int(os.environ.get("ISLEEP", "4")))
    A(f"  v_mov_b32 v{vCntB}, {CNT + 512*st}")
    A(f"  s_mov_b32 s53, {(PB*st - (CNT + 512*st)*(BS//4)) & 0xffffffff:#x}")
    A(f"  s_waitcnt vmcnt(9)")
    stampk(sreg=61, add=8)
    ins_set(st)
    A(f"  v_and_b32 v{vT0}, 0xffff, v{vD0}")
    A(f"  v_lshrrev_b32 v{vT1}, 16, v{vD0}")
    A(f"  v_add_u32 v{vT0}, 16, v{vT0}")
    A(f"  v_cmp_lt_u32 s[80:81], v{vT0}, v{vT1}")
    iw_T0(86, 61)
    A(f"{t}_long:")
    A(f"  s_cmp_eq_u64 s[80:81], 0")
    A(f"  s_cbranch_scc1 {t}_long_done")
    A(f"  s_ff1_i32_b64 s82, s[80:81]")
    A(f"  s_bitset0_b64 s[80:81], s82")
    A(f"  v_readlane_b32 s83, v{vD0}, s82")
    A(f"  s_add_u32 s84, s86, s82")
    A(f"  s_mul_i32 s84, s84, {TILE_BYTES}")
    A(f"  s_lshr_b32 s85, s83, 16")
    A(f"  s_and_b32 s83, s83, 0xffff")
    A(f"  s_add_u32 s83, s83, 16")
    A(f"{t}_long_win:")
    A(f"  v_add_u32 v{vT0}, s83, v1")
    A(f"  v_cmp_gt_u32 vcc, s85, v{vT0}")
    A(f"  v_mul_u32_u24 v{vT0}, 12, v{vT0}")
    A(f"  s_nop 0")
    A(f"  v_cndmask_b32 v{vT0}, v{vOOB}, v{vT0}, vcc")
    L = RR(st,0,0)
    if "sc1" in RAW_NT: A(f"  buffer_load_dwordx4 v[{L}:{L+3}], v{vT0}, s[12:15], s84 offen{RAW_NT}")
    else: A(f"  buffer_load_dwordx3 v[{L}:{L+2}], v{vT0}, s[12:15], s84 offen")
    A(f"  s_waitcnt vmcnt(0)")
    ins_A((L, L+1), 0)
    A(f"  s_waitcnt lgkmcnt(0)")
    ins_B((L, L+1), L+2, 0)
    A(f"  s_add_u32 s83, s83, 64")
    A(f"  s_cmp_lt_u32 s83, s85")
    A(f"  s_cbranch_scc1 {t}_long_win")
    A(f"  s_branch {t}_long")
    A(f"{t}_long_done:")
    A(f"  s_cmp_eq_u64 s[54:55], 0")
    A(f"  s_cbranch_scc1 {t}_noovf")
    A(f"  ds_write_b32 v{vFlag}, v{vOne} offset:{F_OVF}")
    A(f"{t}_noovf:")
    A(f"  s_waitcnt lgkmcnt(0)")
    A(f"  s_mov_b64 exec, 1")
    A(f"  ds_add_u32 v{vFlag}, v{vOne} offset:{F_RDY + 4*st}")
    A(f"  s_mov_b64 exec, -1")
    stampk(sreg=61, add=16)
    if os.environ.get('IPRIO0'): A(f"  s_setprio {os.environ.get('IPRIO', '3')}")
    PFN = int(os.environ.get("PFN", "0"))
    if PFN and st == int(os.environ.get("PFST", "0")):
        A(f"  s_cmp_eq_u32 s61, {0 if st == 0 else 7}"); A(f"  s_cbranch_scc1 {t}_nopf")
        A(f"  s_add_u32 s82, s61, {0 if st == 0 else 1}"); A(f"  s_lshr_b32 s82, s82, 1")
        if os.environ.get("ROT", "0") == "1":
            A(f"  s_add_u32 s82, s82, s2"); A(f"  s_and_b32 s82, s82, 3")
        A(f"  s_mul_i32 s82, s82, 20165")
        A(f"  s_lshr_b32 s83, s2, 3"); A(f"  s_lshl_b32 s83, s83, 9"); A(f"  s_lshl_b32 s84, s60, 1"); A(f"  s_add_u32 s83, s83, s84")
        A(f"  v_add_u32 v{vT0}, s83, v1")
        A(f"  v_cmp_gt_u32 vcc, {PFN}, v{vT0}") if PFN <= 64 else (A(f"  s_mov_b32 s84, {PFN}"), A(f"  v_cmp_gt_u32 vcc, s84, v{vT0}"))
        A(f"  v_add_u32 v{vT0}, s82, v{vT0}"); A(f"  v_lshlrev_b32 v{vT0}, 7, v{vT0}")
        A(f"  v_cndmask_b32 v{vT0}, v{vOOB}, v{vT0}, vcc")
        A(f"  buffer_load_dword v110, v{vT0}, s[8:11], 0 offen")
        A(f"{t}_nopf:")
    A(f"  s_add_u32 s62, s61, 2")
    A(f"  s_cmp_ge_u32 s62, {NCH}")
    A(f"  s_cbranch_scc1 {t}_noraw")
    A(f"  s_waitcnt vmcnt(0)")
    iw_issue_raw(st, vD2, 61, 2)
    A(f"  s_add_u32 s62, s61, 3")
    A(f"  s_cmp_ge_u32 s62, {NCH}")
    A(f"  v_mov_b32 v{vD0}, v{vD1}")
    A(f"  v_mov_b32 v{vD1}, v{vD2}")
    A(f"  s_cbranch_scc1 {t}_nodesc")
    iw_desc_load(vD2, 61, 3)
    A(f"  s_branch {t}_nodesc")
    A(f"{t}_noraw:")
    A(f"  s_waitcnt vmcnt(0)")
    A(f"  v_mov_b32 v{vD0}, v{vD1}")
    A(f"{t}_nodesc:")
    A(f"  s_add_u32 s61, s61, 1")

def slow_parity():
    c0 = (0 - CNT*(BS//4)) & 0xffffffff
    c1 = (PB - (CNT + 512)*(BS//4)) & 0xffffffff
    A("  s_and_b32 s88, s61, 1"); A("  s_cmp_eq_u32 s88, 0")
    A(f"  s_cselect_b32 s53, {c0:#x}, s53") if False else None
    A(f"  s_mov_b32 s53, {c0:#x}"); A(f"  s_mov_b32 s89, {c1:#x}"); A("  s_cselect_b32 s53, s53, s89")
    A(f"  s_lshl_b32 s89, s88, 9"); A(f"  s_add_u32 s89, s89, {CNT}"); A(f"  v_mov_b32 v{vCntB}, s89")
    A(f"  s_lshl_b32 s89, s88, 2"); A(f"  v_add_u32 v{vT1}, s89, v{vFlag}")

def gen_iw_slow():
    A(f"  s_mov_b32 s87, {NIW * (NCH // 2)}")
    poll(vFlag, F_RDY + 4, 87, "L_sl_w", vT0, 88, 2)
    A(f"  ds_read_b32 v{vT0}, v{vFlag} offset:{F_OVF}"); A("  s_waitcnt lgkmcnt(0)")
    A(f"  v_readfirstlane_b32 s88, v{vT0}"); A("  s_nop 3"); A("  s_cmp_eq_u32 s88, 0"); A("  s_cbranch_scc1 L_iw_epi")
    A("  s_setprio 0")
    A("  s_mov_b32 s62, 0")
    A("L_sl_q:")
    iw_desc_load(vD0, 62, 0)
    iw_T0(86, 62)
    A("  s_mov_b32 s82, 0")
    A("  s_waitcnt vmcnt(0)")
    A("L_sl_tile:")
    A(f"  v_readlane_b32 s83, v{vD0}, s82")
    A("  s_add_u32 s84, s86, s82"); A(f"  s_mul_i32 s84, s84, {TILE_BYTES}")
    A("  s_lshr_b32 s85, s83, 16"); A("  s_and_b32 s83, s83, 0xffff")
    A("L_sl_win:")
    A("  s_cmp_ge_u32 s83, s85"); A("  s_cbranch_scc1 L_sl_next")
    slow_parity()
    A("  s_lshr_b32 s87, s61, 1"); A(f"  s_mul_i32 s87, s87, {NGW}")
    poll(vT1, F_DONE, 87, "L_sl_d", vT0, 88, 2)
    A(f"  v_add_u32 v{vT0}, s83, v1"); A(f"  v_cmp_gt_u32 vcc, s85, v{vT0}"); A("  v_cmp_gt_u32 s[80:81], 8, v1")
    A(f"  v_mul_u32_u24 v{vT0}, 12, v{vT0}"); A("  s_and_b64 vcc, vcc, s[80:81]"); A("  s_nop 1")
    A(f"  v_cndmask_b32 v{vT0}, v{vOOB}, v{vT0}, vcc")
    L = RR(0,0,0)
    A(f"  buffer_load_dwordx3 v[{L}:{L+2}], v{vT0}, s[12:15], s84 offen")
    A("  s_waitcnt vmcnt(0)")
    ins_A((L, L+1), 0); A("  s_waitcnt lgkmcnt(0)"); ins_B((L, L+1), L+2, 0)
    A("  s_waitcnt lgkmcnt(0)")
    A("  s_mov_b64 exec, 1"); A(f"  ds_add_u32 v{vT1}, v{vOne} offset:{F_RDY}"); A("  s_mov_b64 exec, -1")
    A("  s_add_u32 s61, s61, 1"); A("  s_add_u32 s83, s83, 8"); A("  s_branch L_sl_win")
    A("L_sl_next:")
    A("  s_add_u32 s82, s82, 1"); A("  s_cmp_lt_u32 s82, 32"); A("  s_cbranch_scc1 L_sl_tile")
    A("  s_add_u32 s62, s62, 1"); A(f"  s_cmp_lt_u32 s62, {NCH}"); A("  s_cbranch_scc1 L_sl_q")
    A("  s_mov_b32 s63, 1")
    A("L_sl_idle:")
    A(f"  ds_read_b32 v{vT0}, v{vFlag} offset:{F_LAST}"); A("  s_waitcnt lgkmcnt(0)")
    A(f"  v_readfirstlane_b32 s88, v{vT0}"); A("  s_nop 3")
    A("  s_cmp_eq_u32 s88, 0"); A("  s_cbranch_scc1 L_sl_cont")
    A("  s_cmp_ge_u32 s61, s88"); A("  s_cbranch_scc1 L_iw_epi")
    A("L_sl_cont:")
    slow_parity()
    A("  s_lshr_b32 s87, s61, 1"); A(f"  s_mul_i32 s87, s87, {NGW}")
    A(f"  ds_read_b32 v{vT0}, v{vT1} offset:{F_DONE}"); A("  s_waitcnt lgkmcnt(0)")
    A(f"  v_readfirstlane_b32 s88, v{vT0}"); A("  s_nop 3")
    A("  s_cmp_ge_u32 s88, s87"); A("  s_cbranch_scc1 L_sl_go")
    A("  s_sleep 2"); A("  s_branch L_sl_idle")
    A("L_sl_go:")
    A("  s_cmp_eq_u32 s63, 0"); A("  s_cbranch_scc1 L_sl_sig")
    A("  s_mov_b32 s63, 0")
    A("  s_mov_b64 exec, 1"); A(f"  ds_add_rtn_u32 v{vT0}, v{vFlag}, v{vOne} offset:{F_NDONE}"); A("  s_waitcnt lgkmcnt(0)")
    A(f"  v_readfirstlane_b32 s88, v{vT0}"); A("  s_mov_b64 exec, -1"); A("  s_nop 2")
    A(f"  s_cmp_lg_u32 s88, {NIW-1}"); A("  s_cbranch_scc1 L_sl_sig")
    A("  s_add_u32 s88, s61, 1"); A(f"  v_mov_b32 v{vT0}, s88"); A(f"  ds_write_b32 v{vFlag}, v{vT0} offset:{F_LAST}"); A("  s_waitcnt lgkmcnt(0)")
    A("L_sl_sig:")
    A("  s_mov_b64 exec, 1"); A(f"  ds_add_u32 v{vT1}, v{vOne} offset:{F_RDY}"); A("  s_mov_b64 exec, -1")
    A("  s_add_u32 s61, s61, 1"); A("  s_branch L_sl_idle")

def gen_iwave():
    A("L_k2_iwave:")
    A(f"  s_setprio {os.environ.get('IPRIO0', os.environ.get('IPRIO', '3'))}")
    A("  s_sub_u32 s60, s35, 8")
    A("  s_lshl_b32 s60, s60, 5")
    A("  s_mov_b32 s52, 0x1fc")
    if os.environ.get("CROT"):
        A(f"  s_lshr_b32 s51, s2, {os.environ['CROT']}"); A("  s_and_b32 s51, s51, 1")
    A("  s_mov_b64 s[54:55], 0")
    A(f"  v_mov_b32 v{vOOB}, {OOB:#x}")
    A(f"  v_add_u32 v{vDescOff}, s60, v1")
    A(f"  v_cmp_gt_u32 vcc, 250, v{vDescOff}")
    A(f"  v_cmp_gt_u32 s[40:41], 32, v1")
    A(f"  v_lshlrev_b32 v{vDescOff}, 2, v1")
    A(f"  s_and_b64 vcc, vcc, s[40:41]")
    A(f"  s_nop 1")
    A(f"  v_cndmask_b32 v{vDescOff}, v{vOOB}, v{vDescOff}, vcc")
    A("  s_mov_b32 s61, 0")
    if F0:
        A(f"  v_mov_b32 v{vFlag}, {FLG}")
        A("  s_barrier")
        A("  s_cmp_lg_u32 s35, 8"); A("  s_cbranch_scc1 L_i_lpoll")
        A("L_i_nw:")
        A(f"  ds_read_b64 v[16:17], v{vFlag} offset:24"); A("  s_waitcnt lgkmcnt(0)")
        A("  v_readfirstlane_b32 s28, v16"); A("  v_readfirstlane_b32 s29, v17"); A("  s_nop 3")
        A("  s_cmp_lg_u32 s28, 0"); A("  s_cbranch_scc1 L_i_nok")
        A("  s_cmp_eq_u32 s97, 0"); A("  s_cbranch_scc1 L_i_nok"); A("  s_sub_u32 s97, s97, 1")
        A("  s_sleep 2"); A("  s_branch L_i_nw")
        A("L_i_nok:")
        A("  s_and_b32 s62, s2, 7"); A("  s_lshl_b32 s62, s62, 13")
        A(f"  v_lshlrev_b32 v{vT1}, 3, v1")
        A("L_i_rpoll:")
        for k in range(8):
            if k == 7: A("  s_bfm_b64 exec, 52, 0")
            A(f"  buffer_load_dwordx2 v[{16+2*k}:{17+2*k}], v{vT1}, s[24:27], s62 offen offset:{512*k} sc1")
        A("  s_mov_b64 exec, -1"); A("  s_waitcnt vmcnt(0)"); A("  s_mov_b64 s[64:65], -1")
        for k in range(8):
            if k == 7: A("  s_bfm_b64 exec, 52, 0")
            A(f"  v_cmp_ne_u64 vcc, s[28:29], v[{16+2*k}:{17+2*k}]")
            A(f"  s_cmp_eq_u64 vcc, 0"); A(f"  s_cselect_b64 s[64:65], s[64:65], 0")
        A("  s_mov_b64 exec, -1")
        A("  s_cmp_lg_u64 s[64:65], 0"); A("  s_cbranch_scc1 L_i_rok")
        A("  s_cmp_eq_u32 s97, 0"); A("  s_cbranch_scc1 L_i_rok"); A("  s_sub_u32 s97, s97, 1")
        A(f"  s_sleep {os.environ.get('RSLEEP', '8')}"); A("  s_branch L_i_rpoll")
        A("L_i_rok:")
        A(f"  v_mov_b32 v{vT0}, 1"); A(f"  ds_write_b32 v{vFlag}, v{vT0} offset:20")
        A("  s_branch L_i_rdone")
        A("L_i_lpoll:")
        A("  s_mov_b32 s62, 1")
        poll(vFlag, 20, 62, "L_i_lp", vT0, 63, 2)
        A("L_i_rdone:")
        stampk(k=42)
    iw_desc_load(vD0, 61, 0)
    iw_desc_load(vD1, 61, 1)
    iw_desc_load(vD2, 61, 2)
    A(f"  v_mov_b32 v{vOne}, 1")
    A(f"  v_mov_b32 v{vKB}, {BS//4}")
    A(f"  v_lshrrev_b32 v{vPerm}, 4, v1")
    A(f"  v_mov_b32 v{vTileJ}, {TILE_BYTES}")
    A(f"  v_mul_lo_u32 v{vTileJ}, v{vTileJ}, v{vPerm}")
    A(f"  v_lshlrev_b32 v{vPerm}, 2, v{vPerm}")
    A(f"  v_and_b32 v{vL15}, 15, v1")
    A(f"  v_mov_b32 v{vFlag}, {FLG}")
    TW = os.environ.get("TWARM", "0") == "1"
    if TW:
        A("  s_and_b32 s82, s2, 3" if os.environ.get("ROT", "0") == "1" else "  s_mov_b32 s82, 0")
        A("  s_lshl_b32 s82, s82, 8"); A("  s_add_u32 s82, s82, s3"); A("  s_mul_i32 s82, s82, 123")
        A(f"  v_add_u32 v{vT0}, s60, v1"); A(f"  v_mov_b32 v{vT1}, {TILE_BYTES}"); A(f"  v_mul_lo_u32 v{vT0}, v{vT0}, v{vT1}")
        A(f"  v_cmp_gt_u32 vcc, 32, v1"); A("  s_nop 1"); A(f"  v_cndmask_b32 v{vT0}, v{vOOB}, v{vT0}, vcc")
        A(f"  buffer_load_dword v110, v{vT0}, s[12:15], s82 offen")
    A(f"  s_waitcnt vmcnt({3 if TW else 2})")
    iw_issue_raw(0, vD0, 61, 0)
    A(f"  s_waitcnt vmcnt({10 if TW else 9})")
    iw_issue_raw(1, vD1, 61, 1)
    if not F0: A("  s_barrier")
    A("  s_waitcnt vmcnt(8)")
    A("L_iw_loop:")
    iw_chunk(0)
    iw_chunk(1)
    A(f"  s_cmp_lt_u32 s61, {NCH}")
    A("  s_cbranch_scc1 L_iw_loop")
    gen_iw_slow()
    A("L_iw_epi:")
    gen_epilogue()
    stamp_flush()
    A("  s_endpgm")

D = int(os.environ.get("GD", "2")); U = D + 1; LEAD = D + 2; MINT = D + 3
assert U % 3 == 0
B1A, B1B, DA, DB, A2 = 18, 22, 26, 30, 34
XR = lambda u: 38 + 4*(u % U)
WR = lambda u: 38 + 4*U + (u % U)
CR = lambda u: 38 + 5*U + (u % U)
B2 = lambda p: 38 + 6*U + 4*(p % 3)
assert 38 + 6*U + 12 <= 88
ACC = lambda j: 88 + 4*j
vLane4, vHalf16, vSelW, vSelR, vZero, vList, vG, vA, vA2, vS, vFl, vOne1, vBin, vLA = 2, 3, 4, 5, 6, 7, 8, 9, 10, 11, 12, 13, 14, 16
vF0 = DA if not DMA else 68
T0, T1, T2, T3 = vF0, vF0+1, vF0+2, vF0+3
sM1 = 44; sT = 45; sD = 46; sLeft = 47
sNB = 48
sTot = 58; sCI = 59; sCC = 60; sEnd = 61
sNBn = 64
sRing = 82
vRingR = 17
sLo = 80

def g_body(j, u):
    A(f"L_g_{j}_{u}:")
    if os.environ.get("GPRIO", "") == "iter": A(f"  s_setprio {u % 3}")
    if os.environ.get("GPRIO", "") == "iter1": A(f"  s_setprio {1 + u % 3}")
    if os.environ.get("GPRIO", "") == "iter2": A(f"  s_setprio {(u + j) % 4}")
    if os.environ.get("GPRIO", "") == "iter3": A(f"  s_setprio {[1, 3, 2][u % 3]}" )
    A(f"  s_waitcnt lgkmcnt(6)")
    A(f"  v_and_or_b32 v{vG}, v{WR(u+D)}, s{sM1}, v{vHalf16}")
    if "noload" not in EXP:
        A(f"  buffer_load_dwordx4 {vr(XR(u+D))}, v{vG}, s[8:11], 0 offen")
        A(f"  s_waitcnt vmcnt({D})")
    A(f"  v_mfma_f32_16x16x32_bf16 {vr(DA)}, {vr(XR(u))}, {vr(B1A)}, 0")
    A(f"  v_mfma_f32_16x16x32_bf16 {vr(DB)}, {vr(XR(u))}, {vr(B1B)}, 0")
    A(f"  v_readlane_b32 s{sD}, v{vList}, s{sT}")
    A(f"  s_add_u32 s{sT}, s{sT}, 1")
    A(f"  v_and_or_b32 v{vA2}, v{WR(u+2)}, 30, v{vSelW}")
    A(f"  v_add_u32 v{vA}, s{sD}, v{vLane4}")
    A(f"  ds_write_b16 v{vS}, v{vZero}")
    A(f"  ds_write_b16 v{vA2}, v{CR(u+2)}")
    A(f"  v_mov_b32 v{vS}, v{vA2}")
    A(f"  ds_read_b64_tr_b16 {vr(B2(u+2),2)}, v{vSelR}")
    A(f"  ds_read_b64_tr_b16 {vr(B2(u+2)+2,2)}, v{vSelR} offset:512")
    A(f"  ds_read_b32 v{WR(u+D+2)}, v{vA} offset:{WB}")
    A(f"  v_lshrrev_b32 v{vA}, 1, v{vA}")
    A(f"  ds_read_u16 v{CR(u+D+2)}, v{vA}")
    A(f"  v_cvt_pk_bf16_f32 v{A2}, v{DA}, v{DA+1}")
    A(f"  v_cvt_pk_bf16_f32 v{A2+1}, v{DA+2}, v{DA+3}")
    A(f"  v_cvt_pk_bf16_f32 v{A2+2}, v{DB}, v{DB+1}")
    A(f"  v_cvt_pk_bf16_f32 v{A2+3}, v{DB+2}, v{DB+3}")
    A(f"  s_cmp_eq_u32 s{sT}, s{sTot}")
    A(f"  s_cbranch_scc1 L_gc_{j}_{u}")
    A(f"L_gb_{j}_{u}:")
    A(f"  s_sub_u32 s{sLeft}, s{sLeft}, 1")
    A(f"  v_mfma_f32_16x16x32_bf16 {vr(ACC(j))}, {vr(A2)}, {vr(B2(u))}, {vr(ACC(j))}")
    A(f"  s_cbranch_scc1 L_gn_{j+1}_{(u+1)%U}")
    if u == U-1:
        A(f"  s_branch L_g_{j}_0")

def g_body_dma(j, u):
    A(f"L_g_{j}_{u}:")
    A(f"  s_waitcnt lgkmcnt(6)")
    A(f"  s_mov_b32 m0, s{sRing + (u+D) % 3}")
    A(f"  v_and_or_b32 v{vG}, v{WR(u+D)}, s{sM1}, v{vHalf16}")
    A(f"  buffer_load_dwordx4 v{vG}, s[8:11], 0 offen lds")
    A(f"  s_waitcnt vmcnt({D})")
    A(f"  ds_read_b64_tr_b16 {vr(DA,2)}, v{vRingR} offset:{(u % 3)*1024}")
    A(f"  ds_read_b64_tr_b16 {vr(DA+2,2)}, v{vRingR} offset:{(u % 3)*1024 + 512}")
    A(f"  v_readlane_b32 s{sD}, v{vList}, s{sT}")
    A(f"  s_add_u32 s{sT}, s{sT}, 1")
    A(f"  v_and_or_b32 v{vA2}, v{WR(u+2)}, 30, v{vSelW}")
    A(f"  v_add_u32 v{vA}, s{sD}, v{vLane4}")
    A(f"  ds_write_b16 v{vS}, v{vZero}")
    A(f"  ds_write_b16 v{vA2}, v{CR(u+2)}")
    A(f"  v_mov_b32 v{vS}, v{vA2}")
    A(f"  ds_read_b64_tr_b16 {vr(B2(u+2),2)}, v{vSelR}")
    A(f"  ds_read_b64_tr_b16 {vr(B2(u+2)+2,2)}, v{vSelR} offset:512")
    A(f"  ds_read_b32 v{WR(u+D+2)}, v{vA} offset:{WB}")
    A(f"  v_lshrrev_b32 v{vA}, 1, v{vA}")
    A(f"  ds_read_u16 v{CR(u+D+2)}, v{vA}")
    A(f"  s_cmp_eq_u32 s{sT}, s{sTot}")
    A(f"  s_cbranch_scc1 L_gc_{j}_{u}")
    A(f"L_gb_{j}_{u}:")
    A(f"  s_sub_u32 s{sLeft}, s{sLeft}, 1")
    A(f"  s_waitcnt lgkmcnt(6)")
    A(f"  v_mfma_f32_16x16x32_bf16 {vr(ACC(j))}, {vr(DA)}, {vr(B2(u))}, {vr(ACC(j))}")
    A(f"  s_cbranch_scc1 L_gn_{j+1}_{(u+1)%U}")
    if u == U-1:
        A(f"  s_branch L_g_{j}_0")

def g_callstub(j, u):
    A(f"L_gc_{j}_{u}:")
    A(f"  s_call_b64 s[30:31], L_setup")
    A(f"  s_branch L_gb_{j}_{u}")

def g_next(j, u):
    A(f"L_gn_{j}_{u}:")
    if j == GPW:
        A(f"  s_add_u32 s{sCC}, s{sCC}, 1")
        stampk(sreg=sCC, add=0)
        A(f"  s_cmp_eq_u32 s{sCC}, s{sEnd}")
        A(f"  s_cbranch_scc1 L_g_end")
        A(f"  s_cmp_lg_u32 s{sCC}, {NCH}")
        A(f"  s_cbranch_scc1 L_gz_{u}")
        A(f"  s_nop 7")
        for jj in range(GPW):
            for k in range(4): A(f"  v_mov_b32 v{ACC(jj)+k}, 0")
        A(f"L_gz_{u}:")
        for k in range(0, GPW, 2):
            A(f"  s_mov_b64 s[{sNB+k}:{sNB+k+1}], s[{sNBn+k}:{sNBn+k+1}]")
        A(f"  s_branch L_gn_0_{u}")
        return
    A(f"  s_sub_u32 s{sLeft}, s{sNB+j}, 1")
    A(f"  s_cbranch_scc1 L_gn_{j+1}_{u}")
    A(f"  s_branch L_g_{j}_{u}")

def fill_own_bins(sreg_p):
    for k in range(4):
        A(f"  v_mov_b32 v{vF0+k}, {DUMMY_W:#x}")
        A(f"  v_mov_b32 v{vF0+4+k}, 0")
    A(f"  s_mul_i32 s76, s{sreg_p}, {PB}")
    A(f"  s_mul_i32 s77, s35, {GPW*BS}")
    A(f"  s_add_u32 s76, s76, s77")
    A(f"  v_add_u32 v{vA}, s76, v{vLA}")
    for k in range(5):
        A(f"  ds_write_b128 v{vA}, {vr(vF0)} offset:{WB + 1024*k}")
    A(f"  s_mov_b64 exec, 0x3ff")
    A(f"  ds_write_b128 v{vA}, {vr(vF0)} offset:{WB + 5120}")
    A(f"  s_mov_b64 exec, -1")
    A(f"  s_lshr_b32 s76, s76, 1")
    A(f"  v_add_u32 v{vA}, s76, v{vLA}")
    A(f"  ds_write_b128 v{vA}, {vr(vF0+4)}")
    A(f"  ds_write_b128 v{vA}, {vr(vF0+4)} offset:1024")
    A(f"  s_mov_b64 exec, 0x{(1<<37)-1:x}") if False else None
    A(f"  s_bfm_b64 exec, 37, 0")
    A(f"  ds_write_b128 v{vA}, {vr(vF0+4)} offset:2048")
    A(f"  s_mov_b64 exec, -1")

def g_setup():
    A("L_setup:")
    A(f"  s_waitcnt lgkmcnt(0)")
    stampk(sreg=sCI, add=17)
    A(f"  s_cmp_lt_i32 s{sCI}, 0")
    A(f"  s_cbranch_scc1 L_su_nosig")
    A(f"  s_and_b32 s75, s{sCI}, 1")
    fill_own_bins(75)
    A(f"  s_lshl_b32 s75, s75, 2")
    A(f"  v_add_u32 v{vA}, s75, v{vFl}")
    A(f"  s_waitcnt lgkmcnt(0)")
    A(f"  s_mov_b64 exec, 1")
    A(f"  ds_add_u32 v{vA}, v{vOne1} offset:{F_DONE}")
    A(f"  s_mov_b64 exec, -1")
    A("L_su_nosig:")
    A(f"  s_add_u32 s{sCI}, s{sCI}, 1")
    A(f"  v_lshrrev_b32 v{vG}, 2, v{vLA}")
    A(f"  s_lshl_b32 s76, s35, 8")
    A(f"  s_add_u32 s76, s76, {LIST}")
    A(f"  v_add_u32 v{vG}, s76, v{vG}")
    A(f"  s_cmp_lg_u32 s{sCI}, {NCH}")
    A(f"  s_cbranch_scc1 L_su_noovf")
    A(f"  ds_read_b32 v{vA2}, v{vFl} offset:{F_OVF}"); A(f"  s_waitcnt lgkmcnt(0)")
    A(f"  v_readfirstlane_b32 s77, v{vA2}"); A(f"  s_nop 3"); A(f"  s_cmp_eq_u32 s77, 0"); A(f"  s_cbranch_scc1 L_su_noovf")
    A(f"  s_mov_b32 s{sEnd}, 0x7fffffff")
    A("L_su_noovf:")
    A(f"  s_cmp_lt_u32 s{sCI}, s{sEnd}")
    A(f"  s_cbranch_scc1 L_su_real")
    A(f"  v_mov_b32 v{vList}, {DUMMY_X}")
    A(f"  s_mov_b32 s{sTot}, 0x7fffffff")
    A(f"  s_mov_b32 s{sT}, 0")
    A(f"  s_setpc_b64 s[30:31]")
    A("L_su_real:")
    A(f"  v_mov_b32 v{vList}, {DUMMY_X}")
    A(f"  ds_write_b32 v{vG}, v{vList}")
    A(f"  s_and_b32 s75, s{sCI}, 1")
    A(f"  s_lshl_b32 s77, s75, 2")
    A(f"  v_add_u32 v{vA}, s77, v{vFl}")
    A(f"  s_lshr_b32 s77, s{sCI}, 1")
    A(f"  s_add_u32 s77, s77, 1")
    A(f"  s_mul_i32 s77, s77, {NIW}")
    poll(vA, F_RDY, 77, "L_su_poll", vA2, 78, 2)
    A(f"  s_cmp_lt_u32 s{sCI}, {NCH}"); A(f"  s_cbranch_scc1 L_su_nolast")
    A(f"  ds_read_b32 v{vA2}, v{vFl} offset:{F_LAST}"); A(f"  s_waitcnt lgkmcnt(0)")
    A(f"  v_readfirstlane_b32 s77, v{vA2}"); A(f"  s_add_u32 s78, s{sCI}, 1"); A(f"  s_nop 2")
    A(f"  s_cmp_eq_u32 s77, s78"); A(f"  s_cselect_b32 s{sEnd}, s78, s{sEnd}")
    A("L_su_nolast:")
    A(f"  s_lshl_b32 s77, s75, 9")
    A(f"  s_mul_i32 s78, s35, {GPW*4}")
    A(f"  s_add_u32 s77, s77, s78")
    A(f"  s_add_u32 s77, s77, {CNT}")
    A(f"  v_lshrrev_b32 v{vA}, 2, v{vLA}")
    A(f"  v_add_u32 v{vA}, s77, v{vA}")
    A(f"  s_mov_b64 exec, 0x3ff")
    A(f"  v_mov_b32 v{T0}, 0")
    A(f"  s_mov_b64 exec, -1")
    A(f"  v_mov_b32 v{T0}, 0")
    A(f"  s_mov_b64 exec, 0x3ff")
    A(f"  ds_read_b32 v{T0}, v{vA}")
    A(f"  s_waitcnt lgkmcnt(0)")
    A(f"  ds_write_b32 v{vA}, v{vZero}")
    A(f"  s_mov_b64 exec, -1")
    A(f"  v_min_u32 v{T0}, {CAP}, v{T0}")
    A(f"  v_add_u32 v{T0}, 31, v{T0}")
    A(f"  v_lshrrev_b32 v{T0}, 5, v{T0}")
    A(f"  v_mov_b32 v{T1}, v{T0}")
    A(f"  s_mul_i32 s77, s75, {PB}")
    A(f"  s_mul_i32 s78, s35, {GPW*BS}")
    for sh in (1, 2, 4, 8):
        A(f"  s_nop 0") if sh > 1 else A(f"  s_add_u32 s77, s77, s78")
        A(f"  v_add_u32_dpp v{T1}, v{T1}, v{T1} row_shr:{sh} row_mask:0xf bank_mask:0xf bound_ctrl:0")
        A(f"  s_nop 0")
    A(f"  v_add_u32 v{T2}, s77, v{vBin}")
    A(f"  v_sub_u32 v{T3}, v{T1}, v{T0}")
    A(f"  v_lshl_add_u32 v{T3}, v{T3}, 2, s76")
    for i in range(4):
        A(f"  v_cmp_lt_u32 vcc, {i}, v{T0}")
        A(f"  s_and_saveexec_b64 s[78:79], vcc")
        A(f"  ds_write_b32 v{T3}, v{T2} offset:{4*i}")
        A(f"  s_mov_b64 exec, s[78:79]")
        if i < 3: A(f"  v_add_u32 v{T2}, 128, v{T2}")
    A(f"  ds_read_b32 v{vList}, v{vG}")
    for j in range(GPW):
        A(f"  v_readlane_b32 s{sNBn+j}, v{T0}, {j}")
    A(f"  v_readlane_b32 s77, v{T1}, {GPW-1}")
    A(f"  s_nop 2")
    A(f"  s_max_u32 s{sTot}, s77, {MINT}")
    A(f"  s_sub_u32 s77, s{sTot}, s77")
    A(f"  s_add_u32 s{sNBn+GPW-1}, s{sNBn+GPW-1}, s77")
    A(f"  s_mov_b32 s{sT}, 0")
    A(f"  s_waitcnt lgkmcnt(0)")
    A(f"  s_setpc_b64 s[30:31]")

def gen_gwave():
    A(f"  s_load_dwordx2 s[38:39], s[0:1], 72")
    PFL = int(os.environ.get("PFL", "0"))
    if PFL:
        A("  s_lshr_b32 s40, s2, 3"); A("  s_lshl_b32 s40, s40, 9"); A("  s_lshl_b32 s41, s35, 6"); A("  s_add_u32 s40, s40, s41")
        A("  v_add_u32 v16, s40, v1"); A("  v_lshlrev_b32 v16, 7, v16")
        for k in range((PFL + 16383) // 16384):
            A(f"  s_mov_b32 s42, {k*16384*128}")
            A(f"  buffer_load_dword v{76+k}, v16, s[8:11], s42 offen")
    lds_init()
    if DMA:
        A(f"  v_lshrrev_b32 v{vLane4}, 1, v1"); A(f"  v_lshlrev_b32 v{vLane4}, 2, v{vLane4}")
        A(f"  v_and_b32 v{vHalf16}, 1, v1"); A(f"  v_lshlrev_b32 v{vHalf16}, 4, v{vHalf16}")
        A(f"  s_mul_i32 s{sRing}, s35, 3072"); A(f"  s_add_u32 s{sRing}, s{sRing}, {RING}")
        A(f"  s_add_u32 s{sRing+1}, s{sRing}, 1024"); A(f"  s_add_u32 s{sRing+2}, s{sRing}, 2048")
        A(f"  v_lshl_add_u32 v{vRingR}, v1, 3, s{sRing}")
    else:
        A(f"  v_and_b32 v{vLane4}, 31, v1")
        A(f"  v_lshlrev_b32 v{vLane4}, 2, v{vLane4}")
        A(f"  v_lshrrev_b32 v{vHalf16}, 5, v1")
        A(f"  v_lshlrev_b32 v{vHalf16}, 4, v{vHalf16}")
    A(f"  v_lshlrev_b32 v{vLA}, 4, v1")
    A(f"  v_mul_u32_u24 v{vBin}, {BS}, v1")
    A(f"  s_mov_b32 s{sM1}, {DUMMY_W:#x}")
    A(f"  s_lshl_b32 s40, s35, 10")
    A(f"  s_add_u32 s40, s40, {SEL}")
    A(f"  v_and_b32 v20, 31, v1" if not DMA else f"  v_lshrrev_b32 v20, 1, v1")
    A(f"  v_lshl_add_u32 v{vSelW}, v20, 5, s40")
    A(f"  v_lshl_add_u32 v{vSelR}, v1, 3, s40")
    srd(28, 38, 512)
    A(f"  v_lshrrev_b32 v19, 4, v1")
    A(f"  v_and_b32 v18, 15, v1")
    A(f"  v_lshrrev_b32 v20, 1, v19")
    A(f"  v_lshlrev_b32 v20, 8, v20")
    A(f"  v_lshl_add_u32 v20, v18, 1, v20")
    for jj in range(8):
        A(f"  buffer_load_ushort v{DA+jj}, v20, s[28:31], 0 offen offset:{32*jj}")
    A(f"  v_mov_b32 v{vZero}, 0")
    A(f"  v_mov_b32 v{vFl}, {FLG}")
    A(f"  v_mov_b32 v{vOne1}, 1")
    A(f"  v_mov_b32 v{vS}, v{vSelW}")
    A(f"  v_and_b32 v21, 1, v19")
    A(f"  v_cmp_eq_u32 s[40:41], 0, v21")
    for u in range(U):
        for k in range(4):
            A(f"  v_mov_b32 v{XR(u)+k}, 0")
        A(f"  v_mov_b32 v{WR(u)}, {DUMMY_W:#x}")
        A(f"  v_mov_b32 v{CR(u)}, 0")
    for p in range(3):
        for k in range(4):
            A(f"  v_mov_b32 v{B2(p)+k}, 0")
    for j in range(GPW):
        for k in range(4):
            A(f"  v_mov_b32 v{ACC(j)+k}, 0")
    A(f"  s_waitcnt vmcnt(0)")
    for k in range(4):
        A(f"  v_lshl_or_b32 v{DA+k}, v{DA+1+2*k}, 16, v{DA+2*k}")
    for k in range(4):
        A(f"  v_cndmask_b32 v{B1A+k}, v{vZero}, v{DA+k}, s[40:41]")
        A(f"  v_cndmask_b32 v{B1B+k}, v{DA+k}, v{vZero}, s[40:41]")
    A("  s_barrier")
    if F0:
        A("  s_cmp_lg_u32 s35, 0"); A("  s_cbranch_scc1 L_g_nonon")
        A("  v_mov_b32 v76, s60"); A("  v_mov_b32 v77, s61")
        A(f"  ds_write_b64 v{vFl}, v[76:77] offset:24")
        A("L_g_nonon:")
    LATE = os.environ.get("GLATE", "0") == "1"
    if os.environ.get("GPRIO", "") == "st1" and not LATE: A("  s_setprio 1")
    A(f"  s_mov_b32 s{sCI}, -1")
    A(f"  s_mov_b32 s{sCC}, 0")
    A(f"  s_mov_b32 s{sEnd}, {NCH}")
    A(f"  s_call_b64 s[30:31], L_setup")
    if os.environ.get("GPRIO", "") == "st1" and LATE: A("  s_setprio 1")
    for k in range(0, GPW, 2):
        A(f"  s_mov_b64 s[{sNB+k}:{sNB+k+1}], s[{sNBn+k}:{sNBn+k+1}]")
    A(f"  s_add_u32 s{sLeft}, s{sNB}, {LEAD-1}")
    for j in range(GPW):
        for u in range(U):
            (g_body_dma if DMA else g_body)(j, u)
    for j in range(GPW):
        for u in range(U):
            g_callstub(j, u)
    for j in range(0, GPW+1):
        for u in range(U):
            g_next(j, u)
    g_setup()
    A("L_g_end:")
    A("  s_waitcnt vmcnt(0) lgkmcnt(0)")
    A("  s_nop 7")
    A(f"  s_mul_i32 s76, s35, {GPW*BS}")
    A(f"  s_add_u32 s76, s76, {WB}")
    A(f"  v_add_u32 v{vA}, s76, v{vLA}")
    for j in range(GPW):
        A(f"  ds_write_b128 v{vA}, {vr(ACC(j))} offset:{(j//5)*PB + (j%5)*1024}")
    A(f"  s_lshl_b32 s76, s35, 2")
    A(f"  v_add_u32 v{vA}, s76, v{vFl}")
    A(f"  s_waitcnt lgkmcnt(0)")
    A(f"  s_mov_b64 exec, 1")
    A(f"  ds_write_b32 v{vA}, v{vOne1} offset:{F_FIN}")
    A(f"  s_mov_b64 exec, -1")
    A(f"  s_waitcnt lgkmcnt(0)")
    stamp_flush()

def gen_epilogue():
    A("  s_load_dwordx2 s[36:37], s[0:1], 24")
    A("  s_load_dwordx2 s[38:39], s[0:1], 40")
    A("  s_load_dwordx4 s[40:43], s[0:1], 56")
    A("  s_load_dwordx4 s[44:47], s[0:1], 80")
    A("  s_waitcnt lgkmcnt(0)")
    srd(12, 36, E*2); srd(16, 46, E*32); srd(20, 38, 16); srd(24, 40, 256); srd(28, 42, 256); srd(48, 44, 512)
    n, q = 2, 3
    A(f"  v_and_b32 v{n}, 15, v1"); A(f"  v_lshrrev_b32 v{q}, 4, v1")
    A(f"  v_lshlrev_b32 v4, 6, v{q}"); A(f"  v_lshl_add_u32 v4, v{n}, 1, v4")
    A("  buffer_load_ushort v96, v4, s[28:31], 0 offen"); A("  buffer_load_ushort v97, v4, s[28:31], 0 offen offset:32")
    A("  buffer_load_ushort v98, v4, s[24:27], 0 offen"); A("  buffer_load_ushort v99, v4, s[24:27], 0 offen offset:32")
    A(f"  v_lshlrev_b32 v4, 7, v{q}"); A(f"  v_lshl_add_u32 v4, v{n}, 1, v4")
    for k in range(4): A(f"  buffer_load_ushort v{100+k}, v4, s[48:51], 0 offen offset:{32*k}")
    A(f"  v_lshlrev_b32 v4, 2, v{q}")
    A("  buffer_load_ushort v104, v4, s[20:23], 0 offen"); A("  buffer_load_ushort v105, v4, s[20:23], 0 offen offset:2")
    A("  s_sub_u32 s52, s35, 8"); A(f"  s_mul_i32 s52, s52, {GPW*16}")
    A(f"  v_add_u32 v5, s52, v{n}")
    A("  s_mul_i32 s53, s3, 1250")
    for j in range(GPW):
        A(f"  v_add_u32 v6, s53, v5")
        if j: A(f"  v_add_u32 v6, {16*j}, v6")
        A(f"  v_lshlrev_b32 v7, 1, v6")
        A(f"  buffer_load_ushort v{16+8*j}, v7, s[12:15], 0 offen")
        A(f"  v_lshlrev_b32 v7, 5, v6")
        A(f"  v_lshl_add_u32 v7, v{q}, 3, v7")
        A(f"  buffer_load_dwordx2 v[{22+8*j}:{23+8*j}], v7, s[8:11], 0 offen")
    A(f"  s_waitcnt vmcnt({2*GPW})")
    A("  v_lshl_or_b32 v108, v97, 16, v96"); A("  v_lshl_or_b32 v112, v99, 16, v98")
    A("  v_lshl_or_b32 v116, v101, 16, v100"); A("  v_lshl_or_b32 v117, v103, 16, v102")
    A("  v_mov_b32 v118, v116"); A("  v_mov_b32 v119, v117")
    for r in (109, 110, 111, 113, 114, 115, 121, 122, 123): A(f"  v_mov_b32 v{r}, 0")
    A("  v_lshlrev_b32 v104, 16, v104"); A("  v_lshlrev_b32 v105, 16, v105")
    A("  s_mov_b32 s54, 0xffff0000"); A(f"  s_mov_b32 s55, {f2u(-10.0):#x}"); A(f"  s_mov_b32 s56, {f2u(LOG2E):#x}")
    A("  s_waitcnt vmcnt(0)")
    for j in range(GPW):
        b = 16 + 8*j
        A(f"  v_lshlrev_b32 v8, 16, v{b}")
        A(f"  v_sub_f32 v9, v8, v104"); A(f"  v_sub_f32 v10, v8, v105")
        for step, op in enumerate(["sq", "m10", "exp"]):
            A(f"  v_cvt_pk_bf16_f32 v11, v9, v10")
            A(f"  v_lshlrev_b32 v9, 16, v11"); A(f"  v_and_b32 v10, s54, v11")
            if op == "sq":
                A(f"  v_mul_f32 v9, v9, v9"); A(f"  v_mul_f32 v10, v10, v10")
            elif op == "m10":
                A(f"  v_mul_f32 v9, s55, v9"); A(f"  v_mul_f32 v10, s55, v10")
            else:
                A(f"  v_mul_f32 v9, s56, v9"); A(f"  v_mul_f32 v10, s56, v10")
                A(f"  v_exp_f32 v9, v9"); A(f"  v_exp_f32 v10, v10"); A(f"  s_nop 0")
        A(f"  v_cvt_pk_bf16_f32 v120, v9, v10")
        A(f"  s_nop 1")
        A(f"  v_mfma_f32_16x16x32_bf16 v[{b}:{b+3}], v[108:111], v[120:123], 0")
        A(f"  v_mfma_f32_16x16x32_bf16 v[96:99], v[112:115], v[120:123], 0")
        A(f"  s_nop 7")
        A(f"  v_cvt_pk_bf16_f32 v{b+4}, v96, v97")
        A(f"  v_cvt_pk_bf16_f32 v{b+5}, v98, v99")
    stampk(k=40)
    if DMA:
        A("  s_load_dwordx2 s[36:37], s[0:1], 72"); A("  s_waitcnt lgkmcnt(0)")
        srd(20, 36, 512)
        A(f"  v_lshlrev_b32 v4, 7, v{q}"); A(f"  v_lshl_add_u32 v4, v{n}, 1, v4")
        for k in range(4): A(f"  buffer_load_ushort v{100+k}, v4, s[20:23], 0 offen offset:{32*k}")
        A("  s_waitcnt vmcnt(0)")
        A("  v_lshl_or_b32 v112, v101, 16, v100"); A("  v_lshl_or_b32 v113, v103, 16, v102")
        A("  v_mov_b32 v114, v112"); A("  v_mov_b32 v115, v113")
    A("  s_sub_u32 s57, s35, 8"); A("  s_lshl_b32 s58, s57, 2")
    A(f"  v_mov_b32 v4, {FLG}"); A("  v_add_u32 v4, s58, v4")
    A("  s_mov_b32 s59, 1")
    poll(4, F_FIN, 59, "L_ep_poll", 6, 58, int(os.environ.get("ESLEEP", "2")))
    stampk(k=41)
    A(f"  s_mul_i32 s57, s57, {GPW*BS}"); A(f"  s_add_u32 s57, s57, {WB}")
    A("  v_lshlrev_b32 v4, 4, v1"); A("  v_add_u32 v4, s57, v4")
    A(f"  v_mov_b32 v124, {OOB:#x}"); A("  s_movk_i32 s57, 1250")
    for j in range(GPW):
        b = 16 + 8*j
        acc = 96 + 4*(j % 2)
        if j == 0:
            A(f"  ds_read_b128 v[96:99], v4 offset:0")
        if j + 1 < GPW:
            jn = j + 1
            A(f"  ds_read_b128 v[{96+4*(jn%2)}:{99+4*(jn%2)}], v4 offset:{(jn//5)*PB + (jn%5)*1024}")
            A(f"  s_waitcnt lgkmcnt(1)")
        else:
            A(f"  s_waitcnt lgkmcnt(0)")
        if DMA:
            A(f"  v_cvt_pk_bf16_f32 v104, v{acc}, v{acc+1}"); A(f"  v_cvt_pk_bf16_f32 v105, v{acc+2}, v{acc+3}")
            A(f"  v_lshlrev_b32 v12, 16, v104"); A(f"  v_and_b32 v13, s54, v104"); A(f"  v_lshlrev_b32 v14, 16, v105"); A(f"  v_and_b32 v125, s54, v105")
            A(f"  v_sub_f32 v8, v{acc}, v12"); A(f"  v_sub_f32 v9, v{acc+1}, v13"); A(f"  v_sub_f32 v10, v{acc+2}, v14"); A(f"  v_sub_f32 v11, v{acc+3}, v125")
            A(f"  v_cvt_pk_bf16_f32 v106, v8, v9"); A(f"  v_cvt_pk_bf16_f32 v107, v10, v11")
            A(f"  s_nop 1")
            A(f"  v_mfma_f32_16x16x32_bf16 v[120:123], v[112:115], v[104:107], 0")
            A(f"  s_nop 7")
            for k in range(4): A(f"  v_mul_f32 v{8+k}, v{120+k}, v{b+k}")
        else:
            for k in range(4): A(f"  v_mul_f32 v{8+k}, v{acc+k}, v{b+k}")
        A(f"  v_cvt_pk_bf16_f32 v104, v8, v9"); A(f"  v_cvt_pk_bf16_f32 v105, v10, v11")
        A(f"  v_lshlrev_b32 v12, 16, v104"); A(f"  v_and_b32 v13, s54, v104")
        A(f"  v_lshlrev_b32 v14, 16, v105"); A(f"  v_and_b32 v125, s54, v105")
        A(f"  v_sub_f32 v8, v8, v12"); A(f"  v_sub_f32 v9, v9, v13"); A(f"  v_sub_f32 v10, v10, v14"); A(f"  v_sub_f32 v11, v11, v125")
        A(f"  v_cvt_pk_bf16_f32 v106, v8, v9"); A(f"  v_cvt_pk_bf16_f32 v107, v10, v11")
        A(f"  v_add_u32 v6, {16*j}, v5")
        A(f"  v_cmp_gt_u32 vcc, s57, v6")
        A(f"  v_mfma_f32_16x16x32_bf16 v[108:111], v[116:119], v[104:107], 0")
        A(f"  v_add_u32 v6, s53, v6"); A(f"  v_lshlrev_b32 v6, 5, v6"); A(f"  v_lshl_add_u32 v6, v{q}, 3, v6")
        A(f"  v_cndmask_b32 v6, v124, v6, vcc")
        A(f"  v_lshlrev_b32 v8, 16, v{b+4}"); A(f"  v_and_b32 v9, s54, v{b+4}"); A(f"  v_lshlrev_b32 v10, 16, v{b+5}"); A(f"  v_and_b32 v11, s54, v{b+5}")
        A(f"  v_lshlrev_b32 v12, 16, v{b+6}"); A(f"  v_and_b32 v13, s54, v{b+6}"); A(f"  v_lshlrev_b32 v14, 16, v{b+7}"); A(f"  v_and_b32 v125, s54, v{b+7}")
        A(f"  v_fma_f32 v12, v108, v8, v12"); A(f"  v_fma_f32 v13, v109, v9, v13"); A(f"  v_fma_f32 v14, v110, v10, v14"); A(f"  v_fma_f32 v125, v111, v11, v125")
        A(f"  v_cvt_pk_bf16_f32 v{b+4}, v12, v13"); A(f"  v_cvt_pk_bf16_f32 v{b+5}, v14, v125")
        A(f"  buffer_store_dwordx2 v[{b+4}:{b+5}], v6, s[16:19], 0 offen")

def gen_k2():
    k2_prologue()
    gen_gwave()
    A("L_k2_end:")
    A("  s_endpgm")
    gen_iwave()

if __name__ == "__main__":
    A(f"; @launch kernel=k1_kernel grid=(256,1,1) block=(1024,1,1) lds={gen.K1_LDS}")
    A(f"; @launch kernel=k2_kernel grid=(256,1,1) block=(1024,1,1) lds={K2_LDS}")
    A('.amdgcn_target "amdgcn-amd-amdhsa--gfx950"')
    A(".text")
    gen.STAMP = False
    gen_k1()
    gen_k2()
    A('.section .rodata,"a"')
    A(".p2align 6")
    desc_block("k1_kernel", 128)
    A(".p2align 6")
    desc_block("k2_kernel", 128, 100)
    lines = [l for l in out if l is not None]
    open(sys.argv[1], "w").write("\n".join(lines) + "\n")
```
